```python
import torch

def _softmax(x, axis=-1):
    return torch.softmax(x, dim=axis)
def _gelu(x):
    return torch.nn.functional.gelu(x, approximate="tanh")
def _silu(x):
    return torch.nn.functional.silu(x)
def _sigmoid(x):
    return torch.sigmoid(x)
def _layernorm(x, axis=-1, eps=1e-5):
    m = x.mean(dim=axis, keepdim=True)
    v = x.var(dim=axis, keepdim=True, unbiased=False)
    return (x - m) / torch.sqrt(v + eps)
def _scatter_add(tgt, idx, src, axis=0):
    return tgt.clone().index_add_(axis, idx, src)
def _segment_sum(src, seg, n):
    out = torch.zeros((n,) + src.shape[1:], dtype=src.dtype)
    return out.index_add_(0, seg, src)
def _pad(x, pw):
    flat = tuple(v for pair in reversed(pw) for v in pair)
    return torch.nn.functional.pad(x, flat)

kernel_name = 'sequential_preLN__sliding_block_cached__glu_gated_swiglu__decode'

def setup_inputs():

    _w = (lambda a: (lambda t: t.to(torch.bfloat16) if t.is_floating_point() else t)(torch.as_tensor(a)))
    def _A_setup():
        B, Sq, D = 1, 1, 640
        Hq, Hkv, Sk, Dh = 32, 32, 32768, 192
        assert Hq % Hkv == 0, (Hq, Hkv)
        return {
            "x": _w((lambda *s: torch.randn(*s, dtype=torch.bfloat16) * 0.05)(B, Sq, D)),
            "k_cache": _w((lambda *s: torch.randn(*s, dtype=torch.bfloat16) * 1.6)(B, Hkv, Sk, Dh)),
            "v_cache": _w((lambda *s: torch.randn(*s, dtype=torch.bfloat16) * 0.8)(B, Hkv, Sk, Dh)),
            "wq": _w((lambda *s: torch.randn(*s, dtype=torch.bfloat16) * 1.6)(D, Hq * Dh) * (D ** -0.5)),
            "wo": _w((lambda *s: torch.randn(*s, dtype=torch.bfloat16) * 0.8)(Hq * Dh, D) * ((Hq * Dh) ** -0.5)),
        }
    _A_in = _A_setup()

    def _B_setup():
        B, S, D, F = 1, 1, 640, 1536
        return {
            "x": _w((lambda *s: torch.randn(*s, dtype=torch.bfloat16) * 0.05)(B, S, D)),
            "w1": _w((lambda *s: torch.randn(*s, dtype=torch.bfloat16) * 0.4)(D, F) * (2.0 / D) ** 0.5),
            "w3": _w((lambda *s: torch.randn(*s, dtype=torch.bfloat16) * 0.4)(D, F) * (2.0 / D) ** 0.5),
            "w2": _w((lambda *s: torch.randn(*s, dtype=torch.bfloat16) * 0.4)(F, D) * (2.0 / F) ** 0.5),
        }
    _B_in = _B_setup()

    return {
        "A_x": _A_in["x"],
        "A_k_cache": _A_in["k_cache"],
        "A_v_cache": _A_in["v_cache"],
        "A_wq": _A_in["wq"],
        "A_wo": _A_in["wo"],
        "B_x": _B_in["x"],
        "B_w1": _B_in["w1"],
        "B_w3": _B_in["w3"],
        "B_w2": _B_in["w2"],
    }

def reference(A_x, A_k_cache, A_v_cache, A_wq, A_wo, B_x, B_w1, B_w3, B_w2):
    def _A_ref(x, k_cache, v_cache, wq, wo):
        B, Sq, D = x.shape
        Hq, Dh = 32, 192
        Hkv, Sk = k_cache.shape[1], k_cache.shape[2]
        W = min(4096, max(256, Sk // 4))
        rep = Hq // Hkv
        q = (lambda x, *d: x.permute(*d))((x @ wq).reshape(B, Sq, Hq, Dh), 0, 2, 1, 3)
        k = (lambda x, n, axis: torch.repeat_interleave(x, n, dim=axis))(k_cache[:, :, Sk - W:, :], rep, axis=1)
        v = (lambda x, n, axis: torch.repeat_interleave(x, n, dim=axis))(v_cache[:, :, Sk - W:, :], rep, axis=1)
        scores = torch.einsum("bhqd,bhkd->bhqk", q, k) * (Dh ** -0.5)
        p = _softmax(scores, axis=-1)
        o = torch.einsum("bhqk,bhkd->bhqd", p, v)
        return (lambda x, *d: x.permute(*d))(o, 0, 2, 1, 3).reshape(B, Sq, Hq * Dh) @ wo

    def _B_ref(x, w1, w3, w2):
        gate = torch.einsum("bsd,df->bsf", x, w1)
        up = torch.einsum("bsd,df->bsf", x, w3)
        h = _silu(gate) * up
        out = torch.einsum("bsf,fd->bsd", h, w2)
        return out

    x = A_x
    h = x + _A_ref(_layernorm(x, axis=-1), A_k_cache, A_v_cache, A_wq, A_wo)
    h2 = h + _B_ref(_layernorm(h, axis=-1), B_w1, B_w3, B_w2)
    return h2
```

```python
import re

def regs_of(tok):
    tok = tok.strip()
    neg = tok.lstrip('-')
    if neg.startswith('abs(') or neg.startswith('|'):
        neg = neg.strip('|')
        if neg.startswith('abs('): neg = neg[4:-1]
    tok = neg
    m = re.fullmatch(r'([vsa])(\d+)', tok)
    if m: return [(m.group(1), int(m.group(2)))]
    m = re.fullmatch(r'([vsa])\[(\d+):(\d+)\]', tok)
    if m: return [(m.group(1), i) for i in range(int(m.group(2)), int(m.group(3)) + 1)]
    if tok == 'vcc': return [('s', 106), ('s', 107)]
    if tok == 'vcc_lo': return [('s', 106)]
    if tok == 'vcc_hi': return [('s', 107)]
    if tok == 'exec': return [('s', 126), ('s', 127)]
    if tok == 'exec_lo': return [('s', 126)]
    if tok == 'exec_hi': return [('s', 127)]
    if tok == 'm0': return [('s', 124)]
    return []

TRANS = ('v_exp_f32', 'v_log_f32', 'v_rcp_f32', 'v_rsq_f32', 'v_sqrt_f32', 'v_sin_f32', 'v_cos_f32')

class Ins:
    def __init__(self, text):
        self.text = text
        t = text.split(';')[0].strip()
        self.label = t.endswith(':')
        self.directive = t.startswith('.') or t == '' or text.lstrip().startswith(';')
        self.mn = '' if (self.label or self.directive) else t.split()[0]
        rest = t[len(self.mn):].strip() if self.mn else ''
        ops = [o.strip() for o in rest.split(',')] if rest else []
        clean = []
        for o in ops:
            first = o.split()[0] if o.split() else ''
            clean.append(first)
        self.ops = clean
        self.rest = rest
        mn = self.mn
        self.dst = []; self.src = []
        self.valu = mn.startswith('v_') and not mn.startswith('v_mfma')
        self.mfma = mn.startswith('v_mfma')
        self.dpp = ('_dpp' in mn) or ('quad_perm' in rest) or ('row_' in rest)
        self.perml = mn.startswith('v_permlane')
        self.dot = mn.startswith('v_dot')
        self.base = mn.replace('_e32', '').replace('_e64', '').replace('_dpp', '')
        self.trans = self.base in TRANS
        self.vmem = mn.startswith(('buffer_', 'global_', 'flat_'))
        self.ds = mn.startswith('ds_')
        self.salu = mn.startswith('s_')
        self.rdlane = self.base in ('v_readlane_b32', 'v_readfirstlane_b32')
        R = [regs_of(o) for o in clean]
        if self.valu or self.mfma:
            if self.perml:
                self.dst = R[0] + R[1]; self.src = R[0] + R[1]
            else:
                self.dst = list(R[0]) if R else []
                k = 1
                if self.base in ('v_add_co_u32', 'v_sub_co_u32', 'v_addc_co_u32', 'v_div_scale_f32', 'v_mad_u64_u32'):
                    self.dst += R[1]; k = 2
                for r in R[k:]: self.src += r
                if self.base in ('v_fmac_f32', 'v_dot2c_f32_bf16', 'v_pk_fmac_f16', 'v_writelane_b32'):
                    self.src += R[0]
                if self.base == 'v_cndmask_b32' and len(clean) == 3:
                    self.src += regs_of('vcc')
            if self.mfma:
                self.A = R[1]; self.B = R[2]; self.C = R[3]
        elif self.vmem or self.ds:
            isload = ('load' in mn or 'read' in mn or 'bpermute' in mn or 'swizzle' in mn or 'permute' in mn) and ' lds' not in (' ' + rest) and '_lds_' not in mn
            ret_atomic = 'atomic' in mn and ' sc0' in (' ' + rest)
            if isload or (ret_atomic and mn.startswith('global')):
                self.dst = list(R[0])
                for r in R[1:]: self.src += r
            else:
                for r in R: self.src += r
            self.lds_dma = (' lds' in (' ' + rest)) or '_lds_' in mn
            self.wide_store = ('store' in mn and ('x3' in mn or 'x4' in mn)) and self.vmem
            if self.wide_store:
                self.data = max((r for r in R if r and r[0][0] == 'v'), key=len)
        elif self.salu:
            if mn.startswith(('s_cmp', 's_cbranch', 's_branch', 's_waitcnt', 's_barrier', 's_nop', 's_endpgm', 's_setprio', 's_sleep', 's_bitcmp')):
                for r in R: self.src += r
            else:
                self.dst = list(R[0]) if R else []
                for r in R[1:]: self.src += r
                if 'saveexec' in mn: self.dst += regs_of('exec')

    def states(self):
        if self.label or self.directive: return 0
        if self.mn == 's_nop': return int(self.ops[0], 0) + 1
        return 1

def mfma_passes(mn):
    if '32x32x16' in mn or '32x32x8' in mn: return 8
    if '16x16x32' in mn or '16x16x16' in mn: return 4
    raise ValueError(mn)

def need(p, c):
    n = 0
    pd = set(p.dst); cs = set(c.src); cd = set(c.dst)
    pv = {r for r in pd if r[0] in 'va'}; ps = {r for r in pd if r[0] == 's'}
    if p.valu:
        if pv & cs:
            if c.valu and c.dpp: n = max(n, 2)
            if c.perml: n = max(n, 2)
            if c.rdlane: n = max(n, 1)
            if c.mfma: n = max(n, 2)
            if p.trans and (c.valu and not c.trans or c.mfma or c.vmem or c.ds): n = max(n, 1)
        if p.dot and (pv & (cs | cd)):
            if c.dot and c.base == p.base and not (pv & set(sum([regs_of(o) for o in c.ops[1:3]], []))):
                pass
            else:
                n = max(n, 3)
        if ps & cs:
            if c.valu or c.mfma: n = max(n, 4 if c.base in ('v_readlane_b32', 'v_writelane_b32') else 2)
            if c.vmem: n = max(n, 5)
            if c.salu: n = max(n, 1)
    if p.mfma:
        ps_ = mfma_passes(p.mn)
        t = {4: (6, 8, 8, 3), 8: (10, 12, 12, 7)}[ps_]
        if c.mfma:
            if pv & set(c.C):
                if not (set(c.C) == pv and mfma_passes(c.mn) == ps_): n = max(n, t[0])
            if pv & (set(c.A) | set(c.B)): n = max(n, t[1])
            if (pv & cd) and not (pv & set(c.C)): n = max(n, t[2])
        elif pv & (cs | cd): n = max(n, t[2])
        if c.valu and (set(p.C) & cd): n = max(n, t[3])
    if p.vmem and getattr(p, 'wide_store', False):
        if set(p.data) & cd: n = max(n, 2)
    if p.salu and ('s', 124) in pd and (c.vmem and getattr(c, 'lds_dma', False)): n = max(n, 1)
    return n

class Asm:
    def __init__(self):
        self.lines = []
    def __call__(self, s):
        for l in s.split('\n'):
            l = l.strip()
            if l: self.lines.append(l)
    def raw(self, s):
        self.lines.append(s)
    def finalize(self):
        out = []
        for l in self.lines:
            ins = Ins(l)
            if not (ins.label or ins.directive):
                dist = 0; pad = 0
                for p in reversed(out):
                    if dist >= 20: break
                    if not (p.label or p.directive):
                        k = need(p, ins)
                        if k > dist: pad = max(pad, k - dist)
                    dist += p.states()
                while pad > 0:
                    k = min(pad, 16)
                    out.append(Ins(f's_nop {k-1}'))
                    pad -= k
            out.append(ins)
        return '\n'.join((i.text if (i.label or i.directive) else '  ' + i.text) for i in out) + '\n'
```

```python
import sys, struct, os
from asmlib import Asm

NAME = "sequential_preLN__sliding_block_cached__glu_gated_swiglu__decode"
opt = dict(D=3, stamps=0, hist=0, spin=200007, Vpre=3, qsleep=20, qdelay=40, stsleep=16, idtries=12, idsleep=16,
           t1=6, t2=1, DWO=8, nA=0, nB=0, hintB=2, fsleep=14, forceslow=0, trap=0, dyn=1, near=1, dbg=0, hsleep=0,
           cpf=3, nprobe=2, fixnear=-1, share=1, tearly=0, DWB=4, opearly=0, tB=0, prew=7, npw=4)
for a in sys.argv[2:]:
    k, v = a.split('=')
    assert k in opt, k
    opt[k] = int(v)
D = opt['D']; STAMPS = opt['stamps']; SPIN = opt['spin']

def f32(x): return '0x%08x' % struct.unpack('<I', struct.pack('<f', x))[0]
LOG2E = 1.4426950408889634

YP = 0x0
PR = 0x20000
FP = 0x80000
EP = 0xFF000
ST = 0x101000
ID = 0x102000
DN1 = 0x103000
DN2 = 0x104000
PV = 0x105000
OP = 0x110000
QP = 0x140000
SP = 0x200000
PA = 0x220000
HB = 0x300000
WSN = 0x400000
FAST = 0x400000
QL = 0
QF = 384
SL = 512
CNT = 640
INFO = 656
GS = 672
HID = 896
OL = 1024
RL = 7168
HL = 8192
WL = 8704
LDS = WL + 49152

A = Asm()
A.raw(open(os.path.join(os.path.dirname(os.path.abspath(__file__)), '..', NAME + '.s.ref')).read().split('; Override launch')[0].rstrip())
A.raw(f"; @launch grid=(256,1,1) block=(768,1,1) lds={LDS}")
A.raw('''; Generated by gen/gen11.py (hand-written generator).  One persistent launch, 256 workgroups x 12 waves, 1 per CU.
;  waves 0..7 : stream this workgroup's 512 keys of K then V (nt loads, depth-limited), QK / PV with v_dot2c bf16,
;  s_sleep is used only as back-off inside / ahead of polling loops.''')
A.raw('.amdgcn_target "amdgcn-amd-amdhsa--gfx950"')
A.raw('.text')
A.raw(f'.globl {NAME}_kernel')
A.raw('.p2align 8')
A.raw(f'.type {NAME}_kernel,@function')
A.raw(f'{NAME}_kernel:')

def stamp(idx, plus_wave=False):
    if not STAMPS: return
    A('s_memrealtime s[96:97]')
    A('s_lshl_b32 s98, s2, 8')
    A(f's_add_u32 s98, s98, {SP + idx*8}')
    if plus_wave: A('s_lshl3_add_u32 s98, s3, s98')
    A('s_mov_b64 s[94:95], exec')
    A('s_mov_b64 exec, 1')
    A('s_waitcnt lgkmcnt(0)')
    A('v_mov_b32 v120, s96\nv_mov_b32 v121, s97\nv_mov_b32 v122, 0')
    A('buffer_store_dwordx2 v[120:121], v122, s[24:27], s98 offen')
    A('s_mov_b64 exec, s[94:95]')
def mark(i):
    if STAMPS: A(f's_memrealtime s[{80+2*i}:{81+2*i}]')
def flush(pairs, plus_wave=False):
    if not STAMPS: return
    A('s_lshl_b32 s98, s2, 8')
    A(f's_add_u32 s98, s98, {SP}')
    if plus_wave: A('s_lshl3_add_u32 s98, s3, s98')
    A('s_mov_b64 exec, 1\ns_waitcnt lgkmcnt(0)\nv_mov_b32 v122, 0')
    for i, slot in pairs:
        A(f'v_mov_b32 v120, s{80+2*i}\nv_mov_b32 v121, s{81+2*i}')
        A(f'buffer_store_dwordx2 v[120:121], v122, s[24:27], s98 offen offset:{8*slot}')
        A('s_nop 1')
    A('s_mov_b64 exec, -1')
def hstamp(ks):
    if not opt['hist']: return
    if isinstance(ks, int): ks = [ks]
    ks = list(ks)
    if not ks: return
    A('s_memrealtime s[96:97]\ns_waitcnt lgkmcnt(0)')
    for k in ks: A(f'v_writelane_b32 v159, s96, {k}')

def srd(d, ptr, nbytes):
    A(f's_mov_b32 s{d}, s{ptr}')
    A(f's_mov_b32 s{d+1}, s{ptr+1}')
    A(f's_mov_b32 s{d+2}, {nbytes}')
    A(f's_mov_b32 s{d+3}, 0x20000')
def ws_srds():
    srd(24, 58, WSN)
    A(f's_add_u32 s32, s58, {FAST}')
    A('s_addc_u32 s33, s59, 0')
    A(f's_mov_b32 s34, {WSN}')
    A('s_mov_b32 s35, 0x20000')
    A('s_lshl3_add_u32 s71, s6, s7')
    A('s_lshr_b32 s79, s2, 3')

ALL = (1 << 64) - 1
def setexec(mask):
    if mask == ALL: A('s_mov_b64 exec, -1'); return
    A(f's_mov_b32 exec_lo, 0x{mask & 0xffffffff:x}')
    A(f's_mov_b32 exec_hi, 0x{mask >> 32:x}')

DPPM = 'row_mask:0xf bank_mask:0xf'
def allreduce8(op, regs):
    for pat in ('quad_perm:[1,0,3,2]', 'quad_perm:[2,3,0,1]', 'row_half_mirror'):
        for r in regs: A(f'{op}_dpp v{r}, v{r}, v{r} {pat} {DPPM}')
def allreduce16(op, regs):
    allreduce8(op, regs)
    for r in regs: A(f'{op}_dpp v{r}, v{r}, v{r} row_mirror {DPPM}')
def swapreduce(sw, op, regs, tmps):
    for r, t in zip(regs, tmps): A(f'v_mov_b32 v{t}, v{r}')
    for r, t in zip(regs, tmps): A(f'{sw} v{r}, v{t}')
    for r, t in zip(regs, tmps): A(f'{op} v{r}, v{r}, v{t}')
S16 = 'v_permlane16_swap_b32'; S32 = 'v_permlane32_swap_b32'
def allreduce_rows(op, regs, tmps):
    swapreduce(S16, op, regs, tmps); swapreduce(S32, op, regs, tmps)
def allreduce64(op, regs, tmps):
    allreduce16(op, regs); allreduce_rows(op, regs, tmps)
def bf16r(d, s):
    A(f'v_cvt_pk_bf16_f32 v{d}, v{s}, v{s}')
    A(f'v_lshlrev_b32 v{d}, 16, v{d}')
def mktag():
    A('''
s_waitcnt lgkmcnt(0)
s_mul_i32 s30, s28, 0x2c9277b5
s_add_u32 s30, s30, 0xac564b05
s_mul_i32 s31, s29, 0x0019660d
s_add_u32 s31, s31, 0x3c6ef35f
''')
def place(v, t):
    A(f'v_and_b32 v{t}, 0xffffe000, v{v}\nv_add_u32 v{v}, v{v}, v{t}')
lbl = [0]
def newlabel(p):
    lbl[0] += 1
    return f'L_{p}_{lbl[0]}'

def tagcheck(pairs):
    A(f'v_cmp_ne_u64 vcc, s[30:31], v[{pairs[0]}:{pairs[0]+1}]')
    tm = [(20, 21), (22, 23)]
    pend = []
    for i, p in enumerate(pairs[1:]):
        t = tm[i % 2]
        if len(pend) == 2:
            q = pend.pop(0); A(f's_or_b64 vcc, vcc, s[{q[0]}:{q[1]}]')
        A(f'v_cmp_ne_u64 s[{t[0]}:{t[1]}], s[30:31], v[{p}:{p+1}]')
        pend.append(t)
    for q in pend: A(f's_or_b64 vcc, vcc, s[{q[0]}:{q[1]}]')

def sleep(n):
    while n > 0:
        A(f's_sleep {min(n, 127)}'); n -= 127
def spin(body, slp=0, retry=None, enter=None):
    top = newlabel('spin'); done = newlabel('sdone')
    A(f's_mov_b32 s70, {SPIN}')
    if enter: A(f's_branch {enter}')
    A(f'{top}:')
    body()
    A('s_nop 0')
    A(f's_cbranch_vccz {done}')
    sleep(slp)
    if retry: retry()
    A('s_sub_u32 s70, s70, 1')
    A(f's_cbranch_scc0 {top}')
    if opt['trap']:
        A(f's_lshl_b32 s99, s2, 8\ns_or_b32 s99, s99, s3\ns_lshl_b32 s99, s99, 8\ns_or_b32 s99, s99, {lbl[0] & 255}')
        A(f'v_mov_b32 v166, {HB - 256 + 4 * (lbl[0] % 64)}\nv_mov_b32 v167, s99')
        A('global_store_dword v166, v167, s[58:59]')
    A(f'{done}:')
def spin2(body, slp=0, retry=None, local_only=False, enter=None):
    A(f's_mov_b32 s16, s32\ns_mov_b32 s17, s33\ns_mov_b32 s18, {WSN}\ns_mov_b32 s19, 0x20000')
    def rt():
        if retry: retry()
        A('s_and_b32 s99, s70, 7')
        if local_only:
            A('s_cmp_eq_u32 s46, 1')
            A('s_cselect_b32 s99, 1, s99')
            A('s_cmp_lg_u32 s99, 0')
        A('s_cselect_b32 s16, s32, s24')
        A('s_cselect_b32 s17, s33, s25')
    spin(body, slp, rt, enter)

def lds_wait_ge(off, n, slp, dst=4, adr=1):
    A(f'v_mov_b32 v{adr}, 0')
    def body():
        A(f'ds_read_b32 v{dst}, v{adr} offset:{off}')
        A('s_waitcnt lgkmcnt(0)')
        A(f'v_cmp_gt_u32 vcc, {n}, v{dst}')
    spin(body, slp)
def get_mode(dst=4, adr=1):
    lds_wait_ge(INFO, 1, 2, dst, adr)
    A(f'v_readfirstlane_b32 s46, v{dst}')
def get_role(slp):
    A('v_mov_b32 v1, 0')
    def body():
        A(f'ds_read_b64 v[4:5], v1 offset:{INFO + 8}')
        A('s_waitcnt lgkmcnt(0)')
        A('v_cmp_eq_u32 vcc, 0, v5')
    spin(body, slp)
    A('v_readfirstlane_b32 s5, v5\nv_readfirstlane_b32 s47, v4\ns_sub_u32 s5, s5, 1')
ROLE = INFO + 12; NEAR = INFO + 8

outline = []
def publish(stores):
    def emit(srdn, fl, AA):
        cur = ALL
        for m, line in stores:
            m = ALL if m is None else m
            if m != cur:
                if m == ALL: AA('s_mov_b64 exec, -1')
                else: AA(f's_mov_b32 exec_lo, 0x{m & 0xffffffff:x}\ns_mov_b32 exec_hi, 0x{m >> 32:x}')
                cur = m
            AA(line.replace('@', f's[{srdn}:{srdn+3}]') + fl)
        if cur != ALL: AA('s_mov_b64 exec, -1')
    if not opt['forceslow']: emit(32, '', A)
    slow = newlabel('slow'); back = newlabel('back')
    A('s_cmp_lg_u32 s46, 1')
    A(f's_cbranch_scc1 {slow}')
    A(f'{back}:')
    blk = [f'{slow}:']
    emit(24, ' sc1', lambda t: blk.append(t))
    blk.append('s_nop 1')
    blk.append(f's_branch {back}')
    outline.append('\n'.join(blk))
def hint_wait(base, n):
    if not n: return
    lp = newlabel('gpoll'); ld = newlabel('gdone')
    A(f"""
v_and_b32 v1, 31, v0
v_lshlrev_b32 v1, 4, v1
s_lshl_b32 s68, s4, 9
s_add_u32 s68, s68, {base}
s_mov_b32 s70, 40
s_cmp_lg_u32 s46, 1
s_cbranch_scc1 {ld}
{lp}:
buffer_load_dwordx4 v[4:7], v1, s[32:35], s68 offen sc1
s_waitcnt vmcnt(0)
v_cmp_eq_u64 vcc, s[30:31], v[6:7]
s_nop 0
s_bcnt1_i32_b32 s69, vcc_lo
s_cmp_ge_u32 s69, {n}
s_cbranch_scc1 {ld}
s_sleep 2
s_sub_u32 s70, s70, 1
s_cbranch_scc0 {lp}
{ld}:
""")

A("""
s_cmp_ge_u32 s2, 256
s_cbranch_scc1 L_end
s_load_dwordx2 s[8:9], s[0:1], 8
s_load_dwordx16 s[36:51], s[0:1], 0
s_load_dwordx8 s[52:59], s[0:1], 64
""")
mark(0)
if opt['dbg']: A('s_memrealtime s[80:81]')
if opt['hist']: A('s_memrealtime s[94:95]\nv_mov_b32 v159, 0')
A("""
v_lshrrev_b32 v1, 6, v0
v_and_b32 v0, 63, v0
v_readfirstlane_b32 s3, v1
s_and_b32 s4, s2, 7
s_lshr_b32 s79, s2, 6
s_lshl2_add_u32 s6, s4, s79
s_bfe_u32 s7, s2, 0x30003
""")
if opt['cpf'] >= 3:
    A(f'''
s_cmp_lg_u32 s3, 0
s_cbranch_scc1 L_nocpf
s_getpc_b64 s[20:21]
L_pc0:
''')
    if opt['cpf'] == 3:
        A(f'''
s_mul_i32 s68, s7, {2560 if (STAMPS or opt['hist']) else 2048}
v_min_u32 v8, {19 if (STAMPS or opt['hist']) else 15}, v0
v_lshl_add_u32 v8, v8, 7, s68
v_min_u32 v8, L_codeend-L_pc0-4, v8
global_load_dword v10, v8, s[20:21]
''')
    else:
        A(f'''
v_lshlrev_b32 v8, 7, v0
v_add_u32 v9, 8192, v8
v_min_u32 v9, L_codeend-L_pc0-4, v9
global_load_dword v10, v8, s[20:21]
global_load_dword v11, v9, s[20:21]
''')
    A('L_nocpf:')
A("""
v_lshrrev_b32 v2, 3, v0
v_and_b32 v3, 7, v0
v_lshlrev_b32 v3, 4, v3
s_mov_b32 s11, 0x20000
s_cmp_gt_u32 s3, 7
s_cbranch_scc1 L_helper
""")
G = 8; GST = 3072 * 64
GOFF = [60, 61, 62, 63, 64, 65, 66, 67]
A("""
s_lshl3_add_u32 s68, s7, s3
s_mul_i32 s60, s6, 4096
s_add_u32 s60, s60, s68
s_addk_i32 s60, 3584
s_mul_i32 s60, s60, 3072
v_mul_u32_u24 v2, 384, v2
v_add_u32 v1, v2, v3
s_mov_b32 s10, 402653184
s_waitcnt lgkmcnt(0)
""")
QR = 4; KR = 16
SC = 168 - G
VR = KR + 12 * G
nV1 = min((SC - VR) // 12, G) - (1 if opt['hist'] else 0)
ACC = KR + 12 * (G - 2)
T = ACC
st = dict(n=0); hs = dict(done=0)
def hupto(n):
    hstamp(range(hs['done'], n)); hs['done'] = max(hs['done'], n)
def vreg(g): return VR + 12 * g if g < nV1 else KR + 12 * (g - nV1)
def issue_load(kind, g, j, depth):
    if depth and st['n'] >= depth: A(f's_waitcnt vmcnt({depth-1})')
    r = (KR + 12 * g + 4 * j) if kind == 'K' else vreg(g) + 4 * j
    s = 8 if kind == 'K' else 12
    A(f'buffer_load_dwordx4 v[{r}:{r+3}], v1, s[{s}:{s+3}], s{GOFF[g]} offen offset:{128*j} nt')
    if depth and st['n'] >= depth: hupto(st['n'] - depth + 1)
    st['n'] += 1
for j in range(3): issue_load('K', 0, j, D)
A('s_barrier')
A('s_branch L_stream')

A('L_helper:')
A(f'''
v_lshlrev_b32 v1, 3, v0
v_mov_b32 v4, 0
v_mov_b32 v5, 0
ds_write_b64 v1, v[4:5] offset:{QF}
s_sub_u32 s73, s3, 8
s_cmp_eq_u32 s3, 11
s_cbranch_scc1 L_misc
''')
A('''
s_mul_i32 s68, s7, 80
v_add_u32 v7, s68, v2
v_lshlrev_b32 v7, 1, v7
v_mul_u32_u24 v2, 12288, v2
v_add_u32 v2, v2, v3
s_mul_i32 s68, s68, 12288
s_mul_i32 s69, s6, 384
s_add_u32 s68, s68, s69
s_lshl_b32 s69, s73, 7
s_add_u32 s68, s68, s69
v_lshlrev_b32 v1, 2, v0
s_setprio 3
s_waitcnt lgkmcnt(0)
s_barrier
''')
XS = 64; XU = 70; XR = 8; WQ = 24; QA = 80
A(f's_mov_b32 s8, s42\ns_mov_b32 s9, s43\ns_mov_b32 s10, {640 * 6144 * 2}')
for i in range(5): A(f'global_load_dword v{XS+i}, v1, s[36:37] offset:{256*i}')
for r in range(10): A(f'global_load_ushort v{XR+r}, v7, s[36:37] offset:{16*r}')
for r in range(10):
    A(f'buffer_load_dwordx4 v[{WQ+4*r}:{WQ+4*r+3}], v2, s[8:11], s68 offen nt')
    if r < 9: A('s_add_u32 s68, s68, 98304')
A(f's_load_dwordx2 s[28:29], s[58:59], {EP}')
A('s_branch L_q2')
A('L_misc:')
if opt['cpf'] in (1, 2):
    A(f'''
s_getpc_b64 s[20:21]
L_pc0:
''')
    if opt['cpf'] == 1:
        A(f'''
s_lshr_b32 s68, s2, 3
s_lshl_b32 s68, s68, 9
v_lshlrev_b32 v8, 7, v0
v_and_b32 v8, 0x1ff, v8
v_add_u32 v8, s68, v8
v_min_u32 v8, L_codeend-L_pc0-4, v8
global_load_dword v10, v8, s[20:21]
''')
    else:
        A(f'''
v_lshlrev_b32 v8, 7, v0
v_add_u32 v9, 8192, v8
v_min_u32 v9, L_codeend-L_pc0-4, v9
global_load_dword v10, v8, s[20:21]
global_load_dword v11, v9, s[20:21]
''')
A(f'''
s_setprio 3
s_waitcnt lgkmcnt(0)
s_barrier
s_load_dwordx2 s[28:29], s[58:59], {EP}
s_branch L_misc2
''')

A('L_stream:')
for g in range(1, G):
    A(f's_add_u32 s{GOFF[g]}, s{GOFF[g-1]}, {GST}')
    for j in range(3):
        issue_load('K', g, j, D)
        if g == 1 and j == 0:
            A(f's_load_dwordx2 s[28:29], s[58:59], {EP}')
            ws_srds(); srd(12, 40, 402653184)
mark(1)
nv = 0; NV = 3 * G
for n in range(min(opt['Vpre'], 3 * nV1)):
    issue_load('V', nv // 3, nv % 3, D); nv += 1
mktag()
A('v_and_b32 v2, 3, v0\nv_min_u32 v2, 2, v2\nv_lshlrev_b32 v2, 3, v2')
def body():
    A(f'ds_read_b32 v{QR}, v2 offset:{QF}')
    A('s_waitcnt lgkmcnt(0)')
    A(f'v_cmp_eq_u32 vcc, 0, v{QR}')
spin(body, 1)
A(f'''
ds_read_b128 v[{QR}:{QR+3}], v3 offset:{QL}
ds_read_b128 v[{QR+4}:{QR+7}], v3 offset:{QL+128}
ds_read_b128 v[{QR+8}:{QR+11}], v3 offset:{QL+256}
''')
for g in range(G): A(f'v_mov_b32 v{SC+g}, 0')
A(f's_waitcnt vmcnt({nv}) lgkmcnt(0)')
hupto(3 * G)
for gs in (range(4), range(4, G)):
    for i in range(12):
        for g in gs:
            A(f'v_dot2c_f32_bf16 v{SC+g}, v{KR+12*g+i}, v{QR+i}')
allreduce8('v_add_f32', [SC + g for g in range(G)])
A(f's_mov_b32 s68, {f32(192 ** -0.5)}')
A('v_mov_b32 v2, 0')
for g in range(G): A(f'v_cvt_pk_bf16_f32 v{SC+g}, v2, v{SC+g}')
for g in range(G): A(f'v_mul_f32 v{SC+g}, s68, v{SC+g}')
for g in range(G): A(f'v_cvt_pk_bf16_f32 v{SC+g}, v2, v{SC+g}')
A(f'v_max_f32 v4, v{SC}, v{SC+1}')
for g in range(2, G, 2): A(f'v_max3_f32 v4, v4, v{SC+g}, v{SC+g+1}')
A(f'v_max_f32_dpp v4, v4, v4 row_ror:8 {DPPM}')
allreduce_rows('v_max_f32', [4], [T])
A(f's_mov_b32 s68, {f32(LOG2E)}')
for g in range(G): A(f'v_sub_f32 v{SC+g}, v{SC+g}, v4')
for g in range(G): A(f'v_mul_f32 v{SC+g}, s68, v{SC+g}')
for g in range(G): A(f'v_exp_f32 v{SC+g}, v{SC+g}')
A(f'v_add_f32 v5, v{SC}, v{SC+1}')
for g in range(2, G): A(f'v_add_f32 v5, v5, v{SC+g}')
A(f'v_add_f32_dpp v5, v5, v5 row_ror:8 {DPPM}')
allreduce_rows('v_add_f32', [5], [T])
A(f'''
s_lshl_b32 s69, s3, 4
v_mov_b32 v{T}, s69
v_mov_b32 v6, 1
v_mov_b32 v7, 1
ds_write_b128 v{T}, v[4:7] offset:{SL}
''')
mark(2)
for g in range(G): A(f'v_cvt_pk_bf16_f32 v{SC+g}, v{SC+g}, v2')
for i in range(24): A(f'v_mov_b32 v{ACC+i}, 0')
A('''
v_and_b32 v8, 7, v0
v_lshlrev_b32 v8, 5, v8
v_lshrrev_b32 v9, 4, v0
v_lshl_add_u32 v8, v9, 3, v8
s_mul_i32 s69, s3, 768
v_add_u32 v8, s69, v8
v_mov_b32 v11, 1
''')
def pv(idx):
    g, j = divmod(idx, 3)
    r = vreg(g) + 4 * j
    if j == 0: A(f'v_lshlrev_b32 v10, 16, v{SC+g}')
    for e in range(4):
        A(f'v_dot2c_f32_bf16 v{ACC+8*j+2*e}, v{r+e}, v{SC+g}')
        A(f'v_dot2c_f32_bf16 v{ACC+8*j+2*e+1}, v{r+e}, v10')
done_idx = -1; pv_next = 0
assert nv < NV - opt['t1'] and opt['t1'] >= opt['t2']
while nv < NV:
    issue_load('V', nv // 3, nv % 3, D)
    done_idx = nv - D
    nv += 1
    for key, off in (('t1', 8), ('t2', 4)):
        if nv == NV - opt[key]:
            A(f's_mov_b64 exec, 1\nds_add_u32 v2, v11 offset:{CNT+off}\ns_mov_b64 exec, -1')
    cnt = 0
    while pv_next <= done_idx and cnt < 2:
        pv(pv_next); pv_next += 1; cnt += 1
def scale_factor():
    def body():
        A(f'ds_read_b128 v[12:15], v2 offset:{GS}')
        A(f'ds_read_b32 v7, v2 offset:{INFO}')
        A('s_waitcnt lgkmcnt(0)')
        A('v_cmp_eq_u32 vcc, 0, v15')
    spin(body, 1)
    A('v_sub_f32 v9, v4, v12\nv_mul_f32 v9, s68, v9\nv_exp_f32 v9, v9\nv_readfirstlane_b32 s46, v7\nv_mul_f32 v9, v9, v13')
    A(f'''
v_min_u32 v12, 47, v0
v_lshlrev_b32 v12, 4, v12
s_mul_i32 s74, s71, 768
s_add_u32 s74, s74, {OP}
s_lshl_b32 s75, s4, 9
s_lshl4_add_u32 s75, s79, s75
s_add_u32 s75, s75, {DN2}
s_mov_b32 s22, 0xaaaaaaaa
s_mov_b32 s23, 0xaaaaaaaa
v_mov_b32 v14, s30
v_mov_b32 v15, s31
''')
def reduce_j(j):
    for e in range(4): A(f'{S32} v{ACC+8*j+e}, v{ACC+8*j+e+4}')
    for e in range(4): A(f'v_add_f32 v{ACC+8*j+e}, v{ACC+8*j+e}, v{ACC+8*j+e+4}')
    for e in range(2): A(f'{S16} v{ACC+8*j+e}, v{ACC+8*j+e+2}')
    for e in range(2): A(f'v_add_f32 v{ACC+8*j+e}, v{ACC+8*j+e}, v{ACC+8*j+e+2}')
    for e in range(2): A(f'v_add_f32_dpp v{ACC+8*j+e}, v{ACC+8*j+e}, v{ACC+8*j+e} row_ror:8 {DPPM}')
    for e in range(2): A(f'v_mul_f32 v{ACC+8*j+e}, v9, v{ACC+8*j+e}')
    A(f'ds_write_b64 v8, v[{ACC+8*j}:{ACC+8*j+1}] offset:{OL+256*j}')
fd = False
while pv_next < NV:
    if pv_next >= NV - 3 and not fd:
        scale_factor(); fd = True
    if pv_next > done_idx:
        A(f's_waitcnt vmcnt({NV - 1 - pv_next})')
        hupto(3 * G + pv_next + 1)
        done_idx = pv_next
    pv(pv_next); pv_next += 1
    if pv_next > NV - 3: reduce_j((pv_next - 1) % 3)
A(f'''
s_mov_b64 exec, 1
ds_add_rtn_u32 v10, v2, v11 offset:{CNT}
s_waitcnt lgkmcnt(0)
v_readfirstlane_b32 s68, v10
s_mov_b64 exec, -1
s_cmp_lg_u32 s68, 7
s_cbranch_scc1 L_nopub
''')
for w in range(8): A(f'ds_read_b128 v[{16+4*w}:{19+4*w}], v12 offset:{OL+768*w}')
for w in range(0, 8, 2):
    A(f's_waitcnt lgkmcnt({6-w})')
    for e in range(4): A(f'v_add_f32 v{16+4*w+e}, v{16+4*w+e}, v{20+4*w+e}')
    if w == 2 or w == 6:
        for e in range(4): A(f'v_add_f32 v{8+4*w+e}, v{8+4*w+e}, v{16+4*w+e}')
for e in range(4): A(f'v_add_f32 v{4+e}, v{16+e}, v{32+e}')
A('''
v_cvt_pk_bf16_f32 v8, v4, v5
v_cvt_pk_bf16_f32 v9, v6, v7
v_cndmask_b32 v4, v8, v14, s[22:23]
v_cndmask_b32 v5, v9, v15, s[22:23]
v_cndmask_b32 v6, v14, v8, s[22:23]
v_cndmask_b32 v7, v15, v9, s[22:23]
''')
publish([((1 << 48) - 1, 'buffer_store_dwordx4 v[4:7], v12, @, s74 offen')])
A('''
s_mov_b64 exec, 1
buffer_store_dwordx4 v[4:7], v12, s[32:35], s75 offen
ds_write_b32 v2, v11 offset:%d
s_mov_b64 exec, -1
''' % (INFO + 4))
stamp(16)
flush([(1, 9), (2, 10)])
A('L_nopub:')
if STAMPS:
    A('s_cmp_lg_u32 s3, 0\ns_cbranch_scc1 L_nost0')
    flush([(0, 0)])
    A('L_nost0:')
A('s_cmp_eq_u32 s3, 7\ns_cbranch_scc1 L_end')
get_role(1)
A('''
s_cmp_lt_u32 s5, 12
s_cbranch_scc1 L_ffn
s_cmp_lt_u32 s5, 20
s_cbranch_scc1 L_end
s_cmp_lt_u32 s3, 5
s_cbranch_scc1 L_f1
s_endpgm
''')

A('L_q2:')
A('s_mov_b32 s69, 0xffff0000')
ws_srds()
mktag()
QX = 0
if opt['prew'] & 1:
    A(f'''
s_not_b32 s20, s30
v_mov_b32 v92, s20
v_mov_b32 v93, s20
v_mov_b32 v94, s20
v_mov_b32 v95, s20
v_lshlrev_b32 v91, 4, v0
s_lshl_b32 s64, s71, 11
s_lshl_b32 s65, s73, 9
s_add_u32 s64, s64, s65
s_add_u32 s64, s64, {QP}
s_mov_b32 exec_hi, 0
buffer_store_dwordx4 v[92:95], v91, s[32:35], s64 offen
s_mov_b32 exec_hi, -1
''')
    QX = 1
A(f's_waitcnt vmcnt({20+QX})')
for i in range(5):
    A(f'v_lshlrev_b32 v{XU+2*i}, 16, v{XS+i}')
    A(f'v_and_b32 v{XU+1+2*i}, s69, v{XS+i}')
A(f'''
v_add_f32 v4, v{XU}, v{XU+1}
v_add_f32 v5, v{XU+2}, v{XU+3}
v_add_f32 v6, v{XU+4}, v{XU+5}
v_add_f32 v7, v{XU+6}, v{XU+7}
v_add_f32 v4, v4, v5
v_add_f32 v6, v6, v7
v_add_f32 v5, v{XU+8}, v{XU+9}
v_add_f32 v4, v4, v6
v_add_f32 v4, v4, v5
''')
allreduce64('v_add_f32', [4], [5])
A(f'v_mul_f32 v4, {f32(1.0/640)}, v4')
for i in range(10): A(f'v_sub_f32 v{XU+i}, v{XU+i}, v4')
A(f'v_mul_f32 v5, v{XU}, v{XU}')
for i in range(1, 10): A(f'v_fmac_f32 v5, v{XU+i}, v{XU+i}')
allreduce64('v_add_f32', [5], [6])
A(f'v_mul_f32 v5, {f32(1.0/640)}, v5')
bf16r(4, 4); bf16r(5, 5)
A(f'v_add_f32 v5, {f32(1e-5)}, v5')
bf16r(5, 5)
A('v_sqrt_f32 v5, v5')
bf16r(5, 5)
A('v_rcp_f32 v5, v5')
A('v_mov_b32 v6, 0')
A(f's_waitcnt vmcnt({10+QX})')
for r in range(10): A(f'v_lshlrev_b32 v{XR+r}, 16, v{XR+r}')
for r in range(10): A(f'v_sub_f32 v{XR+r}, v{XR+r}, v4')
for r in range(10): A(f'v_cvt_pk_bf16_f32 v{XR+r}, v6, v{XR+r}')
for r in range(10): A(f'v_mul_f32 v{XR+r}, v{XR+r}, v5')
for r in range(10):
    A(f'v_cvt_pk_bf16_f32 v{XU+r}, v6, v{XR+r}')
    A(f'v_cvt_pk_bf16_f32 v{XR+r}, v{XR+r}, v6')
for e in range(8): A(f'v_mov_b32 v{QA+e}, 0')
A(f'''
v_and_b32 v90, 7, v0
v_lshrrev_b32 v6, 4, v0
v_lshl_add_u32 v90, v90, 2, v6
v_lshlrev_b32 v90, 4, v90
s_lshl_b32 s64, s71, 11
s_lshl_b32 s69, s73, 9
s_add_u32 s69, s69, {QP}
s_add_u32 s64, s64, s69
''')
for r in range(10):
    A(f's_waitcnt vmcnt({9-r+QX if r < 9 else 0})')
    hstamp(r)
    for e in range(4):
        A(f'v_dot2c_f32_bf16 v{QA+2*e}, v{WQ+4*r+e}, v{XR+r}')
        A(f'v_dot2c_f32_bf16 v{QA+2*e+1}, v{WQ+4*r+e}, v{XU+r}')
mark(1)
for e in range(4): A(f'{S32} v{QA+e}, v{QA+e+4}')
for e in range(4): A(f'v_add_f32 v{QA+e}, v{QA+e}, v{QA+e+4}')
for e in range(2): A(f'{S16} v{QA+e}, v{QA+e+2}')
for e in range(2): A(f'v_add_f32 v{QA+e}, v{QA+e}, v{QA+e+2}')
for e in range(2): A(f'v_add_f32_dpp v{QA+e}, v{QA+e}, v{QA+e} row_ror:8 {DPPM}')
A(f'v_mov_b32 v{QA+2}, s30\nv_mov_b32 v{QA+3}, s31')
QM = 0x00ff00ff00ff00ff
if not opt['forceslow']:
    setexec(QM)
    A(f'buffer_store_dwordx4 v[{QA}:{QA+3}], v90, s[32:35], s64 offen')
    setexec(ALL)
A('''
v_and_b32 v3, 31, v0
v_lshrrev_b32 v2, 5, v0
v_lshlrev_b32 v2, 11, v2
v_lshl_add_u32 v2, v3, 4, v2
s_lshl_b32 s68, s6, 14
s_add_u32 s60, s68, s69
s_add_u32 s61, s60, 4096
s_add_u32 s62, s60, 8192
s_add_u32 s63, s60, 12288
v_lshlrev_b32 v3, 2, v3
s_lshl_b32 s69, s73, 7
v_add_u32 v3, s69, v3
v_mov_b32 v1, 0
s_mov_b32 s65, 0
''')
def q_lazy():
    skip = newlabel('qlazy')
    A(f'''
ds_read_b32 v4, v1 offset:{INFO}
s_waitcnt lgkmcnt(0)
v_readfirstlane_b32 s46, v4
s_sub_u32 s68, s46, s65
s_cmp_lg_u32 s68, 2
s_cbranch_scc1 {skip}
''')
    setexec(QM)
    A(f'buffer_store_dwordx4 v[{QA}:{QA+3}], v90, s[24:27], s64 offen sc1')
    setexec(ALL)
    A(f's_mov_b32 s65, 1\n{skip}:')
def body():
    for n in range(4):
        A(f'buffer_load_dwordx4 v[{8+4*n}:{11+4*n}], v2, s[16:19], s{60+n} offen sc1')
    A('s_waitcnt vmcnt(0)')
    tagcheck([10, 14, 18, 22])
sleep(opt['qdelay'])
spin2(body, opt['qsleep'], retry=q_lazy)
mark(2)
A(f'''
v_add_f32 v8, v8, v12
v_add_f32 v9, v9, v13
v_add_f32 v16, v16, v20
v_add_f32 v17, v17, v21
v_add_f32 v8, v8, v16
v_add_f32 v9, v9, v17
''')
swapreduce(S32, 'v_add_f32', [8, 9], [10, 11])
A(f'''
v_cvt_pk_bf16_f32 v8, v8, v9
ds_write_b32 v3, v8 offset:{QL}
s_lshl_b32 s69, s73, 3
v_mov_b32 v4, s69
v_mov_b32 v6, 1
s_waitcnt lgkmcnt(0)
ds_write_b32 v4, v6 offset:{QF}
''')
get_mode()
q_lazy()
A('s_cmp_lg_u32 s3, 8\ns_cbranch_scc1 L_role')
if opt['dyn']:
    lds_wait_ge(CNT + 8, 8, 2)
    A('''
s_lshl_b32 s68, s4, 5
v_mov_b32 v6, s68
v_mov_b32 v5, 1
s_mov_b64 exec, 1
global_atomic_add v5, v6, v5, s[56:57] sc0 sc1
s_waitcnt vmcnt(0)
v_and_b32 v5, 31, v5
v_add_u32 v5, 1, v5
''')
else:
    A('s_add_u32 s68, s79, 1\nv_mov_b32 v5, s68\ns_mov_b64 exec, 1')
A(f'''
ds_write_b32 v1, v5 offset:{ROLE}
s_mov_b64 exec, -1
''')
mark(4)
flush([(1, 1), (2, 2), (4, 6)])
A('s_branch L_role')

A('L_misc2:')
A('s_getreg_b32 s64, hwreg(HW_REG_XCC_ID)')
ws_srds()
NP = opt['nprobe']
if opt['near']:
    A(f'''
v_and_b32 v1, 31, v0
v_lshlrev_b32 v1, 4, v1
v_lshrrev_b32 v2, 5, v0
v_lshl_add_u32 v1, v2, 13, v1
s_lshl_b32 s66, s2, 9
s_and_b32 s68, s66, 0xffffe000
s_add_u32 s66, s66, s68
s_add_u32 s66, s66, {PR}
v_mov_b32 v6, 0
v_mov_b32 v7, 0
''')
    A(f"s_cmp_ge_u32 s79, {opt['npw']}\ns_cbranch_scc1 L_nopr0")
    setexec(((1 << (8 * NP)) - 1) * 0x100000001)
    A('buffer_store_dwordx4 v[4:7], v1, s[24:27], s66 offen sc1')
    setexec(ALL)
    A('L_nopr0:')
mktag()
A(f'''
s_and_b32 s64, s64, 15
v_mov_b32 v4, s30
v_mov_b32 v5, s31
v_mov_b32 v6, s64
v_mov_b32 v7, s64
s_lshl_b32 s68, s4, 9
s_add_u32 s68, s68, {ID}
s_lshl_b32 s69, s79, 4
v_mov_b32 v1, s69
s_mov_b64 exec, 1
buffer_store_dwordx4 v[4:7], v1, s[32:35], s68 offen
s_mov_b64 exec, -1
v_and_b32 v1, 31, v0
v_lshlrev_b32 v1, 4, v1
s_mov_b32 s70, {opt['idtries']}
s_mov_b32 s46, 2
L_idpoll:
s_sleep {opt['idsleep']}
buffer_load_dwordx4 v[8:11], v1, s[32:35], s68 offen sc1
s_waitcnt vmcnt(0)
v_cmp_ne_u64 vcc, s[30:31], v[8:9]
s_nop 0
s_cbranch_vccz L_iddone
s_sub_u32 s70, s70, 1
s_cbranch_scc0 L_idpoll
s_branch L_idset
L_iddone:
v_cmp_ne_u32 vcc, s64, v10
s_nop 0
s_cbranch_vccnz L_idset
s_mov_b32 s46, {2 if opt['forceslow'] else 1}
L_idset:
v_mov_b32 v1, 0
v_mov_b32 v4, s46
ds_write_b32 v1, v4 offset:{INFO}
''')
mark(1)
if opt['near']:
    A(f's_mov_b32 s60, -1\ns_mov_b32 s61, -1\ns_lshl_b32 s67, s4, 9\ns_add_u32 s67, s67, {PV}')
    A(f"s_cmp_ge_u32 s79, {opt['npw']}\ns_cbranch_scc1 L_nopr1\ns_waitcnt lgkmcnt(0)")
    for i in range(NP):
        for c in range(2):
            A(f'''
s_add_u32 s69, s66, {128*i + 8192*c}
s_memtime s[62:63]
s_waitcnt lgkmcnt(0)
s_load_dword s65, s[58:59], s69
s_waitcnt lgkmcnt(0)
s_memtime s[20:21]
s_waitcnt lgkmcnt(0)
s_sub_u32 s62, s20, s62
s_min_u32 s{60+c}, s{60+c}, s62
''')
    if opt['share']:
        A(f'''
s_lshl_b32 s69, s79, 4
v_mov_b32 v1, s69
v_mov_b32 v4, s60
v_mov_b32 v5, s61
v_mov_b32 v6, s30
v_mov_b32 v7, s31
s_mov_b64 exec, 1
buffer_store_dwordx4 v[4:7], v1, s[32:35], s67 offen
s_mov_b64 exec, -1
''')
    A('L_nopr1:')
else:
    A('s_mov_b32 s47, 0')
mark(2)
A('v_and_b32 v1, 7, v0\nv_lshlrev_b32 v1, 4, v1')
def body():
    A(f'ds_read_b128 v[4:7], v1 offset:{SL}')
    A('s_waitcnt lgkmcnt(0)')
    A('v_cmp_eq_u32 vcc, 0, v7')
spin(body, 4)
def combine_stats():
    A(f's_mov_b32 s68, {f32(LOG2E)}')
    A('v_mov_b32 v2, v4')
    allreduce8('v_max_f32', [2])
    A('v_sub_f32 v4, v4, v2\nv_mul_f32 v4, s68, v4\nv_exp_f32 v4, v4\nv_mul_f32 v3, v4, v5')
    allreduce8('v_add_f32', [3])
combine_stats()
A(f'''
s_lshl_b32 s68, s71, 4
s_add_u32 s68, s68, {ST}
v_mov_b32 v4, s30
v_mov_b32 v5, s31
''')
publish([(1, 'buffer_store_dwordx4 v[2:5], v1, @, s68 offen')])
if opt['near']:
    if opt['share']:
        A(f'''
s_cmp_lg_u32 s46, 1
s_cbranch_scc1 L_noshare
v_and_b32 v8, {7 if opt['npw'] <= 8 else 31}, v0
v_lshlrev_b32 v8, 4, v8
buffer_load_dwordx4 v[4:7], v8, s[32:35], s67 offen sc1
s_waitcnt vmcnt(0)
v_cmp_eq_u64 vcc, s[30:31], v[6:7]
v_cndmask_b32 v4, -1, v4, vcc
v_cndmask_b32 v5, -1, v5, vcc
''')
        allreduce16('v_min_u32', [4, 5])
        swapreduce(S16, 'v_min_u32', [4, 5], [6, 7])
        A('''
v_readfirstlane_b32 s62, v4
v_readfirstlane_b32 s63, v5
s_min_u32 s60, s60, s62
s_min_u32 s61, s61, s63
L_noshare:
''')
    A('s_cmp_lt_u32 s61, s60\ns_cselect_b32 s47, 8192, 0')
    if opt['fixnear'] >= 0: A(f"s_mov_b32 s47, {8192*opt['fixnear']}")
    if STAMPS: A('s_mov_b32 s90, s60\ns_mov_b32 s91, s61')
A(f'v_mov_b32 v8, 0\nv_mov_b32 v4, s47\nds_write_b32 v8, v4 offset:{NEAR}')
if opt['prew'] & 2:
    A(f'''
s_not_b32 s20, s30
v_mov_b32 v12, s20
v_mov_b32 v13, s20
v_mov_b32 v14, s20
v_mov_b32 v15, s20
v_lshlrev_b32 v9, 4, v0
s_mul_i32 s74, s71, 768
s_add_u32 s74, s74, {OP}
s_mov_b32 exec_hi, 0xffff
buffer_store_dwordx4 v[12:15], v9, s[32:35], s74 offen
s_mov_b32 exec_hi, -1
''')
A(f's_lshl_b32 s74, s6, 7\ns_add_u32 s74, s74, {ST}')
def body():
    sleep(opt['stsleep'])
    A('buffer_load_dwordx4 v[4:7], v1, s[16:19], s74 offen sc1')
    A('s_waitcnt vmcnt(0)')
    tagcheck([6])
spin2(body, 0, local_only=True)
mark(3)
combine_stats()
A(f'''
v_rcp_f32 v3, v3
v_mov_b32 v4, 1
v_mov_b32 v5, 1
v_mov_b32 v1, 0
ds_write_b128 v1, v[2:5] offset:{GS}
''')
flush([(1, 3), (2, 4), (3, 5), (5, 7)])
lds_wait_ge(CNT + 4, 8, 1)
A(f'''
s_lshl_b32 s68, s4, 9
s_lshl4_add_u32 s68, s79, s68
s_add_u32 s68, s68, {DN1}
v_mov_b32 v6, s30
v_mov_b32 v7, s31
s_mov_b64 exec, 1
buffer_store_dwordx4 v[4:7], v1, s[32:35], s68 offen
s_mov_b64 exec, -1
''')

A('L_role:')
get_role(4)
A('s_cmp_lt_u32 s5, 20\ns_cbranch_scc0 ' + ('L_tiles' if opt['tearly'] else 'L_end'))
BW = 64
XM = 52
def tr_addr(dst, tmp):
    A(f'''
v_lshrrev_b32 v{dst}, 4, v0
v_lshlrev_b32 v{dst}, 10, v{dst}
v_bfe_u32 v{tmp}, v0, 2, 2
v_lshl_add_u32 v{dst}, v{tmp}, 7, v{dst}
v_and_b32 v{tmp}, 3, v0
v_lshl_add_u32 v{dst}, v{tmp}, 3, v{dst}
''')
srd(12, 44, 6144 * 640 * 2)
tr_addr(24, 25)
A(f'''
s_cmp_ge_u32 s5, 10
s_cselect_b32 s76, 1, 0
s_mul_i32 s77, s76, 10
s_sub_u32 s77, s5, s77
s_lshl1_add_u32 s78, s4, s76
s_lshl2_add_u32 s78, s78, s73
v_lshrrev_b32 v2, 3, v0
v_mul_u32_u24 v26, 1280, v2
v_and_b32 v3, 7, v0
v_lshl_add_u32 v26, v3, 4, v26
s_mul_i32 s60, s78, {96*1280}
s_lshl_b32 s69, s77, 7
s_add_u32 s60, s60, s69
s_mul_i32 s61, s73, 12288
v_add_u32 v24, s61, v24
s_add_u32 s61, s61, {WL}
v_mul_u32_u24 v60, 768, v3
v_lshl_add_u32 v60, v2, 4, v60
s_lshr_b32 s68, s78, 1
s_mul_i32 s74, s68, 6144
s_and_b32 s68, s78, 1
s_mul_i32 s68, s68, 384
s_add_u32 s74, s74, s68
s_add_u32 s74, s74, {OP}
v_lshlrev_b32 v62, 2, v0
s_lshl_b32 s68, s73, 8
v_add_u32 v61, s68, v62
s_mul_i32 s75, s4, 5120
s_lshl_b32 s69, s5, 8
s_add_u32 s75, s75, s69
s_and_b32 s69, s75, 0xffffe000
s_add_u32 s75, s75, s69
s_add_u32 s75, s75, {YP}
s_xor_b32 s62, s47, 8192
s_add_u32 s62, s62, s75
s_add_u32 s63, s47, s75
s_mov_b32 s66, 0xff00ff00
s_mov_b32 s67, 0xff00ff00
v_mov_b32 v50, s30
v_mov_b32 v51, s31
v_cndmask_b32 v{XM}, 0, v50, s[66:67]
v_cndmask_b32 v{XM+1}, 0, v51, s[66:67]
v_cndmask_b32 v{XM+2}, v50, 0, s[66:67]
v_cndmask_b32 v{XM+3}, v51, 0, s[66:67]
''')
lds_wait_ge(CNT + 4, 8, 1)
hint_wait(DN1, opt['nA'])
mark(3)
DW = opt['DWO']
for n in range(12):
    if n >= DW: A(f's_waitcnt vmcnt({DW-1})')
    A('s_mov_b32 m0, s61')
    A('buffer_load_dwordx4 v26, s[12:15], s60 offen nt lds')
    if n >= DW: hstamp(10 + n - DW)
    if n < 11:
        A(f's_add_u32 s60, s60, {8*1280}')
        A('s_add_u32 s61, s61, 1024')
AO = 8
def op_loads(srdn):
    for t in range(3):
        A(f'buffer_load_dwordx4 v[{AO+4*t}:{AO+4*t+3}], v60, s[{srdn}:{srdn+3}], s74 offen offset:{128*t} sc1')
E = 3 if opt['opearly'] else 0
if E: op_loads(32)
for t in range(3):
    if opt['hist']:
        for m in range(11 - 4 * t, 7 - 4 * t, -1):
            if m < DW: A(f's_waitcnt vmcnt({m + E})'); hstamp(21 - m)
    A(f's_waitcnt vmcnt({8 - 4 * t + E})')
    for u in range(4):
        r = BW + 4 * (4 * t + u)
        A(f'ds_read_b64_tr_b16 v[{r}:{r+1}], v24 offset:{WL + 4096*t + 32*u}')
        A(f'ds_read_b64_tr_b16 v[{r+2}:{r+3}], v24 offset:{WL + 4096*t + 32*u + 512}')
mark(4)
if not E: lds_wait_ge(CNT, 8, 1)
else: A('s_waitcnt lgkmcnt(0)')
def body():
    op_loads(16)
    A('L_opw0:')
    for t in range(3):
        A(f's_waitcnt vmcnt({2-t})')
        q = AO + 4 * t
        for e in range(4): A(f'v_xor_b32 v{q+e}, v{q+e}, v{XM+e}')
        for u in range(4):
            r = BW + 4 * (4 * t + u)
            c = '0' if t == 0 else f'v[{32+4*u}:{35+4*u}]'
            A(f'v_mfma_f32_16x16x32_bf16 v[{32+4*u}:{35+4*u}], v[{q}:{q+3}], v[{r}:{r+3}], {c}')
        if t == 0:
            A(f'v_or_b32 v2, v{q}, v{q+1}\nv_or_b32 v3, v{q+2}, v{q+3}')
        else:
            A(f'v_or3_b32 v2, v2, v{q}, v{q+1}\nv_or3_b32 v3, v3, v{q+2}, v{q+3}')
    A('v_cndmask_b32 v2, v3, v2, s[66:67]')
    A('v_cmp_ne_u32 vcc, 0, v2')
spin2(body, 0, local_only=True, enter='L_opw0' if E else None)
mark(5)
for u in range(4):
    A(f'v_add_f32 v{4+u}, v{32+4*u}, v{33+4*u}\nv_add_f32 v{8+u}, v{34+4*u}, v{35+4*u}')
for u in range(4): A(f'v_add_f32 v{4+u}, v{4+u}, v{8+u}')
A(f'''
{S32} v4, v6
{S32} v5, v7
v_add_f32 v4, v4, v6
v_add_f32 v5, v5, v7
{S16} v4, v5
v_add_f32 v4, v4, v5
ds_write_b32 v61, v4 offset:{RL}
s_cmp_lg_u32 s3, 8
s_waitcnt lgkmcnt(0)
s_barrier
s_cbranch_scc1 L_end
ds_read_b32 v5, v62 offset:{RL+256}
ds_read_b32 v6, v62 offset:{RL+512}
ds_read_b32 v7, v62 offset:{RL+768}
s_waitcnt lgkmcnt(0)
v_add_f32 v4, v4, v5
v_add_f32 v6, v6, v7
v_add_f32 v48, v4, v6
v_mov_b32_dpp v49, v48 quad_perm:[1,0,3,2] {DPPM}
v_cvt_pk_bf16_f32 v48, v48, v49
v_mov_b32_dpp v49, v48 quad_perm:[2,3,0,1] {DPPM}
''')
setexec(0x1111111111111111)
if opt['near']: A('buffer_store_dwordx4 v[48:51], v62, s[24:27], s62 offen sc1')
A('buffer_store_dwordx4 v[48:51], v62, s[24:27], s63 offen sc1')
mark(6)
A('s_barrier')
if STAMPS:
    A('s_mov_b32 s94, s5\ns_mov_b32 s95, 0')
flush([(3, 11), (4, 12), (5, 13), (6, 14), (7, 15)])
A('s_endpgm')

if opt['tearly']:
    A('L_tiles:')
    srd(12, 48, 640 * 1536 * 2); srd(16, 50, 640 * 1536 * 2)
    A(f'''
s_sub_u32 s75, s5, 20
s_lshr_b32 s78, s75, 2
s_and_b32 s75, s75, 3
s_mul_i32 s72, s75, {160*3072}
s_mul_i32 s68, s73, {8*3072}
s_add_u32 s72, s72, s68
s_mul_i32 s68, s4, 3
s_add_u32 s78, s78, s68
s_lshl_b32 s68, s78, 7
s_add_u32 s72, s72, s68
s_lshl_b32 s61, s73, 10
s_add_u32 s61, s61, {WL}
v_lshrrev_b32 v2, 3, v0
v_and_b32 v3, 7, v0
v_mul_u32_u24 v62, 3072, v2
v_lshl_add_u32 v62, v3, 4, v62
''')
    hint_wait(DN1 if opt['hintB'] == 1 else DN2, opt['nB'])
    if opt['tB'] == 0: lds_wait_ge(CNT + 4, 8, 1)
    elif opt['tB'] == 9: lds_wait_ge(INFO + 4, 1, 1)
    else: lds_wait_ge(CNT, opt['tB'], 1)
    mark(3)
    n = 0
    for t in range(5):
        for m in range(2):
            if n >= opt['DWB']: A(f"s_waitcnt vmcnt({opt['DWB']-1})")
            A(f's_add_u32 m0, s61, {8192*t + 4096*m}')
            A(f'buffer_load_dwordx4 v62, s[{12+4*m}:{15+4*m}], s72 offen nt lds')
            if n >= opt['DWB']: hstamp(30 + n - opt['DWB'])
            n += 1
        if t < 4: A(f's_add_u32 s72, s72, {32*3072}')
    if opt['hist']:
        for m in reversed(range(opt['DWB'])):
            A(f's_waitcnt vmcnt({m})'); hstamp(39 - m)
    A('s_waitcnt vmcnt(0)')
    mark(4)
    A('s_barrier')
    if STAMPS:
        A('s_cmp_lg_u32 s3, 8\ns_cbranch_scc1 L_end')
        flush([(3, 18), (4, 19)])
    A('s_endpgm')

B1R = 64
DR = 16
HRDY = CNT + 12
def yp_loads():
    A('buffer_load_dwordx4 v[96:99], v53, s[24:27], s60 offen sc1')
    A('buffer_load_dwordx4 v[100:103], v59, s[24:27], s60 offen sc1')
def f1_mfma():
    for k in range(8):
        A(f'v_mfma_f32_16x16x32_bf16 v[{DR+4*k}:{DR+3+4*k}], v[8:11], v[{B1R+4*k}:{B1R+4*k+3}], 0')
def f1_select():
    for m in range(2):
        b = DR + 16 * m
        A(f'v_cndmask_b32 v{12+m}, v{b}, v{b+4}, s[62:63]')
        A(f'v_cndmask_b32 v{12+m}, v{12+m}, v{b+8}, s[64:65]')
        A(f'v_cndmask_b32 v{12+m}, v{12+m}, v{b+12}, s[66:67]')
A('L_f1:')
tr_addr(58, 5)
srd(12, 48, 640 * 1536 * 2); srd(16, 50, 640 * 1536 * 2)
A(f"""
s_sub_u32 s75, s5, 20
s_lshr_b32 s78, s75, 2
s_mul_i32 s75, s75, 5
s_add_u32 s75, s75, s3
s_mul_i32 s68, s78, 20
s_sub_u32 s74, s75, s68
s_mul_i32 s68, s4, 3
s_add_u32 s78, s78, s68
s_mul_i32 s68, s4, 60
s_add_u32 s75, s75, s68
s_lshl_b32 s68, s3, 13
v_add_u32 v58, s68, v58
s_add_u32 s73, s68, {WL}
v_lshrrev_b32 v3, 4, v0
v_and_b32 v2, 7, v0
v_lshl_add_u32 v50, v2, 2, v3
v_lshlrev_b32 v50, 1, v50
s_lshl_b32 s68, s74, 6
v_add_u32 v61, s68, v50
s_lshl_b32 s68, s3, 6
v_add_u32 v51, s68, v50
v_lshlrev_b32 v52, 4, v3
v_add_u32 v52, s68, v52
v_lshlrev_b32 v54, 3, v2
v_add_u32 v54, s68, v54
v_lshrrev_b32 v53, 3, v0
v_mul_u32_u24 v62, 3072, v53
v_lshl_add_u32 v62, v2, 4, v62
v_mul_u32_u24 v53, 2560, v53
v_lshl_add_u32 v53, v2, 4, v53
s_lshl_b32 s68, s74, 7
v_add_u32 v53, s68, v53
v_add_u32 v59, {8*2560}, v53
s_add_u32 s60, s47, {YP}
v_lshlrev_b32 v55, 4, v0
v_mov_b32 v57, 0
v_cmp_eq_u32 s[62:63], 1, v3
v_cmp_eq_u32 s[64:65], 2, v3
v_cmp_eq_u32 s[66:67], 3, v3
s_mul_i32 s76, s75, 1280
s_add_u32 s76, s76, {PA}
s_mov_b32 s77, 0xffff0000
v_mov_b32 v14, s30
v_mov_b32 v15, s31
s_mul_i32 s72, s74, {32*3072}
s_lshl_b32 s68, s78, 7
s_add_u32 s72, s72, s68
""")
place(53, 4); place(59, 4)
if opt['prew'] & 4:
    A('''
s_not_b32 s20, s30
v_mov_b32 v8, s20
v_mov_b32 v9, s20
v_mov_b32 v10, s20
v_mov_b32 v11, s20
buffer_store_dwordx4 v[8:11], v55, s[32:35], s76 offen
s_mov_b64 exec, 0xffff
buffer_store_dwordx4 v[8:11], v55, s[32:35], s76 offen offset:1024
s_mov_b64 exec, -1
''')
if opt['tearly']:
    A('global_load_ushort v56, v61, s[36:37]')
    A('s_setprio 3\ns_barrier')
else:
    hint_wait(DN1 if opt['hintB'] == 1 else DN2, opt['nB'])
    lds_wait_ge(INFO + 4, 1, 1)
    for n in range(4):
        for m in range(2):
            A(f's_add_u32 m0, s73, {4096*m + 1024*n}')
            A(f'buffer_load_dwordx4 v62, s[{12+4*m}:{15+4*m}], s72 offen nt lds')
        if n < 3: A(f's_add_u32 s72, s72, {8*3072}')
    A('global_load_ushort v56, v61, s[36:37]')
    A('s_setprio 3')
    if opt['hist']:
        for m in reversed(range(1, 9)):
            A(f's_waitcnt vmcnt({m})'); hstamp(56 - m)
    A('s_waitcnt vmcnt(0)')
yp_loads()
mark(4)
for m in range(2):
    for u in range(4):
        r = B1R + 4 * (4 * m + u)
        A(f'ds_read_b64_tr_b16 v[{r}:{r+1}], v58 offset:{WL + 4096*m + 32*u}')
        A(f'ds_read_b64_tr_b16 v[{r+2}:{r+3}], v58 offset:{WL + 4096*m + 32*u + 512}')
A("""
v_mov_b32 v8, 0x3f803f80
v_mov_b32 v9, 0x3f803f80
v_mov_b32 v10, 0x3f803f80
v_mov_b32 v11, 0x3f803f80
s_waitcnt lgkmcnt(0)
""")
f1_mfma()
f1_select()
A('v_cvt_pk_bf16_f32 v60, v12, v13')
A('s_waitcnt vmcnt(2)\nv_lshlrev_b32 v56, 16, v56')
A(f's_mov_b32 s70, {SPIN}')
A('s_branch L_ypw0')
A('L_yppoll:')
yp_loads()
A('L_ypw0:')
A('s_waitcnt vmcnt(0)')
tagcheck([98, 102])
A("""
s_nop 0
s_cbranch_vccz L_ypok
s_sub_u32 s70, s70, 1
s_cbranch_scc0 L_yppoll
L_ypok:
""")
mark(5)
A(f"""
v_lshlrev_b32 v8, 16, v96
v_lshlrev_b32 v24, 16, v100
v_lshlrev_b32 v10, 16, v97
v_lshlrev_b32 v26, 16, v101
v_and_b32 v9, s77, v96
v_and_b32 v25, s77, v100
v_and_b32 v11, s77, v97
v_and_b32 v27, s77, v101
v_add_f32 v8, v8, v24
v_add_f32 v10, v10, v26
v_add_f32 v9, v9, v25
v_add_f32 v11, v11, v27
{S32} v8, v10
{S32} v9, v11
v_add_f32 v8, v8, v10
v_add_f32 v9, v9, v11
{S16} v8, v9
v_add_f32 v8, v8, v9
v_add_f32_dpp v8, v8, v8 row_ror:8 {DPPM}
v_cvt_pk_bf16_f32 v8, v57, v8
v_add_f32 v8, v8, v56
v_cvt_pk_bf16_f32 v8, v8, v8
ds_write_b16 v51, v8 offset:{HL}
v_and_b32 v48, s77, v8
v_mul_f32 v49, v48, v48
s_waitcnt lgkmcnt(0)
ds_read_b128 v[8:11], v52 offset:{HL}
ds_read_b64 v[4:5], v54 offset:{HL}
""")
allreduce8('v_add_f32', [48, 49])
A('s_waitcnt lgkmcnt(0)')
f1_mfma()
swapreduce(S16, 'v_add_f32', [48, 49], [6, 7])
swapreduce(S32, 'v_add_f32', [48, 49], [6, 7])
A('s_mov_b32 s20, 0xff00\ns_mov_b32 s21, 0\nv_mov_b32 v6, s30\nv_mov_b32 v7, s31')
A('v_cndmask_b32 v4, v4, v48, s[20:21]\nv_cndmask_b32 v5, v5, v49, s[20:21]')
f1_select()
A('v_cvt_pk_bf16_f32 v12, v12, v13\nv_mov_b32 v13, v60')
publish([(None, 'buffer_store_dwordx4 v[12:15], v55, @, s76 offen'),
         (0xffff, 'buffer_store_dwordx4 v[4:7], v55, @, s76 offen offset:1024')])
mark(6)
if STAMPS:
    flush([(6, 27), (5, 11)], True)
    A('s_cmp_lg_u32 s3, 4\ns_cbranch_scc1 L_end')
    flush([(4, 17)])
A('s_endpgm')

A('L_ffn:')
A("""
v_mov_b32 v57, 0
s_mul_i32 s72, s4, 12
s_add_u32 s72, s72, s5
s_cmp_lt_u32 s3, 5
s_cbranch_scc1 L_f2
s_cmp_eq_u32 s3, 5
s_cbranch_scc1 L_hid
s_cmp_ge_u32 s5, 10
s_cbranch_scc1 L_end
""")
A(f"""
s_mul_i32 s72, s4, 10
s_add_u32 s72, s72, s5
v_lshrrev_b32 v2, 1, v0
v_mul_u32_u24 v2, 2560, v2
v_and_b32 v3, 1, v0
v_lshl_add_u32 v96, v3, 4, v2
s_lshl_b32 s68, s72, 5
v_add_u32 v96, s68, v96
v_add_u32 v100, {32*2560}, v96
v_add_u32 v101, {64*2560}, v96
s_add_u32 s10, s47, {FP}
v_lshrrev_b32 v4, 4, v0
v_lshl_add_u32 v97, v3, 2, v4
v_lshlrev_b32 v97, 1, v97
v_lshlrev_b32 v99, 4, v3
v_and_b32 v98, 16, v0
s_lshr_b32 s68, s72, 2
s_mul_i32 s13, s4, 60
s_add_u32 s13, s13, s68
s_mul_i32 s13, s13, 1280
s_and_b32 s68, s72, 3
s_lshl_b32 s68, s68, 5
s_add_u32 s13, s13, s68
s_add_u32 s13, s13, {PA + 1024}
s_lshl_b32 s14, s72, 4
s_mov_b32 s69, 0xffff0000
""")
place(96, 4); place(100, 4); place(101, 4)
FS = 16
srd(64, 54, 1280)
A('v_cmp_lt_u32 s[62:63], 31, v0')
A('s_setprio 3\ns_barrier\ns_barrier')
lds_wait_ge(HRDY, 1, 2)
sleep(opt['fsleep'])
def body():
    A('buffer_load_dwordx4 v[4:7], v99, s[16:19], s13 offen sc1')
    for n, a in enumerate((96, 100, 101)):
        r = FS + 4 * n
        A(f'buffer_load_dwordx4 v[{r}:{r+3}], v{a}, s[24:27], s10 offen sc1')
    A('s_waitcnt vmcnt(0)')
    tagcheck([6, FS + 2, FS + 6, FS + 10])
spin2(body, 0, local_only=True)
mark(5)
for n in range(3):
    A(f'v_lshlrev_b32 v{40+4*n}, 16, v{FS+4*n}')
    A(f'v_and_b32 v{41+4*n}, s69, v{FS+4*n}')
    A(f'v_lshlrev_b32 v{42+4*n}, 16, v{FS+4*n+1}')
    A(f'v_and_b32 v{43+4*n}, s69, v{FS+4*n+1}')
for e in range(4): A(f'v_add_f32 v{8+e}, v{40+e}, v{44+e}')
for e in range(4): A(f'v_add_f32 v{8+e}, v{8+e}, v{48+e}')
A(f"""
v_cndmask_b32 v58, v4, v5, s[62:63]
{S32} v8, v10
{S32} v9, v11
v_add_f32 v8, v8, v10
v_add_f32 v9, v9, v11
v_lshrrev_b32 v58, v98, v58
v_lshlrev_b32 v58, 16, v58
{S16} v8, v9
v_add_f32 v8, v8, v9
v_add_f32_dpp v8, v8, v8 row_ror:8 {DPPM}
v_add_f32_dpp v8, v8, v8 row_ror:4 {DPPM}
v_add_f32_dpp v8, v8, v8 quad_perm:[2,3,0,1] {DPPM}
v_cvt_pk_bf16_f32 v8, v57, v8
v_add_f32 v8, v8, v58
v_cvt_pk_bf16_f32 v8, v8, v8
""")
setexec(0x0003000300030003)
A(f"""
buffer_store_short v8, v97, s[64:67], s14 offen
s_cmp_lg_u32 s72, 0
s_cbranch_scc1 L_fin_exit
s_mov_b64 exec, 1
v_mov_b32 v4, s30
v_mov_b32 v5, s31
s_mov_b32 s68, {EP}
buffer_store_dwordx2 v[4:5], v57, s[24:27], s68 offen
L_fin_exit:
""")
if opt['dbg']:
    A(f'''
s_cmp_lg_u32 s72, 0
s_cbranch_scc1 L_end
s_memrealtime s[82:83]
s_waitcnt lgkmcnt(0)
s_sub_u32 s84, s82, s80
s_sub_u32 s84, s84, 1500
s_mul_i32 s84, s84, {opt['dbg']}
s_min_u32 s84, s84, 20000
L_dbgspin:
s_memrealtime s[86:87]
s_waitcnt lgkmcnt(0)
s_sub_u32 s86, s86, s82
s_cmp_lt_u32 s86, s84
s_cbranch_scc1 L_dbgspin
''')
if STAMPS:
    A('s_waitcnt vmcnt(0)')
    mark(6)
    A(f's_sub_u32 s94, {SPIN}, s70\ns_mov_b32 s95, 0')
    flush([(5, 25), (6, 26), (7, 8)])
A('s_endpgm')

A('L_hid:')
A(f"""
v_lshrrev_b32 v4, 5, v0
v_and_b32 v2, 7, v0
v_lshl_add_u32 v62, v2, 1, v4
v_lshlrev_b32 v2, 4, v62
v_lshlrev_b32 v62, 1, v62
v_bfe_u32 v3, v0, 3, 2
v_mul_u32_u24 v60, 1280, v3
v_add_u32 v60, v60, v2
v_and_b32 v3, 31, v0
v_mul_u32_u24 v61, 1280, v3
s_lshr_b32 s68, s72, 2
s_mul_i32 s65, s68, {20*1280}
s_add_u32 s65, s65, {PA}
s_and_b32 s73, s72, 3
s_lshl_b32 s73, s73, 8
s_add_u32 s60, s65, s73
s_add_u32 s61, s60, {4*1280}
s_add_u32 s62, s60, {8*1280}
s_add_u32 s63, s60, {12*1280}
s_add_u32 s64, s60, {16*1280}
v_mov_b32 v36, 0
v_mov_b32 v37, 0
v_mov_b32 v38, s30
v_mov_b32 v39, s31
v_mov_b32 v59, 1
s_mov_b32 s69, 0xffff0000
s_setprio 3
s_barrier
s_barrier
""")
def body():
    setexec(0x000fffff000fffff)
    A('buffer_load_dwordx4 v[36:39], v61, s[16:19], s65 offen offset:1152 sc1')
    setexec(ALL)
    for n in range(5):
        A(f'buffer_load_dwordx4 v[{16+4*n}:{19+4*n}], v60, s[16:19], s{60+n} offen sc1')
    A('s_waitcnt vmcnt(0)')
    tagcheck([38, 18, 22, 26, 30, 34])
spin2(body, opt['hsleep'], local_only=True)
mark(5)
def unp(d, n):
    r = 16 + 4 * n
    A(f'v_lshlrev_b32 v{d}, 16, v{r}\nv_and_b32 v{d+1}, s69, v{r}\nv_lshlrev_b32 v{d+2}, 16, v{r+1}\nv_and_b32 v{d+3}, s69, v{r+1}')
pats = ('quad_perm:[1,0,3,2]', 'quad_perm:[2,3,0,1]', 'row_half_mirror', 'row_mirror')
def st_step(i):
    for r in (36, 37): A(f'v_add_f32_dpp v{r}, v{r}, v{r} {pats[i]} {DPPM}')
st_step(0); unp(8, 0); st_step(1); unp(40, 1); st_step(2); unp(44, 2); st_step(3); unp(48, 3)
A('v_mov_b32 v22, v36\nv_mov_b32 v23, v37')
unp(52, 4)
A(f'{S16} v36, v22\n{S16} v37, v23')
for e in range(4): A(f'v_add_f32 v{8+e}, v{8+e}, v{40+e}')
A('v_add_f32 v36, v36, v22\nv_add_f32 v37, v37, v23')
for e in range(4): A(f'v_add_f32 v{44+e}, v{44+e}, v{48+e}')
A(f'v_mul_f32 v20, {f32(1.0/640)}, v36\nv_mul_f32 v21, {f32(1.0/640)}, v37')
for e in range(4): A(f'v_add_f32 v{8+e}, v{8+e}, v{52+e}')
A('v_fma_f32 v21, -v20, v20, v21\nv_max_f32 v21, 0, v21')
for e in range(4): A(f'v_add_f32 v{8+e}, v{8+e}, v{44+e}')
A(f"""
v_cvt_pk_bf16_f32 v20, v57, v20
v_cvt_pk_bf16_f32 v21, v57, v21
v_fma_f32 v8, -v20, v10, v8
v_fma_f32 v9, -v20, v11, v9
v_add_f32 v21, {f32(1e-5)}, v21
v_cvt_pk_bf16_f32 v21, v57, v21
v_add_f32_dpp v8, v8, v8 row_ror:8 {DPPM}
v_add_f32_dpp v9, v9, v9 row_ror:8 {DPPM}
v_sqrt_f32 v21, v21
v_mov_b32 v10, v8
v_mov_b32 v11, v9
v_cvt_pk_bf16_f32 v21, v57, v21
{S16} v8, v10
v_rcp_f32 v21, v21
{S16} v9, v11
v_add_f32 v8, v8, v10
v_add_f32 v9, v9, v11
v_mul_f32 v8, v8, v21
v_mul_f32 v9, v9, v21
v_cvt_pk_bf16_f32 v8, v57, v8
v_cvt_pk_bf16_f32 v9, v57, v9
v_mul_f32 v12, {f32(-LOG2E)}, v8
v_exp_f32 v12, v12
v_add_f32 v12, 1.0, v12
v_rcp_f32 v12, v12
v_mul_f32 v8, v8, v12
v_cvt_pk_bf16_f32 v8, v57, v8
v_mul_f32 v8, v8, v9
v_cvt_pk_bf16_f32 v8, v8, v8
ds_write_b16 v62, v8 offset:{HID}
ds_write_b32 v57, v59 offset:{HRDY}
""")
flush([(5, 24)])
A('s_endpgm')

A('L_f2:')
W2R = 64
srd(8, 52, 1536 * 640 * 2)
A(f"""
s_lshl_b32 s68, s3, 8
v_lshlrev_b32 v58, 2, v0
v_add_u32 v58, s68, v58
v_lshlrev_b32 v116, 1, v58
s_mul_i32 s68, s72, 2560
v_add_u32 v116, s68, v116
s_xor_b32 s78, s47, 8192
s_add_u32 s78, s78, {FP}
s_add_u32 s77, s47, {FP}
s_mov_b32 s60, 0x05040100
s_mov_b32 s61, 0x07060302
s_mul_i32 s62, s72, 20480
""")
place(116, 4)
A('s_setprio 3\ns_barrier\ns_barrier')
for k in range(16):
    A(f'buffer_load_dword v{W2R+k}, v58, s[8:11], s62 offen offset:{1280*(k%3)} nt')
    if k % 3 == 2: A('s_add_u32 s62, s62, 3840')
if opt['hist']:
    for m in (12, 8, 4, 0):
        A(f's_waitcnt vmcnt({m})'); hstamp(51 - m // 4)
A('s_waitcnt vmcnt(0)')
mark(4)
for kp in range(8):
    A(f'v_perm_b32 v{80+kp}, v{W2R+2*kp+1}, v{W2R+2*kp}, s60')
    A(f'v_perm_b32 v{88+kp}, v{W2R+2*kp+1}, v{W2R+2*kp}, s61')
A("""
v_mov_b32 v16, 0
v_mov_b32 v17, 0
v_mov_b32 v6, s30
v_mov_b32 v7, s31
""")
def body():
    A(f'ds_read_b32 v4, v57 offset:{HRDY}')
    A(f'ds_read_b128 v[8:11], v57 offset:{HID}')
    A(f'ds_read_b128 v[12:15], v57 offset:{HID+16}')
    A('s_waitcnt lgkmcnt(0)')
    A('v_cmp_eq_u32 vcc, 0, v4')
spin(body)
for kp in range(8):
    A(f'v_dot2c_f32_bf16 v16, v{8+kp}, v{80+kp}')
    A(f'v_dot2c_f32_bf16 v17, v{8+kp}, v{88+kp}')
A(f"""
v_cvt_pk_bf16_f32 v4, v16, v17
v_mov_b32_dpp v5, v4 quad_perm:[1,0,3,2] {DPPM}
""")
setexec(0x5555555555555555)
if opt['near']: A('buffer_store_dwordx4 v[4:7], v116, s[24:27], s78 offen sc1')
A('buffer_store_dwordx4 v[4:7], v116, s[24:27], s77 offen sc1')
mark(6)
if STAMPS:
    flush([(6, 27)], True)
    A('s_cmp_lg_u32 s3, 0\ns_cbranch_scc1 L_end')
    flush([(4, 22)])
A('L_end:')
A('s_endpgm')
for blk in outline: A(blk)
if opt['hist']:
    A.lines = [('s_branch L_hexit' if l.strip() == 's_endpgm' else l) for l in A.lines]
    i = A.lines.index('s_cbranch_scc1 L_end'); A.lines[i] = 's_cbranch_scc1 L_realend'
    A(f'''
L_hexit:
s_mov_b64 exec, -1
s_memrealtime s[96:97]
s_getreg_b32 s64, hwreg(HW_REG_XCC_ID)
s_waitcnt lgkmcnt(0)
v_writelane_b32 v159, s96, 61
v_writelane_b32 v159, s94, 62
v_writelane_b32 v159, s64, 63
s_mul_i32 s64, s2, 12
s_add_u32 s64, s64, s3
s_lshl_b32 s64, s64, 8
s_add_u32 s64, s64, {HB}
v_lshlrev_b32 v1, 2, v0
s_nop 4
buffer_store_dword v159, v1, s[24:27], s64 offen
L_realend:
s_endpgm
''')
A('L_codeend:')

A.raw('.section .rodata,"a"')
A.raw('.p2align 6')
A.raw(f'.amdhsa_kernel {NAME}_kernel')
A.raw('  .amdhsa_next_free_vgpr 168')
A.raw('  .amdhsa_next_free_sgpr 100')
A.raw('  .amdhsa_accum_offset 168')
A.raw('  .amdhsa_group_segment_fixed_size 0')
A.raw('  .amdhsa_kernarg_size 96')
A.raw('  .amdhsa_user_sgpr_count 2')
A.raw('  .amdhsa_user_sgpr_kernarg_segment_ptr 1')
A.raw('  .amdhsa_system_sgpr_workgroup_id_x 1')
A.raw('.end_amdhsa_kernel')
open(sys.argv[1], 'w').write(A.finalize())
```

```python
import sys, struct, os
from asmlib import Asm

NAME = "sequential_preLN__sliding_block_cached__glu_gated_swiglu__decode"
opt = dict(D=3, stamps=0, hist=0, spin=200007, Vpre=3, qsleep=20, qdelay=40, stsleep=16, idtries=12, idsleep=16,
           t1=6, t2=0, DWO=8, nA=0, nB=0, hintB=2, fsleep=17, forceslow=0, trap=0, dyn=1, near=1, dbg=0, hsleep=0,
           cpf=3, nprobe=2, fixnear=-1, share=1, tearly=1, DWB=10, opearly=0, tB=0, prew=0, npw=4, abl=0, lnt=1, prer=2, ynt=0, hwarm=1, fnt=1, pubwait=0, opdiag=0, nb1=8, ope=2)
for a in sys.argv[2:]:
    k, v = a.split('=')
    assert k in opt, k
    opt[k] = int(v)
D = opt['D']; STAMPS = opt['stamps']; SPIN = opt['spin']

LF = ' sc1 nt' if opt['lnt'] else ' sc1'
def f32(x): return '0x%08x' % struct.unpack('<I', struct.pack('<f', x))[0]
LOG2E = 1.4426950408889634

YP = 0x0
PR = 0x20000
FP = 0x80000
EP = 0xFF000
ST = 0x101000
ID = 0x102000
DN1 = 0x103000
DN2 = 0x104000
PV = 0x105000
OP = 0x110000
QP = 0x140000
SP = 0x200000
PA = 0x220000
PS = 0x2A0000
PH = 0x2A8000
HB = 0x300000
WSN = 0x400000
FAST = 0x400000
QL = 0
QF = 384
SL = 512
CNT = 640
INFO = 656
GS = 672
HID = 896
OL = 1024
RL = 7168
HL = 8192
WL = 8704
LDS = WL + 49152

A = Asm()
A.raw(open(os.path.join(os.path.dirname(os.path.abspath(__file__)), '..', NAME + '.s.ref')).read().split('; Override launch')[0].rstrip())
A.raw(f"; @launch grid=(256,1,1) block=(768,1,1) lds={LDS}")
A.raw('''; Generated by gen/gen11.py (hand-written generator).  One persistent launch, 256 workgroups x 12 waves, 1 per CU.
;  waves 0..7 : stream this workgroup's 512 keys of K then V (nt loads, depth-limited), QK / PV with v_dot2c bf16,
;  s_sleep is used only as back-off inside / ahead of polling loops.''')
A.raw('.amdgcn_target "amdgcn-amd-amdhsa--gfx950"')
A.raw('.text')
A.raw(f'.globl {NAME}_kernel')
A.raw('.p2align 8')
A.raw(f'.type {NAME}_kernel,@function')
A.raw(f'{NAME}_kernel:')

def stamp(idx, plus_wave=False):
    if not STAMPS: return
    A('s_memrealtime s[96:97]')
    A('s_lshl_b32 s98, s2, 8')
    A(f's_add_u32 s98, s98, {SP + idx*8}')
    if plus_wave: A('s_lshl3_add_u32 s98, s3, s98')
    A('s_mov_b64 s[94:95], exec')
    A('s_mov_b64 exec, 1')
    A('s_waitcnt lgkmcnt(0)')
    A('v_mov_b32 v120, s96\nv_mov_b32 v121, s97\nv_mov_b32 v122, 0')
    A('buffer_store_dwordx2 v[120:121], v122, s[24:27], s98 offen')
    A('s_mov_b64 exec, s[94:95]')
def mark(i):
    if STAMPS: A(f's_memrealtime s[{80+2*i}:{81+2*i}]')
def flush(pairs, plus_wave=False):
    if not STAMPS: return
    A('s_lshl_b32 s98, s2, 8')
    A(f's_add_u32 s98, s98, {SP}')
    if plus_wave: A('s_lshl3_add_u32 s98, s3, s98')
    A('s_mov_b64 exec, 1\ns_waitcnt lgkmcnt(0)\nv_mov_b32 v122, 0')
    for i, slot in pairs:
        A(f'v_mov_b32 v120, s{80+2*i}\nv_mov_b32 v121, s{81+2*i}')
        A(f'buffer_store_dwordx2 v[120:121], v122, s[24:27], s98 offen offset:{8*slot}')
        A('s_nop 1')
    A('s_mov_b64 exec, -1')
def hstamp(ks):
    if not opt['hist'] or opt['sdiag']: return
    if isinstance(ks, int): ks = [ks]
    ks = list(ks)
    if not ks: return
    A('s_memrealtime s[96:97]\ns_waitcnt lgkmcnt(0)')
    for k in ks: A(f'v_writelane_b32 v159, s96, {k}')

def sd(i):
    if opt['sdiag']: A(f's_memrealtime s[{80+2*i}:{81+2*i}]')
def srd(d, ptr, nbytes):
    A(f's_mov_b32 s{d}, s{ptr}')
    A(f's_mov_b32 s{d+1}, s{ptr+1}')
    A(f's_mov_b32 s{d+2}, {nbytes}')
    A(f's_mov_b32 s{d+3}, 0x20000')
def ws_srds():
    srd(24, 58, WSN)
    A(f's_add_u32 s32, s58, {FAST}')
    A('s_addc_u32 s33, s59, 0')
    A(f's_mov_b32 s34, {WSN}')
    A('s_mov_b32 s35, 0x20000')
    A('s_lshl3_add_u32 s71, s6, s7')
    A('s_lshr_b32 s79, s2, 3')

ALL = (1 << 64) - 1
def setexec(mask):
    if mask == ALL: A('s_mov_b64 exec, -1'); return
    A(f's_mov_b32 exec_lo, 0x{mask & 0xffffffff:x}')
    A(f's_mov_b32 exec_hi, 0x{mask >> 32:x}')

DPPM = 'row_mask:0xf bank_mask:0xf'
def allreduce8(op, regs):
    for pat in ('quad_perm:[1,0,3,2]', 'quad_perm:[2,3,0,1]', 'row_half_mirror'):
        for r in regs: A(f'{op}_dpp v{r}, v{r}, v{r} {pat} {DPPM}')
def allreduce16(op, regs):
    allreduce8(op, regs)
    for r in regs: A(f'{op}_dpp v{r}, v{r}, v{r} row_mirror {DPPM}')
def swapreduce(sw, op, regs, tmps):
    for r, t in zip(regs, tmps): A(f'v_mov_b32 v{t}, v{r}')
    for r, t in zip(regs, tmps): A(f'{sw} v{r}, v{t}')
    for r, t in zip(regs, tmps): A(f'{op} v{r}, v{r}, v{t}')
S16 = 'v_permlane16_swap_b32'; S32 = 'v_permlane32_swap_b32'
def allreduce_rows(op, regs, tmps):
    swapreduce(S16, op, regs, tmps); swapreduce(S32, op, regs, tmps)
def allreduce64(op, regs, tmps):
    allreduce16(op, regs); allreduce_rows(op, regs, tmps)
def bf16r(d, s):
    A(f'v_cvt_pk_bf16_f32 v{d}, v{s}, v{s}')
    A(f'v_lshlrev_b32 v{d}, 16, v{d}')
def mktag():
    A('''
s_waitcnt lgkmcnt(0)
s_mul_i32 s30, s28, 0x2c9277b5
s_add_u32 s30, s30, 0xac564b05
s_mul_i32 s31, s29, 0x0019660d
s_add_u32 s31, s31, 0x3c6ef35f
''')
def place(v, t):
    A(f'v_and_b32 v{t}, 0xffffe000, v{v}\nv_add_u32 v{v}, v{v}, v{t}')
lbl = [0]
def newlabel(p):
    lbl[0] += 1
    return f'L_{p}_{lbl[0]}'

def tagcheck(pairs):
    A(f'v_cmp_ne_u64 vcc, s[30:31], v[{pairs[0]}:{pairs[0]+1}]')
    tm = [(20, 21), (22, 23)]
    pend = []
    for i, p in enumerate(pairs[1:]):
        t = tm[i % 2]
        if len(pend) == 2:
            q = pend.pop(0); A(f's_or_b64 vcc, vcc, s[{q[0]}:{q[1]}]')
        A(f'v_cmp_ne_u64 s[{t[0]}:{t[1]}], s[30:31], v[{p}:{p+1}]')
        pend.append(t)
    for q in pend: A(f's_or_b64 vcc, vcc, s[{q[0]}:{q[1]}]')

def sleep(n):
    while n > 0:
        A(f's_sleep {min(n, 127)}'); n -= 127
def spin(body, slp=0, retry=None, enter=None):
    top = newlabel('spin'); done = newlabel('sdone')
    A(f's_mov_b32 s70, {SPIN}')
    if enter: A(f's_branch {enter}')
    A(f'{top}:')
    body()
    A('s_nop 0')
    A(f's_cbranch_vccz {done}')
    sleep(slp)
    if retry: retry()
    A('s_sub_u32 s70, s70, 1')
    A(f's_cbranch_scc0 {top}')
    if opt['trap']:
        A(f's_lshl_b32 s99, s2, 8\ns_or_b32 s99, s99, s3\ns_lshl_b32 s99, s99, 8\ns_or_b32 s99, s99, {lbl[0] & 255}')
        A(f'v_mov_b32 v166, {HB - 256 + 4 * (lbl[0] % 64)}\nv_mov_b32 v167, s99')
        A('global_store_dword v166, v167, s[58:59]')
    A(f'{done}:')
def spin2(body, slp=0, retry=None, local_only=False, enter=None):
    A(f's_mov_b32 s16, s32\ns_mov_b32 s17, s33\ns_mov_b32 s18, {WSN}\ns_mov_b32 s19, 0x20000')
    def rt():
        if retry: retry()
        A('s_and_b32 s99, s70, 7')
        if local_only:
            A('s_cmp_eq_u32 s46, 1')
            A('s_cselect_b32 s99, 1, s99')
            A('s_cmp_lg_u32 s99, 0')
        A('s_cselect_b32 s16, s32, s24')
        A('s_cselect_b32 s17, s33, s25')
    spin(body, slp, rt, enter)

def lds_wait_ge(off, n, slp, dst=4, adr=1):
    A(f'v_mov_b32 v{adr}, 0')
    def body():
        A(f'ds_read_b32 v{dst}, v{adr} offset:{off}')
        A('s_waitcnt lgkmcnt(0)')
        A(f'v_cmp_gt_u32 vcc, {n}, v{dst}')
    spin(body, slp)
def get_mode(dst=4, adr=1):
    lds_wait_ge(INFO, 1, 2, dst, adr)
    A(f'v_readfirstlane_b32 s46, v{dst}')
def get_role(slp):
    A('v_mov_b32 v1, 0')
    def body():
        A(f'ds_read_b64 v[4:5], v1 offset:{INFO + 8}')
        A('s_waitcnt lgkmcnt(0)')
        A('v_cmp_eq_u32 vcc, 0, v5')
    spin(body, slp)
    A('v_readfirstlane_b32 s5, v5\nv_readfirstlane_b32 s47, v4\ns_sub_u32 s5, s5, 1')
ROLE = INFO + 12; NEAR = INFO + 8

outline = []
def publish(stores):
    def emit(srdn, fl, AA):
        cur = ALL
        for m, line in stores:
            m = ALL if m is None else m
            if m != cur:
                if m == ALL: AA('s_mov_b64 exec, -1')
                elif isinstance(m, str): AA(f's_mov_b32 exec_lo, {m}\ns_mov_b32 exec_hi, 0')
                else: AA(f's_mov_b32 exec_lo, 0x{m & 0xffffffff:x}\ns_mov_b32 exec_hi, 0x{m >> 32:x}')
                cur = m
            AA(line.replace('@', f's[{srdn}:{srdn+3}]') + fl)
        if cur != ALL: AA('s_mov_b64 exec, -1')
    if not opt['forceslow']: emit(32, '', A)
    slow = newlabel('slow'); back = newlabel('back')
    A('s_cmp_lg_u32 s46, 1')
    A(f's_cbranch_scc1 {slow}')
    A(f'{back}:')
    blk = [f'{slow}:']
    emit(24, ' sc1', lambda t: blk.append(t))
    blk.append('s_nop 1')
    blk.append(f's_branch {back}')
    outline.append('\n'.join(blk))
def hint_wait(base, n):
    if not n: return
    lp = newlabel('gpoll'); ld = newlabel('gdone')
    A(f"""
v_and_b32 v1, 31, v0
v_lshlrev_b32 v1, 4, v1
s_lshl_b32 s68, s4, 9
s_add_u32 s68, s68, {base}
s_mov_b32 s70, 40
s_cmp_lg_u32 s46, 1
s_cbranch_scc1 {ld}
{lp}:
buffer_load_dwordx4 v[4:7], v1, s[32:35], s68 offen{LF}
s_waitcnt vmcnt(0)
v_cmp_eq_u64 vcc, s[30:31], v[6:7]
s_nop 0
s_bcnt1_i32_b32 s69, vcc_lo
s_cmp_ge_u32 s69, {n}
s_cbranch_scc1 {ld}
s_sleep 2
s_sub_u32 s70, s70, 1
s_cbranch_scc0 {lp}
{ld}:
""")

A("""
s_cmp_ge_u32 s2, 256
s_cbranch_scc1 L_end
s_load_dwordx2 s[8:9], s[0:1], 8
s_load_dwordx16 s[36:51], s[0:1], 0
s_load_dwordx8 s[52:59], s[0:1], 64
""")
mark(0)
if opt['dbg']: A('s_memrealtime s[80:81]')
if opt['hist']: A('s_memrealtime s[94:95]\nv_mov_b32 v159, 0')
A("""
v_lshrrev_b32 v1, 6, v0
v_and_b32 v0, 63, v0
v_readfirstlane_b32 s3, v1
s_and_b32 s4, s2, 7
s_lshr_b32 s79, s2, 6
s_lshl2_add_u32 s6, s4, s79
s_bfe_u32 s7, s2, 0x30003
""")
if opt['cpf'] >= 3:
    A(f'''
s_cmp_lg_u32 s3, 0
s_cbranch_scc1 L_nocpf
s_getpc_b64 s[20:21]
L_pc0:
''')
    if opt['cpf'] == 3:
        A(f'''
s_mul_i32 s68, s7, {2560 if (STAMPS or opt['hist']) else 2048}
v_min_u32 v8, {19 if (STAMPS or opt['hist']) else 15}, v0
v_lshl_add_u32 v8, v8, 7, s68
v_min_u32 v8, L_codeend-L_pc0-4, v8
global_load_dword v10, v8, s[20:21]
''')
    else:
        A(f'''
v_lshlrev_b32 v8, 7, v0
v_add_u32 v9, 8192, v8
v_min_u32 v9, L_codeend-L_pc0-4, v9
global_load_dword v10, v8, s[20:21]
global_load_dword v11, v9, s[20:21]
''')
    A('L_nocpf:')
A("""
v_lshrrev_b32 v2, 3, v0
v_and_b32 v3, 7, v0
v_lshlrev_b32 v3, 4, v3
s_mov_b32 s11, 0x20000
s_cmp_gt_u32 s3, 7
s_cbranch_scc1 L_helper
""")
G = 8; GST = 3072 * 64
GOFF = [60, 61, 62, 63, 64, 65, 66, 67]
A("""
s_lshl3_add_u32 s68, s7, s3
s_mul_i32 s60, s6, 4096
s_add_u32 s60, s60, s68
s_addk_i32 s60, 3584
s_mul_i32 s60, s60, 3072
v_mul_u32_u24 v2, 384, v2
v_add_u32 v1, v2, v3
s_mov_b32 s10, 402653184
s_waitcnt lgkmcnt(0)
""")
QR = 4; KR = 16
SC = 168 - G
VR = KR + 12 * G
nV1 = min((SC - VR) // 12, G) - (1 if opt['hist'] else 0)
ACC = KR + 12 * (G - 2)
T = ACC
st = dict(n=0); hs = dict(done=0)
def hupto(n):
    hstamp(range(hs['done'], n)); hs['done'] = max(hs['done'], n)
def vreg(g): return VR + 12 * g if g < nV1 else KR + 12 * (g - nV1)
ADP = opt['deep'] or opt['shal']
DC = D + 1 if opt['deep'] else D
def issue_load(kind, g, j, depth):
    if depth and st['n'] >= depth:
        if opt['shal'] and st['n'] > 4 and st['n'] % opt['shper'] == 0:
            l1 = newlabel('sh'); A(f's_bitcmp0_b32 s77, 1\ns_cbranch_scc1 {l1}\ns_waitcnt vmcnt({depth-2})\n{l1}:')
        if opt['deep'] and st['n'] > 3:
            l1 = newlabel('dp'); A(f's_bitcmp1_b32 s77, 0\ns_cbranch_scc1 {l1}\ns_waitcnt vmcnt({depth-1})\n{l1}:\ns_waitcnt vmcnt({depth})')
        else: A(f's_waitcnt vmcnt({depth-1})')
    r = (KR + 12 * g + 4 * j) if kind == 'K' else vreg(g) + 4 * j
    s = 8 if kind == 'K' else 12
    A(f'buffer_load_dwordx4 v[{r}:{r+3}], v1, s[{s}:{s+3}], s{GOFF[g]} offen offset:{128*j} nt')
    if depth and st['n'] >= depth: hupto(st['n'] - DC + 1)
    st['n'] += 1
for j in range(3): issue_load('K', 0, j, D)
sd(2)
A('s_barrier')
A('s_branch L_stream')

A('L_helper:')
sd(1)
A(f'''
v_lshlrev_b32 v1, 3, v0
v_mov_b32 v4, 0
v_mov_b32 v5, 0
ds_write_b64 v1, v[4:5] offset:{QF}
s_sub_u32 s73, s3, 8
s_cmp_eq_u32 s3, 11
s_cbranch_scc1 L_misc
''')
A('''
s_mul_i32 s68, s7, 80
v_add_u32 v7, s68, v2
v_lshlrev_b32 v7, 1, v7
v_mul_u32_u24 v2, 12288, v2
v_add_u32 v2, v2, v3
s_mul_i32 s68, s68, 12288
s_mul_i32 s69, s6, 384
s_add_u32 s68, s68, s69
s_lshl_b32 s69, s73, 7
s_add_u32 s68, s68, s69
v_lshlrev_b32 v1, 2, v0
s_setprio 3
s_waitcnt lgkmcnt(0)
s_barrier
''')
sd(2)
XS = 64; XU = 70; XR = 8; WQ = 24; QA = 80
A(f's_mov_b32 s8, s42\ns_mov_b32 s9, s43\ns_mov_b32 s10, {640 * 6144 * 2}')
for i in range(5): A(f'global_load_dword v{XS+i}, v1, s[36:37] offset:{256*i}')
for r in range(10): A(f'global_load_ushort v{XR+r}, v7, s[36:37] offset:{16*r}')
sd(3)
for r in range(10):
    A(f'buffer_load_dwordx4 v[{WQ+4*r}:{WQ+4*r+3}], v2, s[8:11], s68 offen nt')
    if r < 9: A('s_add_u32 s68, s68, 98304')
A(f's_load_dwordx2 s[28:29], s[58:59], {EP}')
sd(4)
A('s_branch L_q2')
A('L_misc:')
if opt['cpf'] in (1, 2):
    A(f'''
s_getpc_b64 s[20:21]
L_pc0:
''')
    if opt['cpf'] == 1:
        A(f'''
s_lshr_b32 s68, s2, 3
s_lshl_b32 s68, s68, 9
v_lshlrev_b32 v8, 7, v0
v_and_b32 v8, 0x1ff, v8
v_add_u32 v8, s68, v8
v_min_u32 v8, L_codeend-L_pc0-4, v8
global_load_dword v10, v8, s[20:21]
''')
    else:
        A(f'''
v_lshlrev_b32 v8, 7, v0
v_add_u32 v9, 8192, v8
v_min_u32 v9, L_codeend-L_pc0-4, v9
global_load_dword v10, v8, s[20:21]
global_load_dword v11, v9, s[20:21]
''')
A(f'''
s_setprio 3
s_waitcnt lgkmcnt(0)
s_barrier
s_load_dwordx2 s[28:29], s[58:59], {EP}
s_branch L_misc2
''')

A('L_stream:')
sd(3)
for g in range(1, G):
    A(f's_add_u32 s{GOFF[g]}, s{GOFF[g-1]}, {GST}')
    for j in range(3):
        issue_load('K', g, j, D)
        if g == 1 and j == 0: sd(4)
        if g == 2 and j == 0: sd(5)
        if g == 1 and j == 0:
            A(f's_load_dwordx2 s[28:29], s[58:59], {EP}')
            ws_srds(); srd(12, 40, 402653184)
            if ADP:
                A(f'''s_getreg_b32 s76, hwreg(HW_REG_XCC_ID)
s_and_b32 s76, s76, 7
s_lshr_b32 s77, {opt['deep']}, s76
s_and_b32 s77, s77, 1
s_lshr_b32 s76, {opt['shal']}, s76
s_and_b32 s76, s76, 1
s_lshl1_add_u32 s77, s76, s77''')
mark(1)
nv = 0; NV = 3 * G
for n in range(min(opt['Vpre'], 3 * nV1)):
    issue_load('V', nv // 3, nv % 3, D); nv += 1
mktag()
A('v_and_b32 v2, 3, v0\nv_min_u32 v2, 2, v2\nv_lshlrev_b32 v2, 3, v2')
def body():
    A(f'ds_read_b32 v{QR}, v2 offset:{QF}')
    A('s_waitcnt lgkmcnt(0)')
    A(f'v_cmp_eq_u32 vcc, 0, v{QR}')
spin(body, 1)
A(f'''
ds_read_b128 v[{QR}:{QR+3}], v3 offset:{QL}
ds_read_b128 v[{QR+4}:{QR+7}], v3 offset:{QL+128}
ds_read_b128 v[{QR+8}:{QR+11}], v3 offset:{QL+256}
''')
for g in range(G): A(f'v_mov_b32 v{SC+g}, 0')
A(f's_waitcnt vmcnt({nv}) lgkmcnt(0)')
hupto(3 * G)
for gs in (range(4), range(4, G)):
    for i in range(12):
        for g in gs:
            A(f'v_dot2c_f32_bf16 v{SC+g}, v{KR+12*g+i}, v{QR+i}')
allreduce8('v_add_f32', [SC + g for g in range(G)])
A(f's_mov_b32 s68, {f32(192 ** -0.5)}')
A('v_mov_b32 v2, 0')
for g in range(G): A(f'v_cvt_pk_bf16_f32 v{SC+g}, v2, v{SC+g}')
for g in range(G): A(f'v_mul_f32 v{SC+g}, s68, v{SC+g}')
for g in range(G): A(f'v_cvt_pk_bf16_f32 v{SC+g}, v2, v{SC+g}')
A(f'v_max_f32 v4, v{SC}, v{SC+1}')
for g in range(2, G, 2): A(f'v_max3_f32 v4, v4, v{SC+g}, v{SC+g+1}')
A(f'v_max_f32_dpp v4, v4, v4 row_ror:8 {DPPM}')
allreduce_rows('v_max_f32', [4], [T])
A(f's_mov_b32 s68, {f32(LOG2E)}')
for g in range(G): A(f'v_sub_f32 v{SC+g}, v{SC+g}, v4')
for g in range(G): A(f'v_mul_f32 v{SC+g}, s68, v{SC+g}')
for g in range(G): A(f'v_exp_f32 v{SC+g}, v{SC+g}')
A(f'v_add_f32 v5, v{SC}, v{SC+1}')
for g in range(2, G): A(f'v_add_f32 v5, v5, v{SC+g}')
A(f'v_add_f32_dpp v5, v5, v5 row_ror:8 {DPPM}')
allreduce_rows('v_add_f32', [5], [T])
A(f'''
s_lshl_b32 s69, s3, 4
v_mov_b32 v{T}, s69
v_mov_b32 v6, 1
v_mov_b32 v7, 1
ds_write_b128 v{T}, v[4:7] offset:{SL}
''')
mark(2)
for g in range(G): A(f'v_cvt_pk_bf16_f32 v{SC+g}, v{SC+g}, v2')
for i in range(24): A(f'v_mov_b32 v{ACC+i}, 0')
A('''
v_and_b32 v8, 7, v0
v_lshlrev_b32 v8, 5, v8
v_lshrrev_b32 v9, 4, v0
v_lshl_add_u32 v8, v9, 3, v8
s_mul_i32 s69, s3, 768
v_add_u32 v8, s69, v8
v_mov_b32 v11, 1
''')
def pv(idx):
    g, j = divmod(idx, 3)
    r = vreg(g) + 4 * j
    if j == 0: A(f'v_lshlrev_b32 v10, 16, v{SC+g}')
    for e in range(4):
        A(f'v_dot2c_f32_bf16 v{ACC+8*j+2*e}, v{r+e}, v{SC+g}')
        A(f'v_dot2c_f32_bf16 v{ACC+8*j+2*e+1}, v{r+e}, v10')
done_idx = -1; pv_next = 0
assert nv < NV - opt['t1'] and opt['t1'] >= opt['t2']
while nv < NV:
    issue_load('V', nv // 3, nv % 3, D)
    done_idx = nv - DC
    nv += 1
    for key, off in (('t1', 8), ('t2', 4)):
        if nv == NV - opt[key]:
            A(f's_mov_b64 exec, 1\nds_add_u32 v2, v11 offset:{CNT+off}\ns_mov_b64 exec, -1')
    cnt = 0
    while pv_next <= done_idx and cnt < 2:
        pv(pv_next); pv_next += 1; cnt += 1
def scale_factor():
    def body():
        A(f'ds_read_b128 v[12:15], v2 offset:{GS}')
        A(f'ds_read_b32 v7, v2 offset:{INFO}')
        A('s_waitcnt lgkmcnt(0)')
        A('v_cmp_eq_u32 vcc, 0, v15')
    spin(body, 1)
    A('v_sub_f32 v9, v4, v12\nv_mul_f32 v9, s68, v9\nv_exp_f32 v9, v9\nv_readfirstlane_b32 s46, v7\nv_mul_f32 v9, v9, v13')
    A(f'''
v_min_u32 v12, 47, v0
v_lshlrev_b32 v13, 7, v12
v_lshlrev_b32 v12, 4, v12
s_mul_i32 s74, s6, 6144
s_lshl4_add_u32 s74, s7, s74
s_add_u32 s74, s74, {OP}
s_lshl_b32 s75, s4, 9
s_lshl4_add_u32 s75, s79, s75
s_add_u32 s75, s75, {DN2}
s_mov_b32 s22, 0xaaaaaaaa
s_mov_b32 s23, 0xaaaaaaaa
v_mov_b32 v14, s30
v_mov_b32 v15, s31
''')
def reduce_j(j):
    for e in range(4): A(f'{S32} v{ACC+8*j+e}, v{ACC+8*j+e+4}')
    for e in range(4): A(f'v_add_f32 v{ACC+8*j+e}, v{ACC+8*j+e}, v{ACC+8*j+e+4}')
    for e in range(2): A(f'{S16} v{ACC+8*j+e}, v{ACC+8*j+e+2}')
    for e in range(2): A(f'v_add_f32 v{ACC+8*j+e}, v{ACC+8*j+e}, v{ACC+8*j+e+2}')
    for e in range(2): A(f'v_add_f32_dpp v{ACC+8*j+e}, v{ACC+8*j+e}, v{ACC+8*j+e} row_ror:8 {DPPM}')
    for e in range(2): A(f'v_mul_f32 v{ACC+8*j+e}, v9, v{ACC+8*j+e}')
    A(f'ds_write_b64 v8, v[{ACC+8*j}:{ACC+8*j+1}] offset:{OL+256*j}')
fd = False
while pv_next < NV:
    if pv_next >= NV - 3 and not fd:
        scale_factor(); fd = True
    if pv_next > done_idx:
        A(f's_waitcnt vmcnt({NV - 1 - pv_next})')
        hupto(3 * G + pv_next + 1)
        done_idx = pv_next
    pv(pv_next); pv_next += 1
    if pv_next > NV - 3: reduce_j((pv_next - 1) % 3)
A(f'''
s_mov_b64 exec, 1
ds_add_rtn_u32 v10, v2, v11 offset:{CNT}
s_waitcnt lgkmcnt(0)
v_readfirstlane_b32 s68, v10
s_mov_b64 exec, -1
s_cmp_lg_u32 s68, 7
s_cbranch_scc1 L_nopub
''')
for w in range(8): A(f'ds_read_b128 v[{16+4*w}:{19+4*w}], v12 offset:{OL+768*w}')
for w in range(0, 8, 2):
    A(f's_waitcnt lgkmcnt({6-w})')
    for e in range(4): A(f'v_add_f32 v{16+4*w+e}, v{16+4*w+e}, v{20+4*w+e}')
    if w == 2 or w == 6:
        for e in range(4): A(f'v_add_f32 v{8+4*w+e}, v{8+4*w+e}, v{16+4*w+e}')
for e in range(4): A(f'v_add_f32 v{4+e}, v{16+e}, v{32+e}')
A('''
v_cvt_pk_bf16_f32 v8, v4, v5
v_cvt_pk_bf16_f32 v9, v6, v7
v_cndmask_b32 v4, v8, v14, s[22:23]
v_cndmask_b32 v5, v9, v15, s[22:23]
v_cndmask_b32 v6, v14, v8, s[22:23]
v_cndmask_b32 v7, v15, v9, s[22:23]
''')
publish([((1 << 48) - 1, 'buffer_store_dwordx4 v[4:7], v13, @, s74 offen')])
mark(3)
A('s_mov_b64 exec, 1')
if opt['nB'] and opt['hintB'] == 2: A('buffer_store_dwordx4 v[4:7], v12, s[32:35], s75 offen')
if opt['pubwait']: A('s_waitcnt vmcnt(0)')
if opt['pubwait'] and opt['opdiag']: mark(1)
A(f'ds_write_b32 v2, v11 offset:{INFO + 4}')
A('s_mov_b64 exec, -1')
flush([(1, 9), (2, 10), (3, 16)])
A('L_nopub:')
if STAMPS:
    A('s_cmp_lg_u32 s3, 0\ns_cbranch_scc1 L_nost0')
    flush([(0, 0)])
    A('L_nost0:')
if opt['abl'] & 16: A('s_endpgm')
A('s_cmp_eq_u32 s3, 7\ns_cbranch_scc1 L_end')
get_role(1)
A('''
s_cmp_lt_u32 s5, 12
s_cbranch_scc1 L_ffn
s_cmp_lt_u32 s5, 20
s_cbranch_scc1 L_end
s_cmp_lt_u32 s3, 5
s_cbranch_scc1 L_f1
s_endpgm
''')

A('L_q2:')
A('s_mov_b32 s69, 0xffff0000')
ws_srds()
mktag()
QX = 0
if opt['prew'] & 1 and not opt['abl'] & 2:
    A(f'''
s_not_b32 s20, s30
v_mov_b32 v92, s20
v_mov_b32 v93, s20
v_mov_b32 v94, s20
v_mov_b32 v95, s20
v_lshlrev_b32 v91, 4, v0
s_lshl_b32 s64, s71, 11
s_lshl_b32 s65, s73, 9
s_add_u32 s64, s64, s65
s_add_u32 s64, s64, {QP}
s_mov_b32 exec_hi, 0
buffer_store_dwordx4 v[92:95], v91, s[32:35], s64 offen
s_mov_b32 exec_hi, -1
''')
    QX = 1
A(f's_waitcnt vmcnt({20+QX})')
sd(5)
for i in range(5):
    A(f'v_lshlrev_b32 v{XU+2*i}, 16, v{XS+i}')
    A(f'v_and_b32 v{XU+1+2*i}, s69, v{XS+i}')
A(f'''
v_add_f32 v4, v{XU}, v{XU+1}
v_add_f32 v5, v{XU+2}, v{XU+3}
v_add_f32 v6, v{XU+4}, v{XU+5}
v_add_f32 v7, v{XU+6}, v{XU+7}
v_add_f32 v4, v4, v5
v_add_f32 v6, v6, v7
v_add_f32 v5, v{XU+8}, v{XU+9}
v_add_f32 v4, v4, v6
v_add_f32 v4, v4, v5
''')
allreduce64('v_add_f32', [4], [5])
A(f'v_mul_f32 v4, {f32(1.0/640)}, v4')
for i in range(10): A(f'v_sub_f32 v{XU+i}, v{XU+i}, v4')
A(f'v_mul_f32 v5, v{XU}, v{XU}')
for i in range(1, 10): A(f'v_fmac_f32 v5, v{XU+i}, v{XU+i}')
allreduce64('v_add_f32', [5], [6])
A(f'v_mul_f32 v5, {f32(1.0/640)}, v5')
bf16r(4, 4); bf16r(5, 5)
A(f'v_add_f32 v5, {f32(1e-5)}, v5')
bf16r(5, 5)
A('v_sqrt_f32 v5, v5')
bf16r(5, 5)
A('v_rcp_f32 v5, v5')
A('v_mov_b32 v6, 0')
A(f's_waitcnt vmcnt({10+QX})')
for r in range(10): A(f'v_lshlrev_b32 v{XR+r}, 16, v{XR+r}')
for r in range(10): A(f'v_sub_f32 v{XR+r}, v{XR+r}, v4')
for r in range(10): A(f'v_cvt_pk_bf16_f32 v{XR+r}, v6, v{XR+r}')
for r in range(10): A(f'v_mul_f32 v{XR+r}, v{XR+r}, v5')
for r in range(10):
    A(f'v_cvt_pk_bf16_f32 v{XU+r}, v6, v{XR+r}')
    A(f'v_cvt_pk_bf16_f32 v{XR+r}, v{XR+r}, v6')
for e in range(8): A(f'v_mov_b32 v{QA+e}, 0')
A(f'''
v_and_b32 v90, 7, v0
v_lshrrev_b32 v6, 4, v0
v_lshl_add_u32 v90, v90, 2, v6
v_lshlrev_b32 v90, 4, v90
s_lshl_b32 s64, s71, 11
s_lshl_b32 s69, s73, 9
s_add_u32 s69, s69, {QP}
s_add_u32 s64, s64, s69
''')
for r in range(10):
    A(f's_waitcnt vmcnt({9-r+QX if r < 9 else 0})')
    hstamp(r)
    for e in range(4):
        A(f'v_dot2c_f32_bf16 v{QA+2*e}, v{WQ+4*r+e}, v{XR+r}')
        A(f'v_dot2c_f32_bf16 v{QA+2*e+1}, v{WQ+4*r+e}, v{XU+r}')
mark(1)
for e in range(4): A(f'{S32} v{QA+e}, v{QA+e+4}')
for e in range(4): A(f'v_add_f32 v{QA+e}, v{QA+e}, v{QA+e+4}')
for e in range(2): A(f'{S16} v{QA+e}, v{QA+e+2}')
for e in range(2): A(f'v_add_f32 v{QA+e}, v{QA+e}, v{QA+e+2}')
for e in range(2): A(f'v_add_f32_dpp v{QA+e}, v{QA+e}, v{QA+e} row_ror:8 {DPPM}')
A(f'v_mov_b32 v{QA+2}, s30\nv_mov_b32 v{QA+3}, s31')
QM = 0x00ff00ff00ff00ff
if not opt['forceslow'] and not opt['abl'] & 2:
    setexec(QM)
    A(f'buffer_store_dwordx4 v[{QA}:{QA+3}], v90, s[32:35], s64 offen')
    setexec(ALL)
A('''
v_and_b32 v3, 31, v0
v_lshrrev_b32 v2, 5, v0
v_lshlrev_b32 v2, 11, v2
v_lshl_add_u32 v2, v3, 4, v2
s_lshl_b32 s68, s6, 14
s_add_u32 s60, s68, s69
s_add_u32 s61, s60, 4096
s_add_u32 s62, s60, 8192
s_add_u32 s63, s60, 12288
v_lshlrev_b32 v3, 2, v3
s_lshl_b32 s69, s73, 7
v_add_u32 v3, s69, v3
v_mov_b32 v1, 0
s_mov_b32 s65, 0
''')
def q_lazy():
    skip = newlabel('qlazy')
    A(f'''
ds_read_b32 v4, v1 offset:{INFO}
s_waitcnt lgkmcnt(0)
v_readfirstlane_b32 s46, v4
s_sub_u32 s68, s46, s65
s_cmp_lg_u32 s68, 2
s_cbranch_scc1 {skip}
''')
    setexec(QM)
    A(f'buffer_store_dwordx4 v[{QA}:{QA+3}], v90, s[24:27], s64 offen sc1')
    setexec(ALL)
    A(f's_mov_b32 s65, 1\n{skip}:')
def body():
    for n in range(4):
        A(f'buffer_load_dwordx4 v[{8+4*n}:{11+4*n}], v2, s[16:19], s{60+n} offen{LF}')
    A('s_waitcnt vmcnt(0)')
    tagcheck([10, 14, 18, 22])
sleep(opt['qdelay'])
if not opt['abl'] & 34: spin2(body, opt['qsleep'], retry=q_lazy)
mark(2)
A(f'''
v_add_f32 v8, v8, v12
v_add_f32 v9, v9, v13
v_add_f32 v16, v16, v20
v_add_f32 v17, v17, v21
v_add_f32 v8, v8, v16
v_add_f32 v9, v9, v17
''')
swapreduce(S32, 'v_add_f32', [8, 9], [10, 11])
A(f'''
v_cvt_pk_bf16_f32 v8, v8, v9
ds_write_b32 v3, v8 offset:{QL}
s_lshl_b32 s69, s73, 3
v_mov_b32 v4, s69
v_mov_b32 v6, 1
s_waitcnt lgkmcnt(0)
ds_write_b32 v4, v6 offset:{QF}
''')
get_mode()
q_lazy()
if opt['abl'] & 16: A('s_endpgm')
A('s_cmp_lg_u32 s3, 8\ns_cbranch_scc1 L_role')
if opt['dyn']:
    lds_wait_ge(CNT + 8, 8, 2)
    A('''
s_lshl_b32 s68, s4, 5
v_mov_b32 v6, s68
v_mov_b32 v5, 1
s_mov_b64 exec, 1
global_atomic_add v5, v6, v5, s[56:57] sc0 sc1
s_waitcnt vmcnt(0)
v_and_b32 v5, 31, v5
v_add_u32 v5, 1, v5
''')
else:
    A('s_add_u32 s68, s79, 1\nv_mov_b32 v5, s68\ns_mov_b64 exec, 1')
A(f'''
ds_write_b32 v1, v5 offset:{ROLE}
s_mov_b64 exec, -1
''')
mark(4)
flush([(1, 1), (2, 2), (4, 6)])
A('s_branch L_role')

A('L_misc2:')
A('s_getreg_b32 s64, hwreg(HW_REG_XCC_ID)')
ws_srds()
NP = opt['nprobe']
if opt['near']:
    A(f'''
v_and_b32 v1, 31, v0
v_lshlrev_b32 v1, 4, v1
v_lshrrev_b32 v2, 5, v0
v_lshl_add_u32 v1, v2, 13, v1
s_lshl_b32 s66, s2, 9
s_and_b32 s68, s66, 0xffffe000
s_add_u32 s66, s66, s68
s_add_u32 s66, s66, {PR}
v_mov_b32 v6, 0
v_mov_b32 v7, 0
''')
    A(f"s_cmp_ge_u32 s79, {opt['npw']}\ns_cbranch_scc1 L_nopr0")
    setexec(((1 << (8 * NP)) - 1) * 0x100000001)
    A('buffer_store_dwordx4 v[4:7], v1, s[24:27], s66 offen sc1')
    setexec(ALL)
    A('L_nopr0:')
mktag()
A(f'''
{'s_mov_b32 s46, 1' + chr(10) + 's_branch L_idset' if opt['abl'] & 1 else ''}
s_and_b32 s64, s64, 15
v_mov_b32 v4, s30
v_mov_b32 v5, s31
v_mov_b32 v6, s64
v_mov_b32 v7, s64
s_lshl_b32 s68, s4, 9
s_add_u32 s68, s68, {ID}
s_lshl_b32 s69, s79, 4
v_mov_b32 v1, s69
s_mov_b64 exec, 1
buffer_store_dwordx4 v[4:7], v1, s[32:35], s68 offen
s_mov_b64 exec, -1
v_and_b32 v1, 31, v0
v_lshlrev_b32 v1, 4, v1
s_mov_b32 s70, {opt['idtries']}
s_mov_b32 s46, 2
L_idpoll:
s_sleep {opt['idsleep']}
buffer_load_dwordx4 v[8:11], v1, s[32:35], s68 offen{LF}
s_waitcnt vmcnt(0)
v_cmp_ne_u64 vcc, s[30:31], v[8:9]
s_nop 0
s_cbranch_vccz L_iddone
s_sub_u32 s70, s70, 1
s_cbranch_scc0 L_idpoll
s_branch L_idset
L_iddone:
v_cmp_ne_u32 vcc, s64, v10
s_nop 0
s_cbranch_vccnz L_idset
s_mov_b32 s46, {2 if opt['forceslow'] else 1}
L_idset:
v_mov_b32 v1, 0
v_mov_b32 v4, s46
ds_write_b32 v1, v4 offset:{INFO}
''')
mark(1)
if opt['near']:
    A(f's_mov_b32 s60, -1\ns_mov_b32 s61, -1\ns_lshl_b32 s67, s4, 9\ns_add_u32 s67, s67, {PV}')
    A(f"s_cmp_ge_u32 s79, {opt['npw']}\ns_cbranch_scc1 L_nopr1\ns_waitcnt lgkmcnt(0)")
    for i in range(NP):
        for c in range(2):
            A(f'''
s_add_u32 s69, s66, {128*i + 8192*c}
s_memtime s[62:63]
s_waitcnt lgkmcnt(0)
s_load_dword s65, s[58:59], s69
s_waitcnt lgkmcnt(0)
s_memtime s[20:21]
s_waitcnt lgkmcnt(0)
s_sub_u32 s62, s20, s62
s_min_u32 s{60+c}, s{60+c}, s62
''')
    if opt['share']:
        A(f'''
s_lshl_b32 s69, s79, 4
v_mov_b32 v1, s69
v_mov_b32 v4, s60
v_mov_b32 v5, s61
v_mov_b32 v6, s30
v_mov_b32 v7, s31
s_mov_b64 exec, 1
buffer_store_dwordx4 v[4:7], v1, s[32:35], s67 offen
s_mov_b64 exec, -1
''')
    A('L_nopr1:')
else:
    A('s_mov_b32 s47, 0')
mark(2)
A('v_and_b32 v1, 7, v0\nv_lshlrev_b32 v1, 4, v1')
def body():
    A(f'ds_read_b128 v[4:7], v1 offset:{SL}')
    A('s_waitcnt lgkmcnt(0)')
    A('v_cmp_eq_u32 vcc, 0, v7')
spin(body, 4)
def combine_stats():
    A(f's_mov_b32 s68, {f32(LOG2E)}')
    A('v_mov_b32 v2, v4')
    allreduce8('v_max_f32', [2])
    A('v_sub_f32 v4, v4, v2\nv_mul_f32 v4, s68, v4\nv_exp_f32 v4, v4\nv_mul_f32 v3, v4, v5')
    allreduce8('v_add_f32', [3])
combine_stats()
A(f'''
s_lshl_b32 s68, s71, 4
s_add_u32 s68, s68, {ST}
v_mov_b32 v4, s30
v_mov_b32 v5, s31
''')
publish([(1, 'buffer_store_dwordx4 v[2:5], v1, @, s68 offen')])
if opt['near']:
    if opt['share']:
        A(f'''
s_cmp_lg_u32 s46, 1
s_cbranch_scc1 L_noshare
v_and_b32 v8, {7 if opt['npw'] <= 8 else 31}, v0
v_lshlrev_b32 v8, 4, v8
buffer_load_dwordx4 v[4:7], v8, s[32:35], s67 offen{LF}
s_waitcnt vmcnt(0)
v_cmp_eq_u64 vcc, s[30:31], v[6:7]
v_cndmask_b32 v4, -1, v4, vcc
v_cndmask_b32 v5, -1, v5, vcc
''')
        allreduce16('v_min_u32', [4, 5])
        swapreduce(S16, 'v_min_u32', [4, 5], [6, 7])
        A('''
v_readfirstlane_b32 s62, v4
v_readfirstlane_b32 s63, v5
s_min_u32 s60, s60, s62
s_min_u32 s61, s61, s63
L_noshare:
''')
    A('s_cmp_lt_u32 s61, s60\ns_cselect_b32 s47, 8192, 0')
    if opt['fixnear'] >= 0: A(f"s_mov_b32 s47, {8192*opt['fixnear']}")
    if STAMPS: A('s_mov_b32 s90, s60\ns_mov_b32 s91, s61')
A(f'v_mov_b32 v8, 0\nv_mov_b32 v4, s47\nds_write_b32 v8, v4 offset:{NEAR}')
A(f's_lshl_b32 s74, s6, 7\ns_add_u32 s74, s74, {ST}')
def body():
    sleep(opt['stsleep'])
    A(f'buffer_load_dwordx4 v[4:7], v1, s[16:19], s74 offen{LF}')
    A('s_waitcnt vmcnt(0)')
    tagcheck([6])
spin2(body, 0, local_only=True)
mark(3)
combine_stats()
A(f'''
v_rcp_f32 v3, v3
v_mov_b32 v4, 1
v_mov_b32 v5, 1
v_mov_b32 v1, 0
ds_write_b128 v1, v[2:5] offset:{GS}
''')
flush([(1, 3), (2, 4), (3, 5), (5, 7)])
if opt['abl'] & 16: A('s_endpgm')
if opt['nA'] or (opt['nB'] and opt['hintB'] == 1):
    lds_wait_ge(CNT + 4, 8, 1)
    A(f'''
s_lshl_b32 s68, s4, 9
s_lshl4_add_u32 s68, s79, s68
s_add_u32 s68, s68, {DN1}
v_mov_b32 v6, s30
v_mov_b32 v7, s31
s_mov_b64 exec, 1
buffer_store_dwordx4 v[4:7], v1, s[32:35], s68 offen
s_mov_b64 exec, -1
''')

A('L_role:')
get_role(4)
A('s_cmp_lt_u32 s5, 20\ns_cbranch_scc0 ' + ('L_tiles' if opt['tearly'] else 'L_end'))
BW = 64
XM = 52
def tr_addr(dst, tmp):
    A(f'''
v_lshrrev_b32 v{dst}, 4, v0
v_lshlrev_b32 v{dst}, 10, v{dst}
v_bfe_u32 v{tmp}, v0, 2, 2
v_lshl_add_u32 v{dst}, v{tmp}, 7, v{dst}
v_and_b32 v{tmp}, 3, v0
v_lshl_add_u32 v{dst}, v{tmp}, 3, v{dst}
''')
srd(12, 44, 6144 * 640 * 2)
tr_addr(24, 25)
A(f'''
s_cmp_ge_u32 s5, 10
s_cselect_b32 s76, 1, 0
s_mul_i32 s77, s76, 10
s_sub_u32 s77, s5, s77
s_lshl1_add_u32 s78, s4, s76
s_lshl2_add_u32 s78, s78, s73
v_lshrrev_b32 v2, 3, v0
v_mul_u32_u24 v26, 1280, v2
v_and_b32 v3, 7, v0
v_lshl_add_u32 v26, v3, 4, v26
s_mul_i32 s60, s78, {96*1280}
s_lshl_b32 s69, s77, 7
s_add_u32 s60, s60, s69
s_mul_i32 s61, s73, 12288
v_add_u32 v24, s61, v24
s_add_u32 s61, s61, {WL}
v_lshlrev_b32 v60, 4, v0
s_mul_i32 s74, s78, 3072
s_add_u32 s74, s74, {OP}
v_lshlrev_b32 v62, 2, v0
s_lshl_b32 s68, s73, 8
v_add_u32 v61, s68, v62
s_mul_i32 s75, s4, 5120
s_lshl_b32 s69, s5, 8
s_add_u32 s75, s75, s69
s_and_b32 s69, s75, 0xffffe000
s_add_u32 s75, s75, s69
s_add_u32 s75, s75, {YP}
s_xor_b32 s62, s47, 8192
s_add_u32 s62, s62, s75
s_add_u32 s63, s47, s75
s_mov_b32 s66, 0xff00ff00
s_mov_b32 s67, 0xff00ff00
v_mov_b32 v50, s30
v_mov_b32 v51, s31
v_cndmask_b32 v{XM}, 0, v50, s[66:67]
v_cndmask_b32 v{XM+1}, 0, v51, s[66:67]
v_cndmask_b32 v{XM+2}, v50, 0, s[66:67]
v_cndmask_b32 v{XM+3}, v51, 0, s[66:67]
''')
AO = 8
RF = ' sc1' if opt['fnt'] else LF
def op_loads(srdn, fl=LF):
    for t in range(3):
        A(f'buffer_load_dwordx4 v[{AO+4*t}:{AO+4*t+3}], v60, s[{srdn}:{srdn+3}], s74 offen offset:{1024*t}{fl}')
if opt['prer'] == 2: op_loads(32)
lds_wait_ge(CNT + 4, 8, 1)
hint_wait(DN1, opt['nA'])
mark(3)
if opt['prer'] == 1: op_loads(32)
DW = opt['DWO'] if not opt['nb1'] else 12
for n in range(12):
    if n >= DW: A(f's_waitcnt vmcnt({DW-1})')
    if opt['nb1'] and n == opt['nb1']: lds_wait_ge(INFO + 4, 1, 1)
    A('s_mov_b32 m0, s61')
    A('buffer_load_dwordx4 v26, s[12:15], s60 offen nt lds')
    if n >= DW: hstamp(10 + n - DW)
    if n < 11:
        A(f's_add_u32 s60, s60, {8*1280}')
        A('s_add_u32 s61, s61, 1024')
E = 0
for t in range(3):
    if t == 2 and opt['ope'] >= 0:
        A(f"s_waitcnt vmcnt({opt['ope']})")
        if opt['opdiag']: mark(1)
        op_loads(32, RF); E = 3
    if opt['hist']:
        for m in range(11 - 4 * t, 7 - 4 * t, -1):
            if m < DW: A(f's_waitcnt vmcnt({m + E})'); hstamp(21 - m)
    A(f's_waitcnt vmcnt({8 - 4 * t + E})')
    for u in range(4):
        r = BW + 4 * (4 * t + u)
        A(f'ds_read_b64_tr_b16 v[{r}:{r+1}], v24 offset:{WL + 4096*t + 32*u}')
        A(f'ds_read_b64_tr_b16 v[{r+2}:{r+3}], v24 offset:{WL + 4096*t + 32*u + 512}')
mark(4)
if not E:
    lds_wait_ge(CNT, 8, 1)
    if opt['opdiag']: mark(1)
    op_loads(32, RF if opt['prer'] else LF)
else: A('s_waitcnt lgkmcnt(0)')
def body():
    op_loads(16, RF)
    A('L_opw0:')
    for t in range(3):
        A(f's_waitcnt vmcnt({2-t})')
        q = AO + 4 * t
        for e in range(4): A(f'v_xor_b32 v{q+e}, v{q+e}, v{XM+e}')
        for u in range(4):
            r = BW + 4 * (4 * t + u)
            c = '0' if t == 0 else f'v[{32+4*u}:{35+4*u}]'
            A(f'v_mfma_f32_16x16x32_bf16 v[{32+4*u}:{35+4*u}], v[{q}:{q+3}], v[{r}:{r+3}], {c}')
        if t == 0:
            A(f'v_or_b32 v2, v{q}, v{q+1}\nv_or_b32 v3, v{q+2}, v{q+3}')
        else:
            A(f'v_or3_b32 v2, v2, v{q}, v{q+1}\nv_or3_b32 v3, v3, v{q+2}, v{q+3}')
    A('v_cndmask_b32 v2, v3, v2, s[66:67]')
    A('v_cmp_ne_u32 vcc, 0, v2')
spin2(body, 0, local_only=True, enter='L_opw0')
mark(5)
for u in range(4):
    A(f'v_add_f32 v{4+u}, v{32+4*u}, v{33+4*u}\nv_add_f32 v{8+u}, v{34+4*u}, v{35+4*u}')
for u in range(4): A(f'v_add_f32 v{4+u}, v{4+u}, v{8+u}')
A(f'''
{S32} v4, v6
{S32} v5, v7
v_add_f32 v4, v4, v6
v_add_f32 v5, v5, v7
{S16} v4, v5
v_add_f32 v4, v4, v5
ds_write_b32 v61, v4 offset:{RL}
s_cmp_lg_u32 s3, 8
s_waitcnt lgkmcnt(0)
s_barrier
s_cbranch_scc1 {'L_opdiag' if opt['opdiag'] else 'L_end'}
ds_read_b32 v5, v62 offset:{RL+256}
ds_read_b32 v6, v62 offset:{RL+512}
ds_read_b32 v7, v62 offset:{RL+768}
s_waitcnt lgkmcnt(0)
v_add_f32 v4, v4, v5
v_add_f32 v6, v6, v7
v_add_f32 v48, v4, v6
v_mov_b32_dpp v49, v48 quad_perm:[1,0,3,2] {DPPM}
v_cvt_pk_bf16_f32 v48, v48, v49
v_mov_b32_dpp v49, v48 quad_perm:[2,3,0,1] {DPPM}
''')
setexec(0x1111111111111111)
if opt['near']: A('buffer_store_dwordx4 v[48:51], v62, s[24:27], s62 offen sc1')
A('buffer_store_dwordx4 v[48:51], v62, s[24:27], s63 offen sc1')
mark(6)
A('s_barrier')
if STAMPS:
    A('s_mov_b32 s94, s5\ns_mov_b32 s95, 0')
flush([(3, 11), (4, 12), (5, 13), (6, 14), (7, 15)])
if opt['opdiag']:
    A(f'''
L_opdiag:
s_lshl_b32 s98, s2, 8
s_lshl_b32 s97, s73, 5
s_add_u32 s98, s98, s97
s_add_u32 s98, s98, {HB}
s_sub_u32 s97, {SPIN}, s70
s_waitcnt lgkmcnt(0)
v_mov_b32 v4, s86
v_mov_b32 v5, s88
v_mov_b32 v6, s90
v_mov_b32 v7, s97
v_mov_b32 v8, s82
v_mov_b32 v9, s5
v_mov_b32 v1, 0
s_mov_b64 exec, 1
buffer_store_dwordx4 v[4:7], v1, s[24:27], s98 offen
buffer_store_dwordx2 v[8:9], v1, s[24:27], s98 offen offset:16
''')
A('s_endpgm')

if opt['tearly']:
    A('L_tiles:')
    srd(12, 48, 640 * 1536 * 2); srd(16, 50, 640 * 1536 * 2)
    A(f'''
s_sub_u32 s75, s5, 20
s_lshr_b32 s78, s75, 2
s_and_b32 s75, s75, 3
s_mul_i32 s72, s75, {160*3072}
s_mul_i32 s68, s73, {8*3072}
s_add_u32 s72, s72, s68
s_mul_i32 s68, s4, 3
s_add_u32 s78, s78, s68
s_lshl_b32 s68, s78, 7
s_add_u32 s72, s72, s68
s_lshl_b32 s61, s73, 10
s_add_u32 s61, s61, {WL}
v_lshrrev_b32 v2, 3, v0
v_and_b32 v3, 7, v0
v_mul_u32_u24 v62, 3072, v2
v_lshl_add_u32 v62, v3, 4, v62
''')
    hint_wait(DN1 if opt['hintB'] == 1 else DN2, opt['nB'])
    if opt['tB'] == 0: lds_wait_ge(CNT + 4, 8, 1)
    elif opt['tB'] == 9: lds_wait_ge(INFO + 4, 1, 1)
    else: lds_wait_ge(CNT, opt['tB'], 1)
    mark(3)
    n = 0
    for t in range(5):
        for m in range(2):
            if n >= opt['DWB']: A(f"s_waitcnt vmcnt({opt['DWB']-1})")
            if opt['nb1B'] and n == opt['nb1B']: lds_wait_ge(INFO + 4, 1, 1)
            A(f's_add_u32 m0, s61, {8192*t + 4096*m}')
            A(f'buffer_load_dwordx4 v62, s[{12+4*m}:{15+4*m}], s72 offen nt lds')
            if n >= opt['DWB']: hstamp(30 + n - opt['DWB'])
            n += 1
        if t < 4: A(f's_add_u32 s72, s72, {32*3072}')
    if opt['hist']:
        for m in reversed(range(opt['DWB'])):
            A(f's_waitcnt vmcnt({m})'); hstamp(39 - m)
    A('s_waitcnt vmcnt(0)')
    mark(4)
    A('s_barrier')
    if STAMPS:
        A('s_cmp_lg_u32 s3, 8\ns_cbranch_scc1 L_end')
        flush([(3, 18), (4, 19)])
    A('s_endpgm')

B1R = 64
DR = 16
HRDY = CNT + 12
def yp_loads(fl=''):
    A('buffer_load_dwordx4 v[96:99], v53, s[24:27], s60 offen sc1' + fl)
    A('buffer_load_dwordx4 v[100:103], v59, s[24:27], s60 offen sc1' + fl)
def f1_mfma():
    for k in range(8):
        A(f'v_mfma_f32_16x16x32_bf16 v[{DR+4*k}:{DR+3+4*k}], v[8:11], v[{B1R+4*k}:{B1R+4*k+3}], 0')
def f1_select():
    for m in range(2):
        b = DR + 16 * m
        A(f'v_cndmask_b32 v{12+m}, v{b}, v{b+4}, s[62:63]')
        A(f'v_cndmask_b32 v{12+m}, v{12+m}, v{b+8}, s[64:65]')
        A(f'v_cndmask_b32 v{12+m}, v{12+m}, v{b+12}, s[66:67]')
A('L_f1:')
tr_addr(58, 5)
srd(12, 48, 640 * 1536 * 2); srd(16, 50, 640 * 1536 * 2)
A(f"""
s_sub_u32 s75, s5, 20
s_lshr_b32 s78, s75, 2
s_mul_i32 s75, s75, 5
s_add_u32 s75, s75, s3
s_mul_i32 s68, s78, 20
s_sub_u32 s74, s75, s68
s_mul_i32 s68, s4, 3
s_add_u32 s78, s78, s68
s_mul_i32 s68, s4, 60
s_add_u32 s75, s75, s68
s_lshl_b32 s68, s3, 13
v_add_u32 v58, s68, v58
s_add_u32 s73, s68, {WL}
v_lshrrev_b32 v3, 4, v0
v_and_b32 v2, 7, v0
v_lshl_add_u32 v50, v2, 2, v3
v_lshlrev_b32 v50, 1, v50
s_lshl_b32 s68, s74, 6
v_add_u32 v61, s68, v50
s_lshl_b32 s68, s3, 6
v_add_u32 v51, s68, v50
v_lshlrev_b32 v52, 4, v3
v_add_u32 v52, s68, v52
v_lshlrev_b32 v54, 3, v2
v_add_u32 v54, s68, v54
v_lshrrev_b32 v53, 3, v0
v_mul_u32_u24 v62, 3072, v53
v_lshl_add_u32 v62, v2, 4, v62
v_mul_u32_u24 v53, 2560, v53
v_lshl_add_u32 v53, v2, 4, v53
s_lshl_b32 s68, s74, 7
v_add_u32 v53, s68, v53
v_add_u32 v59, {8*2560}, v53
s_add_u32 s60, s47, {YP}
v_and_b32 v55, 15, v0
v_lshlrev_b32 v55, 4, v55
v_mul_u32_u24 v63, 5120, v3
v_add_u32 v55, v55, v63
v_mov_b32 v57, 0
v_cmp_eq_u32 s[62:63], 1, v3
v_cmp_eq_u32 s[64:65], 2, v3
v_cmp_eq_u32 s[66:67], 3, v3
s_mul_i32 s76, s78, 20480
s_lshl_b32 s68, s74, 8
s_add_u32 s76, s76, s68
s_add_u32 s76, s76, {PA}
s_lshl_b32 s68, s78, 9
s_lshl4_add_u32 s68, s74, s68
s_add_u32 s68, s68, {PS}
s_mul_i32 s69, s4, 2560
s_lshl_b32 s61, s74, 7
s_add_u32 s69, s69, s61
s_add_u32 s69, s69, {PH}
v_lshl_add_u32 v63, v2, 4, s69
v_mov_b32 v4, s68
s_mov_b32 s8, 0xff00
s_mov_b32 s9, 0
v_cndmask_b32 v63, v63, v4, s[8:9]
s_cmp_lt_u32 s5, 24
s_cselect_b32 s61, 0xff, 0
s_or_b32 s61, s61, 0x100
s_mov_b32 s77, 0xffff0000
v_mov_b32 v14, s30
v_mov_b32 v15, s31
s_mul_i32 s72, s74, {32*3072}
s_lshl_b32 s68, s78, 7
s_add_u32 s72, s72, s68
""")
place(53, 4); place(59, 4)
if opt['tearly']:
    A('global_load_ushort v56, v61, s[36:37]')
    A('s_setprio 3\ns_barrier')
else:
    hint_wait(DN1 if opt['hintB'] == 1 else DN2, opt['nB'])
    lds_wait_ge(INFO + 4, 1, 1)
    for n in range(4):
        for m in range(2):
            A(f's_add_u32 m0, s73, {4096*m + 1024*n}')
            A(f'buffer_load_dwordx4 v62, s[{12+4*m}:{15+4*m}], s72 offen nt lds')
        if n < 3: A(f's_add_u32 s72, s72, {8*3072}')
    A('global_load_ushort v56, v61, s[36:37]')
    A('s_setprio 3')
    if opt['hist']:
        for m in reversed(range(1, 9)):
            A(f's_waitcnt vmcnt({m})'); hstamp(56 - m)
    A('s_waitcnt vmcnt(0)')
yp_loads(' nt' if opt['ynt'] else '')
mark(4)
for m in range(2):
    for u in range(4):
        r = B1R + 4 * (4 * m + u)
        A(f'ds_read_b64_tr_b16 v[{r}:{r+1}], v58 offset:{WL + 4096*m + 32*u}')
        A(f'ds_read_b64_tr_b16 v[{r+2}:{r+3}], v58 offset:{WL + 4096*m + 32*u + 512}')
A("""
v_mov_b32 v8, 0x3f803f80
v_mov_b32 v9, 0x3f803f80
v_mov_b32 v10, 0x3f803f80
v_mov_b32 v11, 0x3f803f80
s_waitcnt lgkmcnt(0)
""")
f1_mfma()
f1_select()
A('v_cvt_pk_bf16_f32 v60, v12, v13')
A('s_waitcnt vmcnt(2)\nv_lshlrev_b32 v56, 16, v56')
A(f's_mov_b32 s70, {SPIN}')
A('s_branch L_ypw0')
A('L_yppoll:')
yp_loads()
A('L_ypw0:')
A('s_waitcnt vmcnt(0)')
tagcheck([98, 102])
A("""
s_nop 0
s_cbranch_vccz L_ypok
s_sub_u32 s70, s70, 1
s_cbranch_scc0 L_yppoll
L_ypok:
""")
mark(5)
A(f"""
v_lshlrev_b32 v8, 16, v96
v_lshlrev_b32 v24, 16, v100
v_lshlrev_b32 v10, 16, v97
v_lshlrev_b32 v26, 16, v101
v_and_b32 v9, s77, v96
v_and_b32 v25, s77, v100
v_and_b32 v11, s77, v97
v_and_b32 v27, s77, v101
v_add_f32 v8, v8, v24
v_add_f32 v10, v10, v26
v_add_f32 v9, v9, v25
v_add_f32 v11, v11, v27
{S32} v8, v10
{S32} v9, v11
v_add_f32 v8, v8, v10
v_add_f32 v9, v9, v11
{S16} v8, v9
v_add_f32 v8, v8, v9
v_add_f32_dpp v8, v8, v8 row_ror:8 {DPPM}
v_cvt_pk_bf16_f32 v8, v57, v8
v_add_f32 v8, v8, v56
v_cvt_pk_bf16_f32 v8, v8, v8
ds_write_b16 v51, v8 offset:{HL}
v_and_b32 v48, s77, v8
v_mul_f32 v49, v48, v48
s_waitcnt lgkmcnt(0)
ds_read_b128 v[8:11], v52 offset:{HL}
ds_read_b64 v[4:5], v54 offset:{HL}
""")
allreduce8('v_add_f32', [48, 49])
A('s_waitcnt lgkmcnt(0)')
f1_mfma()
swapreduce(S16, 'v_add_f32', [48, 49], [6, 7])
swapreduce(S32, 'v_add_f32', [48, 49], [6, 7])
A('v_mov_b32 v6, s30\nv_mov_b32 v7, s31')
A('v_cndmask_b32 v4, v4, v48, s[8:9]\nv_cndmask_b32 v5, v5, v49, s[8:9]')
f1_select()
A('v_cvt_pk_bf16_f32 v12, v12, v13\nv_mov_b32 v13, v60')
publish([(None, 'buffer_store_dwordx4 v[12:15], v55, @, s76 offen'),
         ('s61', 'buffer_store_dwordx4 v[4:7], v63, @, 0 offen')])
mark(6)
if STAMPS:
    flush([(6, 27), (5, 11)], True)
    A('s_cmp_lg_u32 s3, 4\ns_cbranch_scc1 L_end')
    flush([(4, 17)])
A('s_endpgm')

A('L_ffn:')
A("""
v_mov_b32 v57, 0
s_mul_i32 s72, s4, 12
s_add_u32 s72, s72, s5
s_cmp_lt_u32 s3, 5
s_cbranch_scc1 L_f2
s_cmp_eq_u32 s3, 5
s_cbranch_scc1 L_hid
s_cmp_ge_u32 s5, 10
s_cbranch_scc1 L_end
""")
A(f"""
s_mul_i32 s72, s4, 10
s_add_u32 s72, s72, s5
v_lshrrev_b32 v2, 1, v0
v_mul_u32_u24 v2, 2560, v2
v_and_b32 v3, 1, v0
v_lshl_add_u32 v96, v3, 4, v2
s_lshl_b32 s68, s72, 5
v_add_u32 v96, s68, v96
v_add_u32 v100, {32*2560}, v96
v_add_u32 v101, {64*2560}, v96
s_add_u32 s10, s47, {FP}
v_lshrrev_b32 v4, 4, v0
v_lshl_add_u32 v97, v3, 2, v4
v_lshlrev_b32 v97, 1, v97
v_lshlrev_b32 v99, 4, v3
v_and_b32 v98, 16, v0
s_mul_i32 s13, s4, 2560
s_lshl_b32 s68, s72, 5
s_add_u32 s13, s13, s68
s_add_u32 s13, s13, {PH}
s_lshl_b32 s14, s72, 4
s_mov_b32 s69, 0xffff0000
""")
place(96, 4); place(100, 4); place(101, 4)
FS = 16
srd(64, 54, 1280)
A('v_cmp_lt_u32 s[62:63], 31, v0')
A('s_setprio 3\ns_barrier\ns_barrier')
if opt['hwarm']: A('buffer_load_dwordx4 v[8:11], v99, s[32:35], s13 offen nt')
lds_wait_ge(HRDY, 1, 2)
sleep(opt['fsleep'])
def body():
    A(f'buffer_load_dwordx4 v[4:7], v99, s[16:19], s13 offen{RF}')
    for n, a in enumerate((96, 100, 101)):
        r = FS + 4 * n
        A(f'buffer_load_dwordx4 v[{r}:{r+3}], v{a}, s[24:27], s10 offen sc1')
    A('s_waitcnt vmcnt(0)')
    tagcheck([6, FS + 2, FS + 6, FS + 10])
spin2(body, 0, local_only=True)
mark(5)
for n in range(3):
    A(f'v_lshlrev_b32 v{40+4*n}, 16, v{FS+4*n}')
    A(f'v_and_b32 v{41+4*n}, s69, v{FS+4*n}')
    A(f'v_lshlrev_b32 v{42+4*n}, 16, v{FS+4*n+1}')
    A(f'v_and_b32 v{43+4*n}, s69, v{FS+4*n+1}')
for e in range(4): A(f'v_add_f32 v{8+e}, v{40+e}, v{44+e}')
for e in range(4): A(f'v_add_f32 v{8+e}, v{8+e}, v{48+e}')
A(f"""
v_cndmask_b32 v58, v4, v5, s[62:63]
{S32} v8, v10
{S32} v9, v11
v_add_f32 v8, v8, v10
v_add_f32 v9, v9, v11
v_lshrrev_b32 v58, v98, v58
v_lshlrev_b32 v58, 16, v58
{S16} v8, v9
v_add_f32 v8, v8, v9
v_add_f32_dpp v8, v8, v8 row_ror:8 {DPPM}
v_add_f32_dpp v8, v8, v8 row_ror:4 {DPPM}
v_add_f32_dpp v8, v8, v8 quad_perm:[2,3,0,1] {DPPM}
v_cvt_pk_bf16_f32 v8, v57, v8
v_add_f32 v8, v8, v58
v_cvt_pk_bf16_f32 v8, v8, v8
""")
setexec(0x0003000300030003)
A(f"""
buffer_store_short v8, v97, s[64:67], s14 offen
s_cmp_lg_u32 s72, 0
s_cbranch_scc1 L_fin_exit
s_mov_b64 exec, 1
v_mov_b32 v4, s30
v_mov_b32 v5, s31
s_mov_b32 s68, {EP}
buffer_store_dwordx2 v[4:5], v57, s[24:27], s68 offen
L_fin_exit:
""")
if opt['dbg']:
    A(f'''
s_cmp_lg_u32 s72, 0
s_cbranch_scc1 L_end
s_memrealtime s[82:83]
s_waitcnt lgkmcnt(0)
s_sub_u32 s84, s82, s80
s_sub_u32 s84, s84, 1500
s_mul_i32 s84, s84, {opt['dbg']}
s_min_u32 s84, s84, 20000
L_dbgspin:
s_memrealtime s[86:87]
s_waitcnt lgkmcnt(0)
s_sub_u32 s86, s86, s82
s_cmp_lt_u32 s86, s84
s_cbranch_scc1 L_dbgspin
''')
if STAMPS:
    A('s_waitcnt vmcnt(0)')
    mark(6)
    A(f's_sub_u32 s94, {SPIN}, s70\ns_mov_b32 s95, 0')
    flush([(5, 25), (6, 26), (7, 8)])
A('s_endpgm')

A('L_hid:')
A(f"""
v_and_b32 v62, 15, v0
v_lshlrev_b32 v62, 1, v62
v_lshlrev_b32 v60, 4, v0
v_and_b32 v3, 31, v0
v_lshlrev_b32 v61, 4, v3
s_lshr_b32 s68, s72, 2
s_lshl_b32 s65, s68, 9
s_add_u32 s65, s65, {PS}
s_mul_i32 s60, s72, 5120
s_add_u32 s60, s60, {PA}
s_add_u32 s61, s60, 4096
v_mov_b32 v36, 0
v_mov_b32 v37, 0
v_mov_b32 v38, s30
v_mov_b32 v39, s31
v_mov_b32 v59, 1
s_mov_b32 s69, 0xffff0000
s_setprio 3
s_barrier
s_barrier
""")
def pa_loads(srdn, fl):
    setexec(0x000fffff000fffff)
    A(f'buffer_load_dwordx4 v[36:39], v61, s[{srdn}:{srdn+3}], s65 offen{fl}')
    setexec(ALL)
    for n in range(5):
        A(f'buffer_load_dwordx4 v[{16+4*n}:{19+4*n}], v60, s[{srdn}:{srdn+3}], s{60+n//4} offen offset:{1024*(n%4)}{fl}')
def body():
    pa_loads(16, RF)
    A('L_paw0:')
    A('s_waitcnt vmcnt(0)')
    tagcheck([38, 18, 22, 26, 30, 34])
pa_loads(32, LF)
spin2(body, opt['hsleep'], local_only=True, enter='L_paw0')
mark(5)
def unp(d, n):
    r = 16 + 4 * n
    A(f'v_lshlrev_b32 v{d}, 16, v{r}\nv_and_b32 v{d+1}, s69, v{r}\nv_lshlrev_b32 v{d+2}, 16, v{r+1}\nv_and_b32 v{d+3}, s69, v{r+1}')
pats = ('quad_perm:[1,0,3,2]', 'quad_perm:[2,3,0,1]', 'row_half_mirror', 'row_mirror')
def st_step(i):
    for r in (36, 37): A(f'v_add_f32_dpp v{r}, v{r}, v{r} {pats[i]} {DPPM}')
st_step(0); unp(8, 0); st_step(1); unp(40, 1); st_step(2); unp(44, 2); st_step(3); unp(48, 3)
A('v_mov_b32 v22, v36\nv_mov_b32 v23, v37')
unp(52, 4)
A(f'{S16} v36, v22\n{S16} v37, v23')
for e in range(4): A(f'v_add_f32 v{8+e}, v{8+e}, v{40+e}')
A('v_add_f32 v36, v36, v22\nv_add_f32 v37, v37, v23')
for e in range(4): A(f'v_add_f32 v{44+e}, v{44+e}, v{48+e}')
A(f'v_mul_f32 v20, {f32(1.0/640)}, v36\nv_mul_f32 v21, {f32(1.0/640)}, v37')
for e in range(4): A(f'v_add_f32 v{8+e}, v{8+e}, v{52+e}')
A('v_fma_f32 v21, -v20, v20, v21\nv_max_f32 v21, 0, v21')
for e in range(4): A(f'v_add_f32 v{8+e}, v{8+e}, v{44+e}')
A(f"""
v_cvt_pk_bf16_f32 v20, v57, v20
v_cvt_pk_bf16_f32 v21, v57, v21
v_fma_f32 v8, -v20, v10, v8
v_fma_f32 v9, -v20, v11, v9
v_add_f32 v21, {f32(1e-5)}, v21
v_cvt_pk_bf16_f32 v21, v57, v21
{S32} v8, v9
v_sqrt_f32 v21, v21
v_add_f32 v8, v8, v9
v_cvt_pk_bf16_f32 v21, v57, v21
v_mov_b32 v10, v8
v_rcp_f32 v21, v21
{S16} v8, v10
v_add_f32 v8, v8, v10
v_mul_f32 v8, v8, v21
v_cvt_pk_bf16_f32 v8, v57, v8
v_mov_b32 v9, v8
{S32} v8, v9
v_mul_f32 v12, {f32(-LOG2E)}, v8
v_exp_f32 v12, v12
v_add_f32 v12, 1.0, v12
v_rcp_f32 v12, v12
v_mul_f32 v8, v8, v12
v_cvt_pk_bf16_f32 v8, v57, v8
v_mul_f32 v8, v8, v9
v_cvt_pk_bf16_f32 v8, v8, v8
ds_write_b16 v62, v8 offset:{HID}
ds_write_b32 v57, v59 offset:{HRDY}
""")
flush([(5, 24)])
A('s_endpgm')

A('L_f2:')
W2R = 64
srd(8, 52, 1536 * 640 * 2)
A(f"""
s_lshl_b32 s68, s3, 8
v_lshlrev_b32 v58, 2, v0
v_add_u32 v58, s68, v58
v_lshlrev_b32 v116, 1, v58
s_mul_i32 s68, s72, 2560
v_add_u32 v116, s68, v116
s_xor_b32 s78, s47, 8192
s_add_u32 s78, s78, {FP}
s_add_u32 s77, s47, {FP}
s_mov_b32 s60, 0x05040100
s_mov_b32 s61, 0x07060302
s_mul_i32 s62, s72, 20480
""")
place(116, 4)
A('s_setprio 3\ns_barrier\ns_barrier')
for k in range(16):
    A(f'buffer_load_dword v{W2R+k}, v58, s[8:11], s62 offen offset:{1280*(k%3)} nt')
    if k % 3 == 2: A('s_add_u32 s62, s62, 3840')
if opt['hist']:
    for m in (12, 8, 4, 0):
        A(f's_waitcnt vmcnt({m})'); hstamp(51 - m // 4)
A('s_waitcnt vmcnt(0)')
mark(4)
for kp in range(8):
    A(f'v_perm_b32 v{80+kp}, v{W2R+2*kp+1}, v{W2R+2*kp}, s60')
    A(f'v_perm_b32 v{88+kp}, v{W2R+2*kp+1}, v{W2R+2*kp}, s61')
A("""
v_mov_b32 v16, 0
v_mov_b32 v17, 0
v_mov_b32 v6, s30
v_mov_b32 v7, s31
""")
def body():
    A(f'ds_read_b32 v4, v57 offset:{HRDY}')
    A(f'ds_read_b128 v[8:11], v57 offset:{HID}')
    A(f'ds_read_b128 v[12:15], v57 offset:{HID+16}')
    A('s_waitcnt lgkmcnt(0)')
    A('v_cmp_eq_u32 vcc, 0, v4')
spin(body)
for kp in range(8):
    A(f'v_dot2c_f32_bf16 v16, v{8+kp}, v{80+kp}')
    A(f'v_dot2c_f32_bf16 v17, v{8+kp}, v{88+kp}')
A(f"""
v_cvt_pk_bf16_f32 v4, v16, v17
v_mov_b32_dpp v5, v4 quad_perm:[1,0,3,2] {DPPM}
""")
setexec(0x5555555555555555)
if opt['near']: A('buffer_store_dwordx4 v[4:7], v116, s[24:27], s78 offen sc1')
A('buffer_store_dwordx4 v[4:7], v116, s[24:27], s77 offen sc1')
mark(6)
if STAMPS:
    flush([(6, 27)], True)
    A('s_cmp_lg_u32 s3, 0\ns_cbranch_scc1 L_end')
    flush([(4, 22)])
A('L_end:')
A('s_endpgm')
for blk in outline: A(blk)
if opt['hist']:
    A.lines = [('s_branch L_hexit' if l.strip() == 's_endpgm' else l) for l in A.lines]
    i = A.lines.index('s_cbranch_scc1 L_end'); A.lines[i] = 's_cbranch_scc1 L_realend'
    A(f'''
L_hexit:
s_mov_b64 exec, -1
s_memrealtime s[96:97]
s_getreg_b32 s64, hwreg(HW_REG_XCC_ID)
s_waitcnt lgkmcnt(0)
{''.join('v_writelane_b32 v159, s%d, %d' % (80 + 2 * i, 54 + i) + chr(10) for i in range(6)) if opt['sdiag'] else ''}
v_writelane_b32 v159, s96, 61
v_writelane_b32 v159, s94, 62
v_writelane_b32 v159, s64, 63
s_mul_i32 s64, s2, 12
s_add_u32 s64, s64, s3
s_lshl_b32 s64, s64, 8
s_add_u32 s64, s64, {HB}
v_lshlrev_b32 v1, 2, v0
s_nop 4
buffer_store_dword v159, v1, s[24:27], s64 offen
L_realend:
s_endpgm
''')
A('L_codeend:')

A.raw('.section .rodata,"a"')
A.raw('.p2align 6')
A.raw(f'.amdhsa_kernel {NAME}_kernel')
A.raw('  .amdhsa_next_free_vgpr 168')
A.raw('  .amdhsa_next_free_sgpr 100')
A.raw('  .amdhsa_accum_offset 168')
A.raw('  .amdhsa_group_segment_fixed_size 0')
A.raw('  .amdhsa_kernarg_size 96')
A.raw('  .amdhsa_user_sgpr_count 2')
A.raw('  .amdhsa_user_sgpr_kernarg_segment_ptr 1')
A.raw('  .amdhsa_system_sgpr_workgroup_id_x 1')
A.raw('.end_amdhsa_kernel')
open(sys.argv[1], 'w').write(A.finalize())
```

```python
import sys, struct, os
from asmlib import Asm

NAME = "sequential_preLN__sliding_block_cached__glu_gated_swiglu__decode"
opt = dict(D=3, stamps=0, hist=0, spin=200007, Vpre=3, qsleep=20, qdelay=40, stsleep=16, idtries=12, idsleep=16,
           t1=3, t2=0, DWO=8, nA=0, nB=0, hintB=2, fsleep=19, forceslow=0, trap=0, dyn=5, near=1, dbg=0, hsleep=0,
           cpf=3, nprobe=2, fixnear=-1, share=1, tearly=1, DWB=10, opearly=0, tB=0, prew=0, npw=4, abl=0, lnt=1, prer=2, ynt=0, hwarm=1, fnt=1, pubwait=0, opdiag=0, nb1=8, ope=2, tlb=0, sdiag=0, deep=0, shal=0, shper=4, nb1B=4, mA=0, gA=4, mB=0, gB=3, rsleep=4, GA=8, GB=8, hbar=1, papipe=1, fprew=0, psl=0, oppipe=1, yppipe=0)
for a in sys.argv[2:]:
    k, v = a.split('=')
    assert k in opt, k
    opt[k] = int(v)
D = opt['D']; STAMPS = opt['stamps']; SPIN = opt['spin']

LF = ' sc1 nt' if opt['lnt'] else ' sc1'
def f32(x): return '0x%08x' % struct.unpack('<I', struct.pack('<f', x))[0]
LOG2E = 1.4426950408889634

YP = 0x0
PR = 0x20000
FP = 0x80000
EP = 0xFF000
ST = 0x101000
ID = 0x102000
DN1 = 0x103000
DN2 = 0x104000
TK = 0x108000
PV = 0x105000
OP = 0x110000
QP = 0x140000
SP = 0x200000
PA = 0x220000
PS = 0x2A0000
PH = 0x2A8000
HB = 0x300000
WSN = 0x400000
FAST = 0x400000
QL = 0
QF = 384
SL = 512
CNT = 640
INFO = 656
GS = 672
HID = 896
OL = 1024
RL = 7168
HL = 8192
WL = 8704
LDS = WL + 49152

A = Asm()
A.raw(open(os.path.join(os.path.dirname(os.path.abspath(__file__)), '..', NAME + '.s.ref')).read().split('; Override launch')[0].rstrip())
A.raw(f"; @launch grid=(256,1,1) block=(768,1,1) lds={LDS}")
A.raw('''; Generated by gen/gen11.py (hand-written generator).  One persistent launch, 256 workgroups x 12 waves, 1 per CU.
;  waves 0..7 : stream this workgroup's 512 keys of K then V (nt loads, depth-limited), QK / PV with v_dot2c bf16,
;  s_sleep is used only as back-off inside / ahead of polling loops.''')
A.raw('.amdgcn_target "amdgcn-amd-amdhsa--gfx950"')
A.raw('.text')
A.raw(f'.globl {NAME}_kernel')
A.raw('.p2align 8')
A.raw(f'.type {NAME}_kernel,@function')
A.raw(f'{NAME}_kernel:')

def stamp(idx, plus_wave=False):
    if not STAMPS: return
    A('s_memrealtime s[96:97]')
    A('s_lshl_b32 s98, s2, 8')
    A(f's_add_u32 s98, s98, {SP + idx*8}')
    if plus_wave: A('s_lshl3_add_u32 s98, s3, s98')
    A('s_mov_b64 s[94:95], exec')
    A('s_mov_b64 exec, 1')
    A('s_waitcnt lgkmcnt(0)')
    A('v_mov_b32 v120, s96\nv_mov_b32 v121, s97\nv_mov_b32 v122, 0')
    A('buffer_store_dwordx2 v[120:121], v122, s[24:27], s98 offen')
    A('s_mov_b64 exec, s[94:95]')
def mark(i):
    if STAMPS: A(f's_memrealtime s[{80+2*i}:{81+2*i}]')
def flush(pairs, plus_wave=False):
    if not STAMPS: return
    A('s_lshl_b32 s98, s2, 8')
    A(f's_add_u32 s98, s98, {SP}')
    if plus_wave: A('s_lshl3_add_u32 s98, s3, s98')
    A('s_mov_b64 exec, 1\ns_waitcnt lgkmcnt(0)\nv_mov_b32 v122, 0')
    for i, slot in pairs:
        A(f'v_mov_b32 v120, s{80+2*i}\nv_mov_b32 v121, s{81+2*i}')
        A(f'buffer_store_dwordx2 v[120:121], v122, s[24:27], s98 offen offset:{8*slot}')
        A('s_nop 1')
    A('s_mov_b64 exec, -1')
def hstamp(ks):
    if not opt['hist'] or opt['sdiag']: return
    if isinstance(ks, int): ks = [ks]
    ks = list(ks)
    if not ks: return
    A('s_memrealtime s[96:97]\ns_waitcnt lgkmcnt(0)')
    for k in ks: A(f'v_writelane_b32 v159, s96, {k}')

def sd(i):
    if opt['sdiag']: A(f's_memrealtime s[{80+2*i}:{81+2*i}]')
def srd(d, ptr, nbytes):
    A(f's_mov_b32 s{d}, s{ptr}')
    A(f's_mov_b32 s{d+1}, s{ptr+1}')
    A(f's_mov_b32 s{d+2}, {nbytes}')
    A(f's_mov_b32 s{d+3}, 0x20000')
def ws_srds():
    srd(24, 58, WSN)
    A(f's_add_u32 s32, s58, {FAST}')
    A('s_addc_u32 s33, s59, 0')
    A(f's_mov_b32 s34, {WSN}')
    A('s_mov_b32 s35, 0x20000')
    A('s_lshl3_add_u32 s71, s6, s7')
    A('s_lshr_b32 s79, s2, 3')

ALL = (1 << 64) - 1
def setexec(mask):
    if mask == ALL: A('s_mov_b64 exec, -1'); return
    A(f's_mov_b32 exec_lo, 0x{mask & 0xffffffff:x}')
    A(f's_mov_b32 exec_hi, 0x{mask >> 32:x}')

DPPM = 'row_mask:0xf bank_mask:0xf'
def allreduce8(op, regs):
    for pat in ('quad_perm:[1,0,3,2]', 'quad_perm:[2,3,0,1]', 'row_half_mirror'):
        for r in regs: A(f'{op}_dpp v{r}, v{r}, v{r} {pat} {DPPM}')
def allreduce16(op, regs):
    allreduce8(op, regs)
    for r in regs: A(f'{op}_dpp v{r}, v{r}, v{r} row_mirror {DPPM}')
def swapreduce(sw, op, regs, tmps):
    for r, t in zip(regs, tmps): A(f'v_mov_b32 v{t}, v{r}')
    for r, t in zip(regs, tmps): A(f'{sw} v{r}, v{t}')
    for r, t in zip(regs, tmps): A(f'{op} v{r}, v{r}, v{t}')
S16 = 'v_permlane16_swap_b32'; S32 = 'v_permlane32_swap_b32'
def allreduce_rows(op, regs, tmps):
    swapreduce(S16, op, regs, tmps); swapreduce(S32, op, regs, tmps)
def allreduce64(op, regs, tmps):
    allreduce16(op, regs); allreduce_rows(op, regs, tmps)
def bf16r(d, s):
    A(f'v_cvt_pk_bf16_f32 v{d}, v{s}, v{s}')
    A(f'v_lshlrev_b32 v{d}, 16, v{d}')
def mktag():
    A('''
s_waitcnt lgkmcnt(0)
s_mul_i32 s30, s28, 0x2c9277b5
s_add_u32 s30, s30, 0xac564b05
s_mul_i32 s31, s29, 0x0019660d
s_add_u32 s31, s31, 0x3c6ef35f
''')
def place(v, t):
    A(f'v_and_b32 v{t}, 0xffffe000, v{v}\nv_add_u32 v{v}, v{v}, v{t}')
lbl = [0]
def newlabel(p):
    lbl[0] += 1
    return f'L_{p}_{lbl[0]}'

def tagcheck(pairs):
    A(f'v_cmp_ne_u64 vcc, s[30:31], v[{pairs[0]}:{pairs[0]+1}]')
    tm = [(20, 21), (22, 23)]
    pend = []
    for i, p in enumerate(pairs[1:]):
        t = tm[i % 2]
        if len(pend) == 2:
            q = pend.pop(0); A(f's_or_b64 vcc, vcc, s[{q[0]}:{q[1]}]')
        A(f'v_cmp_ne_u64 s[{t[0]}:{t[1]}], s[30:31], v[{p}:{p+1}]')
        pend.append(t)
    for q in pend: A(f's_or_b64 vcc, vcc, s[{q[0]}:{q[1]}]')

def sleep(n):
    while n > 0:
        A(f's_sleep {min(n, 127)}'); n -= 127
def spin(body, slp=0, retry=None, enter=None):
    top = newlabel('spin'); done = newlabel('sdone')
    A(f's_mov_b32 s70, {SPIN}')
    if enter: A(f's_branch {enter}')
    A(f'{top}:')
    body()
    A('s_nop 0')
    A(f's_cbranch_vccz {done}')
    sleep(slp)
    if retry: retry()
    A('s_sub_u32 s70, s70, 1')
    A(f's_cbranch_scc0 {top}')
    if opt['trap']:
        A(f's_lshl_b32 s99, s2, 8\ns_or_b32 s99, s99, s3\ns_lshl_b32 s99, s99, 8\ns_or_b32 s99, s99, {lbl[0] & 255}')
        A(f'v_mov_b32 v166, {HB - 256 + 4 * (lbl[0] % 64)}\nv_mov_b32 v167, s99')
        A('global_store_dword v166, v167, s[58:59]')
    A(f'{done}:')
def spin2(body, slp=0, retry=None, local_only=False, enter=None):
    A(f's_mov_b32 s16, s32\ns_mov_b32 s17, s33\ns_mov_b32 s18, {WSN}\ns_mov_b32 s19, 0x20000')
    def rt():
        if retry: retry()
        A('s_and_b32 s99, s70, 7')
        if local_only:
            A('s_cmp_eq_u32 s46, 1')
            A('s_cselect_b32 s99, 1, s99')
            A('s_cmp_lg_u32 s99, 0')
        A('s_cselect_b32 s16, s32, s24')
        A('s_cselect_b32 s17, s33, s25')
    spin(body, slp, rt, enter)

def lds_wait_ge(off, n, slp, dst=4, adr=1):
    A(f'v_mov_b32 v{adr}, 0')
    def body():
        A(f'ds_read_b32 v{dst}, v{adr} offset:{off}')
        A('s_waitcnt lgkmcnt(0)')
        A(f'v_cmp_gt_u32 vcc, {n}, v{dst}')
    spin(body, slp)
def get_mode(dst=4, adr=1):
    lds_wait_ge(INFO, 1, 2, dst, adr)
    A(f'v_readfirstlane_b32 s46, v{dst}')
def get_role(slp):
    A('v_mov_b32 v1, 0')
    def body():
        A(f'ds_read_b64 v[4:5], v1 offset:{INFO + 8}')
        A('s_waitcnt lgkmcnt(0)')
        A('v_cmp_eq_u32 vcc, 0, v5')
    spin(body, slp)
    A('v_readfirstlane_b32 s5, v5\nv_readfirstlane_b32 s47, v4\ns_lshr_b32 s28, s5, 8\ns_and_b32 s5, s5, 0xff\ns_sub_u32 s5, s5, 1')
ROLE = INFO + 12; NEAR = INFO + 8

outline = []
def publish(stores):
    def emit(srdn, fl, AA):
        cur = ALL
        for m, line in stores:
            m = ALL if m is None else m
            if m != cur:
                if m == ALL: AA('s_mov_b64 exec, -1')
                elif isinstance(m, str): AA(f's_mov_b32 exec_lo, {m}\ns_mov_b32 exec_hi, 0')
                else: AA(f's_mov_b32 exec_lo, 0x{m & 0xffffffff:x}\ns_mov_b32 exec_hi, 0x{m >> 32:x}')
                cur = m
            AA(line.replace('@', f's[{srdn}:{srdn+3}]') + fl)
        if cur != ALL: AA('s_mov_b64 exec, -1')
    if not opt['forceslow']: emit(32, '', A)
    slow = newlabel('slow'); back = newlabel('back')
    A('s_cmp_lg_u32 s46, 1')
    A(f's_cbranch_scc1 {slow}')
    A(f'{back}:')
    blk = [f'{slow}:']
    emit(24, ' sc1', lambda t: blk.append(t))
    blk.append('s_nop 1')
    blk.append(f's_branch {back}')
    outline.append('\n'.join(blk))
def hint_wait(base, n):
    if not n: return
    lp = newlabel('gpoll'); ld = newlabel('gdone')
    A(f"""
v_and_b32 v1, 31, v0
v_lshlrev_b32 v1, 4, v1
s_lshl_b32 s68, s4, 9
s_add_u32 s68, s68, {base}
s_mov_b32 s70, 40
s_cmp_lg_u32 s46, 1
s_cbranch_scc1 {ld}
{lp}:
buffer_load_dwordx4 v[4:7], v1, s[32:35], s68 offen{LF}
s_waitcnt vmcnt(0)
v_cmp_eq_u64 vcc, s[30:31], v[6:7]
s_nop 0
s_bcnt1_i32_b32 s69, vcc_lo
s_cmp_ge_u32 s69, {n}
s_cbranch_scc1 {ld}
s_sleep 2
s_sub_u32 s70, s70, 1
s_cbranch_scc0 {lp}
{ld}:
""")

A("""
s_cmp_ge_u32 s2, 256
s_cbranch_scc1 L_end
s_load_dwordx2 s[8:9], s[0:1], 8
s_load_dwordx16 s[36:51], s[0:1], 0
s_load_dwordx8 s[52:59], s[0:1], 64
""")
mark(0)
if opt['dbg']: A('s_memrealtime s[80:81]')
if opt['hist']: A('s_memrealtime s[94:95]\nv_mov_b32 v159, 0')
A("""
v_lshrrev_b32 v1, 6, v0
v_and_b32 v0, 63, v0
v_readfirstlane_b32 s3, v1
s_and_b32 s4, s2, 7
s_lshr_b32 s79, s2, 6
s_lshl2_add_u32 s6, s4, s79
s_bfe_u32 s7, s2, 0x30003
""")
if opt['cpf'] >= 3:
    A(f'''
s_cmp_lg_u32 s3, 0
s_cbranch_scc1 L_nocpf
s_getpc_b64 s[20:21]
L_pc0:
''')
    if opt['cpf'] == 3:
        A(f'''
s_mul_i32 s68, s7, {2560 if (STAMPS or opt['hist']) else 2048}
v_min_u32 v8, {19 if (STAMPS or opt['hist']) else 15}, v0
v_lshl_add_u32 v8, v8, 7, s68
v_min_u32 v8, L_codeend-L_pc0-4, v8
global_load_dword v10, v8, s[20:21]
''')
    else:
        A(f'''
v_lshlrev_b32 v8, 7, v0
v_add_u32 v9, 8192, v8
v_min_u32 v9, L_codeend-L_pc0-4, v9
global_load_dword v10, v8, s[20:21]
global_load_dword v11, v9, s[20:21]
''')
    A('L_nocpf:')
A("""
v_lshrrev_b32 v2, 3, v0
v_and_b32 v3, 7, v0
v_lshlrev_b32 v3, 4, v3
s_mov_b32 s11, 0x20000
s_cmp_gt_u32 s3, 7
s_cbranch_scc1 L_helper
""")
G = 8; GST = 3072 * 64
GOFF = [60, 61, 62, 63, 64, 65, 66, 67]
A("""
s_lshl3_add_u32 s68, s7, s3
s_mul_i32 s60, s6, 4096
s_add_u32 s60, s60, s68
s_addk_i32 s60, 3584
s_mul_i32 s60, s60, 3072
v_mul_u32_u24 v2, 384, v2
v_add_u32 v1, v2, v3
s_mov_b32 s10, 402653184
""")
if opt['tlb'] & 1: A('s_mul_i32 s69, s3, 983040')
A('s_waitcnt lgkmcnt(0)')
sd(1)
QR = 4; KR = 16
SC = 168 - G
VR = KR + 12 * G
nV1 = min((SC - VR) // 12, G) - (1 if opt['hist'] else 0)
ACC = KR + 12 * (G - 2)
T = ACC
st = dict(n=0); hs = dict(done=0)
def hupto(n):
    hstamp(range(hs['done'], n)); hs['done'] = max(hs['done'], n)
def vreg(g): return VR + 12 * g if g < nV1 else KR + 12 * (g - nV1)
ADP = opt['deep'] or opt['shal']
DC = D + 1 if opt['deep'] else D
def issue_load(kind, g, j, depth):
    if depth and st['n'] >= depth:
        if opt['shal'] and st['n'] > 4 and st['n'] % opt['shper'] == 0:
            l1 = newlabel('sh'); A(f's_bitcmp0_b32 s77, 1\ns_cbranch_scc1 {l1}\ns_waitcnt vmcnt({depth-2})\n{l1}:')
        if opt['deep'] and st['n'] > 3:
            l1 = newlabel('dp'); A(f's_bitcmp1_b32 s77, 0\ns_cbranch_scc1 {l1}\ns_waitcnt vmcnt({depth-1})\n{l1}:\ns_waitcnt vmcnt({depth})')
        else: A(f's_waitcnt vmcnt({depth-1})')
    r = (KR + 12 * g + 4 * j) if kind == 'K' else vreg(g) + 4 * j
    s = 8 if kind == 'K' else 12
    A(f'buffer_load_dwordx4 v[{r}:{r+3}], v1, s[{s}:{s+3}], s{GOFF[g]} offen offset:{128*j} nt')
    if depth and st['n'] >= depth: hupto(st['n'] - DC + 1)
    st['n'] += 1
def touches():
    if opt['tlb'] & 1: A('s_load_dword s20, s[42:43], s69\ns_load_dword s21, s[36:37], 0')
    if opt['tlb'] & 2: A('s_load_dword s22, s[40:41], s60')
if opt['tlb'] & 4: touches()
for j in range(3): issue_load('K', 0, j, D)
if not opt['tlb'] & 4: touches()
sd(2)
A('s_barrier')
A('s_branch L_stream')

A('L_helper:')
sd(1)
A(f'''
v_lshlrev_b32 v1, 3, v0
v_mov_b32 v4, 0
v_mov_b32 v5, 0
ds_write_b64 v1, v[4:5] offset:{QF}
s_sub_u32 s73, s3, 8
s_cmp_eq_u32 s3, 11
s_cbranch_scc1 L_misc
''')
A('''
s_mul_i32 s68, s7, 80
v_add_u32 v7, s68, v2
v_lshlrev_b32 v7, 1, v7
v_mul_u32_u24 v2, 12288, v2
v_add_u32 v2, v2, v3
s_mul_i32 s68, s68, 12288
s_mul_i32 s69, s6, 384
s_add_u32 s68, s68, s69
s_lshl_b32 s69, s73, 7
s_add_u32 s68, s68, s69
v_lshlrev_b32 v1, 2, v0
s_setprio 3
s_waitcnt lgkmcnt(0)
s_barrier
''')
sd(2)
XS = 64; XU = 70; XR = 8; WQ = 24; QA = 80
A(f's_mov_b32 s8, s42\ns_mov_b32 s9, s43\ns_mov_b32 s10, {640 * 6144 * 2}')
for i in range(5): A(f'global_load_dword v{XS+i}, v1, s[36:37] offset:{256*i}')
for r in range(10): A(f'global_load_ushort v{XR+r}, v7, s[36:37] offset:{16*r}')
sd(3)
for r in range(10):
    A(f'buffer_load_dwordx4 v[{WQ+4*r}:{WQ+4*r+3}], v2, s[8:11], s68 offen nt')
    if r < 9: A('s_add_u32 s68, s68, 98304')
A(f's_load_dwordx2 s[28:29], s[58:59], {EP}')
sd(4)
A('s_branch L_q2')
A('L_misc:')
if opt['cpf'] in (1, 2):
    A(f'''
s_getpc_b64 s[20:21]
L_pc0:
''')
    if opt['cpf'] == 1:
        A(f'''
s_lshr_b32 s68, s2, 3
s_lshl_b32 s68, s68, 9
v_lshlrev_b32 v8, 7, v0
v_and_b32 v8, 0x1ff, v8
v_add_u32 v8, s68, v8
v_min_u32 v8, L_codeend-L_pc0-4, v8
global_load_dword v10, v8, s[20:21]
''')
    else:
        A(f'''
v_lshlrev_b32 v8, 7, v0
v_add_u32 v9, 8192, v8
v_min_u32 v9, L_codeend-L_pc0-4, v9
global_load_dword v10, v8, s[20:21]
global_load_dword v11, v9, s[20:21]
''')
A(f'''
s_setprio 3
s_waitcnt lgkmcnt(0)
s_barrier
s_load_dwordx2 s[28:29], s[58:59], {EP}
s_branch L_misc2
''')

A('L_stream:')
sd(3)
for g in range(1, G):
    A(f's_add_u32 s{GOFF[g]}, s{GOFF[g-1]}, {GST}')
    for j in range(3):
        issue_load('K', g, j, D)
        if g == 1 and j == 0: sd(4)
        if g == 2 and j == 0: sd(5)
        if g == 1 and j == 0:
            A(f's_load_dwordx2 s[28:29], s[58:59], {EP}')
            ws_srds(); srd(12, 40, 402653184)
            if ADP:
                A(f'''s_getreg_b32 s76, hwreg(HW_REG_XCC_ID)
s_and_b32 s76, s76, 7
s_lshr_b32 s77, {opt['deep']}, s76
s_and_b32 s77, s77, 1
s_lshr_b32 s76, {opt['shal']}, s76
s_and_b32 s76, s76, 1
s_lshl1_add_u32 s77, s76, s77''')
mark(1)
nv = 0; NV = 3 * G
for n in range(min(opt['Vpre'], 3 * nV1)):
    issue_load('V', nv // 3, nv % 3, D); nv += 1
mktag()
A('v_and_b32 v2, 3, v0\nv_min_u32 v2, 2, v2\nv_lshlrev_b32 v2, 3, v2')
def body():
    A(f'ds_read_b32 v{QR}, v2 offset:{QF}')
    A('s_waitcnt lgkmcnt(0)')
    A(f'v_cmp_eq_u32 vcc, 0, v{QR}')
spin(body, 1)
A(f'''
ds_read_b128 v[{QR}:{QR+3}], v3 offset:{QL}
ds_read_b128 v[{QR+4}:{QR+7}], v3 offset:{QL+128}
ds_read_b128 v[{QR+8}:{QR+11}], v3 offset:{QL+256}
''')
for g in range(G): A(f'v_mov_b32 v{SC+g}, 0')
A(f's_waitcnt vmcnt({nv}) lgkmcnt(0)')
hupto(3 * G)
for gs in (range(4), range(4, G)):
    for i in range(12):
        for g in gs:
            A(f'v_dot2c_f32_bf16 v{SC+g}, v{KR+12*g+i}, v{QR+i}')
allreduce8('v_add_f32', [SC + g for g in range(G)])
A(f's_mov_b32 s68, {f32(192 ** -0.5)}')
A('v_mov_b32 v2, 0')
for g in range(G): A(f'v_cvt_pk_bf16_f32 v{SC+g}, v2, v{SC+g}')
for g in range(G): A(f'v_mul_f32 v{SC+g}, s68, v{SC+g}')
for g in range(G): A(f'v_cvt_pk_bf16_f32 v{SC+g}, v2, v{SC+g}')
A(f'v_max_f32 v4, v{SC}, v{SC+1}')
for g in range(2, G, 2): A(f'v_max3_f32 v4, v4, v{SC+g}, v{SC+g+1}')
A(f'v_max_f32_dpp v4, v4, v4 row_ror:8 {DPPM}')
allreduce_rows('v_max_f32', [4], [T])
A(f's_mov_b32 s68, {f32(LOG2E)}')
for g in range(G): A(f'v_sub_f32 v{SC+g}, v{SC+g}, v4')
for g in range(G): A(f'v_mul_f32 v{SC+g}, s68, v{SC+g}')
for g in range(G): A(f'v_exp_f32 v{SC+g}, v{SC+g}')
A(f'v_add_f32 v5, v{SC}, v{SC+1}')
for g in range(2, G): A(f'v_add_f32 v5, v5, v{SC+g}')
A(f'v_add_f32_dpp v5, v5, v5 row_ror:8 {DPPM}')
allreduce_rows('v_add_f32', [5], [T])
A(f'''
s_lshl_b32 s69, s3, 4
v_mov_b32 v{T}, s69
v_mov_b32 v6, 1
v_mov_b32 v7, 1
ds_write_b128 v{T}, v[4:7] offset:{SL}
''')
mark(2)
for g in range(G): A(f'v_cvt_pk_bf16_f32 v{SC+g}, v{SC+g}, v2')
for i in range(24): A(f'v_mov_b32 v{ACC+i}, 0')
A('''
v_and_b32 v8, 7, v0
v_lshlrev_b32 v8, 5, v8
v_lshrrev_b32 v9, 4, v0
v_lshl_add_u32 v8, v9, 3, v8
s_mul_i32 s69, s3, 768
v_add_u32 v8, s69, v8
v_mov_b32 v11, 1
''')
def pv(idx):
    g, j = divmod(idx, 3)
    r = vreg(g) + 4 * j
    if j == 0: A(f'v_lshlrev_b32 v10, 16, v{SC+g}')
    for e in range(4):
        A(f'v_dot2c_f32_bf16 v{ACC+8*j+2*e}, v{r+e}, v{SC+g}')
        A(f'v_dot2c_f32_bf16 v{ACC+8*j+2*e+1}, v{r+e}, v10')
done_idx = -1; pv_next = 0
assert nv < NV - opt['t1'] and opt['t1'] >= opt['t2']
while nv < NV:
    issue_load('V', nv // 3, nv % 3, D)
    done_idx = nv - DC
    nv += 1
    for key, off in (('t1', 8), ('t2', 4)):
        if nv == NV - opt[key]:
            A(f's_mov_b64 exec, 1\nds_add_u32 v2, v11 offset:{CNT+off}\ns_mov_b64 exec, -1')
    cnt = 0
    while pv_next <= done_idx and cnt < 2:
        pv(pv_next); pv_next += 1; cnt += 1
def scale_factor():
    def body():
        A(f'ds_read_b128 v[12:15], v2 offset:{GS}')
        A(f'ds_read_b32 v7, v2 offset:{INFO}')
        A('s_waitcnt lgkmcnt(0)')
        A('v_cmp_eq_u32 vcc, 0, v15')
    spin(body, 1)
    A('v_sub_f32 v9, v4, v12\nv_mul_f32 v9, s68, v9\nv_exp_f32 v9, v9\nv_readfirstlane_b32 s46, v7\nv_mul_f32 v9, v9, v13')
    A(f'''
v_min_u32 v12, 47, v0
v_lshlrev_b32 v13, 7, v12
v_lshlrev_b32 v12, 4, v12
s_mul_i32 s74, s6, 6144
s_lshl4_add_u32 s74, s7, s74
s_add_u32 s74, s74, {OP}
s_lshl_b32 s75, s4, 9
s_lshl4_add_u32 s75, s79, s75
s_add_u32 s75, s75, {DN2}
s_mov_b32 s22, 0xaaaaaaaa
s_mov_b32 s23, 0xaaaaaaaa
v_mov_b32 v14, s30
v_mov_b32 v15, s31
''')
def reduce_j(j):
    for e in range(4): A(f'{S32} v{ACC+8*j+e}, v{ACC+8*j+e+4}')
    for e in range(4): A(f'v_add_f32 v{ACC+8*j+e}, v{ACC+8*j+e}, v{ACC+8*j+e+4}')
    for e in range(2): A(f'{S16} v{ACC+8*j+e}, v{ACC+8*j+e+2}')
    for e in range(2): A(f'v_add_f32 v{ACC+8*j+e}, v{ACC+8*j+e}, v{ACC+8*j+e+2}')
    for e in range(2): A(f'v_add_f32_dpp v{ACC+8*j+e}, v{ACC+8*j+e}, v{ACC+8*j+e} row_ror:8 {DPPM}')
    for e in range(2): A(f'v_mul_f32 v{ACC+8*j+e}, v9, v{ACC+8*j+e}')
    A(f'ds_write_b64 v8, v[{ACC+8*j}:{ACC+8*j+1}] offset:{OL+256*j}')
fd = False
while pv_next < NV:
    if pv_next >= NV - 3 and not fd:
        scale_factor(); fd = True
    if pv_next > done_idx:
        A(f's_waitcnt vmcnt({NV - 1 - pv_next})')
        hupto(3 * G + pv_next + 1)
        done_idx = pv_next
    pv(pv_next); pv_next += 1
    if pv_next > NV - 3: reduce_j((pv_next - 1) % 3)
A(f'''
s_mov_b64 exec, 1
ds_add_rtn_u32 v10, v2, v11 offset:{CNT}
s_waitcnt lgkmcnt(0)
v_readfirstlane_b32 s68, v10
s_mov_b64 exec, -1
s_cmp_lg_u32 s68, 7
s_cbranch_scc1 L_nopub
''')
for w in range(8): A(f'ds_read_b128 v[{16+4*w}:{19+4*w}], v12 offset:{OL+768*w}')
for w in range(0, 8, 2):
    A(f's_waitcnt lgkmcnt({6-w})')
    for e in range(4): A(f'v_add_f32 v{16+4*w+e}, v{16+4*w+e}, v{20+4*w+e}')
    if w == 2 or w == 6:
        for e in range(4): A(f'v_add_f32 v{8+4*w+e}, v{8+4*w+e}, v{16+4*w+e}')
for e in range(4): A(f'v_add_f32 v{4+e}, v{16+e}, v{32+e}')
A('''
v_cvt_pk_bf16_f32 v8, v4, v5
v_cvt_pk_bf16_f32 v9, v6, v7
v_cndmask_b32 v4, v8, v14, s[22:23]
v_cndmask_b32 v5, v9, v15, s[22:23]
v_cndmask_b32 v6, v14, v8, s[22:23]
v_cndmask_b32 v7, v15, v9, s[22:23]
''')
publish([((1 << 48) - 1, 'buffer_store_dwordx4 v[4:7], v13, @, s74 offen')])
mark(3)
A('s_mov_b64 exec, 1')
if opt['nB'] and opt['hintB'] == 2: A('buffer_store_dwordx4 v[4:7], v12, s[32:35], s75 offen')
if opt['pubwait']: A('s_waitcnt vmcnt(0)')
if opt['pubwait'] and opt['opdiag']: mark(1)
A(f'ds_write_b32 v2, v11 offset:{INFO + 4}')
A('s_mov_b64 exec, -1')
flush([(1, 9), (2, 10), (3, 16)])
A('L_nopub:')
if STAMPS:
    A('s_cmp_lg_u32 s3, 0\ns_cbranch_scc1 L_nost0')
    flush([(0, 0)])
    A('L_nost0:')
if opt['abl'] & 16: A('s_endpgm')
A('s_cmp_eq_u32 s3, 7\ns_cbranch_scc1 L_end')
get_role(1)
A('''
s_cmp_lt_u32 s5, 12
s_cbranch_scc1 L_ffn
s_cmp_lt_u32 s5, 20
s_cbranch_scc1 L_end
s_cmp_lt_u32 s3, 5
s_cbranch_scc1 L_f1
s_endpgm
''')

A('L_q2:')
A('s_mov_b32 s69, 0xffff0000')
ws_srds()
mktag()
QX = 0
if opt['prew'] & 1 and not opt['abl'] & 2:
    A(f'''
s_not_b32 s20, s30
v_mov_b32 v92, s20
v_mov_b32 v93, s20
v_mov_b32 v94, s20
v_mov_b32 v95, s20
v_lshlrev_b32 v91, 4, v0
s_lshl_b32 s64, s71, 11
s_lshl_b32 s65, s73, 9
s_add_u32 s64, s64, s65
s_add_u32 s64, s64, {QP}
s_mov_b32 exec_hi, 0
buffer_store_dwordx4 v[92:95], v91, s[32:35], s64 offen
s_mov_b32 exec_hi, -1
''')
    QX = 1
if opt['dyn'] in (4, 5):
    A(f'''
s_mul_i32 s64, s4, 768
s_add_u32 s64, s64, {TK}
s_add_u32 s65, s79, s73
s_cmp_eq_u32 s65, 0
s_cselect_b32 s64, s64, {WSN}
v_mov_b32 v92, 0
v_mov_b32 v93, 0
v_mov_b32 v94, s30
v_mov_b32 v95, s31
s_mov_b64 exec, 1
buffer_store_dwordx4 v[92:95], off, s[24:27], s64 sc1
s_mov_b64 exec, -1
''')
    QX += 1
if opt['dyn'] == 3:
    A(f'''
s_mul_i32 s64, s6, 768
s_add_u32 s64, s64, {TK}
s_add_u32 s65, s7, s73
s_cmp_eq_u32 s65, 0
s_cselect_b32 s64, s64, {WSN}
v_mov_b32 v91, 0
s_mov_b64 exec, 1
buffer_store_dword v91, off, s[24:27], s64 sc1
s_mov_b64 exec, -1
''')
    QX += 1
A(f's_waitcnt vmcnt({20+QX})')
sd(5)
for i in range(5):
    A(f'v_lshlrev_b32 v{XU+2*i}, 16, v{XS+i}')
    A(f'v_and_b32 v{XU+1+2*i}, s69, v{XS+i}')
A(f'''
v_add_f32 v4, v{XU}, v{XU+1}
v_add_f32 v5, v{XU+2}, v{XU+3}
v_add_f32 v6, v{XU+4}, v{XU+5}
v_add_f32 v7, v{XU+6}, v{XU+7}
v_add_f32 v4, v4, v5
v_add_f32 v6, v6, v7
v_add_f32 v5, v{XU+8}, v{XU+9}
v_add_f32 v4, v4, v6
v_add_f32 v4, v4, v5
''')
allreduce64('v_add_f32', [4], [5])
A(f'v_mul_f32 v4, {f32(1.0/640)}, v4')
for i in range(10): A(f'v_sub_f32 v{XU+i}, v{XU+i}, v4')
A(f'v_mul_f32 v5, v{XU}, v{XU}')
for i in range(1, 10): A(f'v_fmac_f32 v5, v{XU+i}, v{XU+i}')
allreduce64('v_add_f32', [5], [6])
A(f'v_mul_f32 v5, {f32(1.0/640)}, v5')
bf16r(4, 4); bf16r(5, 5)
A(f'v_add_f32 v5, {f32(1e-5)}, v5')
bf16r(5, 5)
A('v_sqrt_f32 v5, v5')
bf16r(5, 5)
A('v_rcp_f32 v5, v5')
A('v_mov_b32 v6, 0')
A(f's_waitcnt vmcnt({10+QX})')
for r in range(10): A(f'v_lshlrev_b32 v{XR+r}, 16, v{XR+r}')
for r in range(10): A(f'v_sub_f32 v{XR+r}, v{XR+r}, v4')
for r in range(10): A(f'v_cvt_pk_bf16_f32 v{XR+r}, v6, v{XR+r}')
for r in range(10): A(f'v_mul_f32 v{XR+r}, v{XR+r}, v5')
for r in range(10):
    A(f'v_cvt_pk_bf16_f32 v{XU+r}, v6, v{XR+r}')
    A(f'v_cvt_pk_bf16_f32 v{XR+r}, v{XR+r}, v6')
for e in range(8): A(f'v_mov_b32 v{QA+e}, 0')
A(f'''
v_and_b32 v90, 7, v0
v_lshrrev_b32 v6, 4, v0
v_lshl_add_u32 v90, v90, 2, v6
v_lshlrev_b32 v90, 4, v90
s_lshl_b32 s64, s71, 11
s_lshl_b32 s69, s73, 9
s_add_u32 s69, s69, {QP}
s_add_u32 s64, s64, s69
''')
for r in range(10):
    A(f's_waitcnt vmcnt({9-r+QX if r < 9 else 0})')
    hstamp(r)
    for e in range(4):
        A(f'v_dot2c_f32_bf16 v{QA+2*e}, v{WQ+4*r+e}, v{XR+r}')
        A(f'v_dot2c_f32_bf16 v{QA+2*e+1}, v{WQ+4*r+e}, v{XU+r}')
mark(1)
for e in range(4): A(f'{S32} v{QA+e}, v{QA+e+4}')
for e in range(4): A(f'v_add_f32 v{QA+e}, v{QA+e}, v{QA+e+4}')
for e in range(2): A(f'{S16} v{QA+e}, v{QA+e+2}')
for e in range(2): A(f'v_add_f32 v{QA+e}, v{QA+e}, v{QA+e+2}')
for e in range(2): A(f'v_add_f32_dpp v{QA+e}, v{QA+e}, v{QA+e} row_ror:8 {DPPM}')
A(f'v_mov_b32 v{QA+2}, s30\nv_mov_b32 v{QA+3}, s31')
QM = 0x00ff00ff00ff00ff
if not opt['forceslow'] and not opt['abl'] & 2:
    setexec(QM)
    A(f'buffer_store_dwordx4 v[{QA}:{QA+3}], v90, s[32:35], s64 offen')
    setexec(ALL)
A('''
v_and_b32 v3, 31, v0
v_lshrrev_b32 v2, 5, v0
v_lshlrev_b32 v2, 11, v2
v_lshl_add_u32 v2, v3, 4, v2
s_lshl_b32 s68, s6, 14
s_add_u32 s60, s68, s69
s_add_u32 s61, s60, 4096
s_add_u32 s62, s60, 8192
s_add_u32 s63, s60, 12288
v_lshlrev_b32 v3, 2, v3
s_lshl_b32 s69, s73, 7
v_add_u32 v3, s69, v3
v_mov_b32 v1, 0
s_mov_b32 s65, 0
''')
def q_lazy():
    skip = newlabel('qlazy')
    A(f'''
ds_read_b32 v4, v1 offset:{INFO}
s_waitcnt lgkmcnt(0)
v_readfirstlane_b32 s46, v4
s_sub_u32 s68, s46, s65
s_cmp_lg_u32 s68, 2
s_cbranch_scc1 {skip}
''')
    setexec(QM)
    A(f'buffer_store_dwordx4 v[{QA}:{QA+3}], v90, s[24:27], s64 offen sc1')
    setexec(ALL)
    A(f's_mov_b32 s65, 1\n{skip}:')
def body():
    for n in range(4):
        A(f'buffer_load_dwordx4 v[{8+4*n}:{11+4*n}], v2, s[16:19], s{60+n} offen{LF}')
    A('s_waitcnt vmcnt(0)')
    tagcheck([10, 14, 18, 22])
sleep(opt['qdelay'])
if not opt['abl'] & 34: spin2(body, opt['qsleep'], retry=q_lazy)
mark(2)
A(f'''
v_add_f32 v8, v8, v12
v_add_f32 v9, v9, v13
v_add_f32 v16, v16, v20
v_add_f32 v17, v17, v21
v_add_f32 v8, v8, v16
v_add_f32 v9, v9, v17
''')
swapreduce(S32, 'v_add_f32', [8, 9], [10, 11])
A(f'''
v_cvt_pk_bf16_f32 v8, v8, v9
ds_write_b32 v3, v8 offset:{QL}
s_lshl_b32 s69, s73, 3
v_mov_b32 v4, s69
v_mov_b32 v6, 1
s_waitcnt lgkmcnt(0)
ds_write_b32 v4, v6 offset:{QF}
''')
get_mode()
q_lazy()
if opt['abl'] & 16: A('s_endpgm')
A('s_cmp_lg_u32 s3, 8\ns_cbranch_scc1 L_role')
if opt['dyn'] == 1:
    lds_wait_ge(CNT + 8, 8, 2)
    A('''
s_lshl_b32 s68, s4, 3
s_lshl_b64 s[20:21], 1, s68
v_mov_b32 v6, s20
v_mov_b32 v7, s21
s_mov_b64 exec, 1
global_atomic_add_x2 v[4:5], v1, v[6:7], s[56:57] sc0 sc1
s_waitcnt vmcnt(0)
v_readfirstlane_b32 s20, v4
v_readfirstlane_b32 s21, v5
s_lshr_b64 s[22:23], s[20:21], s68
s_and_b32 s22, s22, 31
s_and_b32 s23, s20, 0xff
''')
    for i in range(1, 8):
        A(f's_bfe_u32 s69, s{20 + i // 4}, {(8 << 16) | (8 * (i % 4))}\ns_min_u32 s23, s23, s69')
    A('s_lshl_b32 s23, s23, 8\ns_add_u32 s22, s22, s23\ns_add_u32 s22, s22, 1\nv_mov_b32 v5, s22')
elif opt['dyn'] == 2:
    lds_wait_ge(CNT + 8, 8, 2)
    A('''
s_lshl_b32 s68, s4, 5
v_mov_b32 v6, s68
v_mov_b32 v5, 1
s_mov_b64 exec, 1
global_atomic_add v5, v6, v5, s[56:57] sc0 sc1
s_waitcnt vmcnt(0)
v_and_b32 v5, 31, v5
v_add_u32 v5, 1, v5
''')
elif opt['dyn'] == 4:
    A(f's_mul_i32 s66, s4, 768\ns_add_u32 s66, s66, {TK}')
    def body():
        A('buffer_load_dwordx4 v[4:7], off, s[24:27], s66 sc1')
        A('s_waitcnt vmcnt(0)')
        tagcheck([6])
    spin(body, 20)
    lds_wait_ge(CNT + 8, 8, 2)
    A(f'''
v_mov_b32 v5, 1
s_mov_b64 exec, 1
buffer_atomic_add v5, off, s[24:27], s66 sc0 sc1
s_waitcnt vmcnt(0)
v_and_b32 v5, 31, v5
v_add_u32 v5, 1, v5
''')
elif opt['dyn'] == 5:
    A(f'''
s_mul_i32 s66, s4, 768
s_add_u32 s66, s66, {TK}
s_mov_b32 s70, {SPIN}
s_load_dwordx4 s[20:23], s[58:59], s66
s_branch L_tkw0
L_tkchk:
s_load_dwordx4 s[20:23], s[58:59], s66 glc
L_tkw0:
s_waitcnt lgkmcnt(0)
s_cmp_eq_u64 s[22:23], s[30:31]
s_cbranch_scc1 L_tkok
s_sleep 20
s_sub_u32 s70, s70, 1
s_cbranch_scc0 L_tkchk
L_tkok:
''')
    lds_wait_ge(CNT + 8, 8, 1)
    A(f'''
s_mov_b32 s20, 1
s_atomic_add s20, s[58:59], s66 glc
''')
    if opt['mA'] or opt['mB']:
        A(f'''
s_load_dword s21, s[56:57], 0
s_waitcnt lgkmcnt(0)
s_cmp_eq_u32 s20, {opt['mA'] - 1}
s_cselect_b32 s22, 1, 0
s_cmp_eq_u32 s20, {opt['mB'] - 1}
s_cselect_b32 s23, 0x100, 0
s_or_b32 s22, s22, s23
s_cbranch_scc0 L_nog
s_atomic_add s22, s[56:57], 0
L_nog:
s_lshl_b32 s21, s21, 8
''')
    else: A('s_mov_b32 s21, 0')
    A(f'''
s_mov_b64 exec, 1
s_waitcnt lgkmcnt(0)
s_and_b32 s20, s20, 31
s_add_u32 s20, s20, 1
s_add_u32 s20, s20, s21
v_mov_b32 v5, s20
''')
elif opt['dyn'] == 3:
    lds_wait_ge(CNT + 8, 8, 2)
    A(f'''
s_mul_i32 s68, s6, 768
s_add_u32 s68, s68, {TK}
v_mov_b32 v5, 1
s_mov_b64 exec, 1
buffer_atomic_add v5, off, s[24:27], s68 sc0 sc1
s_and_b32 s68, s6, 3
s_add_u32 s68, s68, 1
s_waitcnt vmcnt(0)
v_and_b32 v5, 7, v5
v_lshl_add_u32 v5, v5, 2, s68
''')
else:
    A('s_add_u32 s68, s79, 1\nv_mov_b32 v5, s68\ns_mov_b64 exec, 1')
A(f'''
ds_write_b32 v1, v5 offset:{ROLE}
s_mov_b64 exec, -1
''')
mark(4)
flush([(1, 1), (2, 2), (4, 6)])
A('s_branch L_role')

A('L_misc2:')
A('s_getreg_b32 s64, hwreg(HW_REG_XCC_ID)')
ws_srds()
NP = opt['nprobe']
if opt['near']:
    A(f'''
v_and_b32 v1, 31, v0
v_lshlrev_b32 v1, 4, v1
v_lshrrev_b32 v2, 5, v0
v_lshl_add_u32 v1, v2, 13, v1
s_lshl_b32 s66, s2, 9
s_and_b32 s68, s66, 0xffffe000
s_add_u32 s66, s66, s68
s_add_u32 s66, s66, {PR}
v_mov_b32 v6, 0
v_mov_b32 v7, 0
''')
    A(f"s_cmp_ge_u32 s79, {opt['npw']}\ns_cbranch_scc1 L_nopr0")
    setexec(((1 << (8 * NP)) - 1) * 0x100000001)
    A('buffer_store_dwordx4 v[4:7], v1, s[24:27], s66 offen sc1')
    setexec(ALL)
    A('L_nopr0:')
mktag()
A(f'''
{'s_mov_b32 s46, 1' + chr(10) + 's_branch L_idset' if opt['abl'] & 1 else ''}
s_and_b32 s64, s64, 15
v_mov_b32 v4, s30
v_mov_b32 v5, s31
v_mov_b32 v6, s64
v_mov_b32 v7, s64
s_lshl_b32 s68, s4, 9
s_add_u32 s68, s68, {ID}
s_lshl_b32 s69, s79, 4
v_mov_b32 v1, s69
s_mov_b64 exec, 1
buffer_store_dwordx4 v[4:7], v1, s[32:35], s68 offen
s_mov_b64 exec, -1
v_and_b32 v1, 31, v0
v_lshlrev_b32 v1, 4, v1
s_mov_b32 s70, {opt['idtries']}
s_mov_b32 s46, 2
L_idpoll:
s_sleep {opt['idsleep']}
buffer_load_dwordx4 v[8:11], v1, s[32:35], s68 offen{LF}
s_waitcnt vmcnt(0)
v_cmp_ne_u64 vcc, s[30:31], v[8:9]
s_nop 0
s_cbranch_vccz L_iddone
s_sub_u32 s70, s70, 1
s_cbranch_scc0 L_idpoll
s_branch L_idset
L_iddone:
v_cmp_ne_u32 vcc, s64, v10
s_nop 0
s_cbranch_vccnz L_idset
s_mov_b32 s46, {2 if opt['forceslow'] else 1}
L_idset:
v_mov_b32 v1, 0
v_mov_b32 v4, s46
ds_write_b32 v1, v4 offset:{INFO}
''')
mark(1)
if opt['near']:
    A(f's_mov_b32 s60, -1\ns_mov_b32 s61, -1\ns_lshl_b32 s67, s4, 9\ns_add_u32 s67, s67, {PV}')
    A(f"s_cmp_ge_u32 s79, {opt['npw']}\ns_cbranch_scc1 L_nopr1\ns_waitcnt lgkmcnt(0)")
    for i in range(NP):
        for c in range(2):
            A(f'''
s_add_u32 s69, s66, {128*i + 8192*c}
s_memtime s[62:63]
s_waitcnt lgkmcnt(0)
s_load_dword s65, s[58:59], s69
s_waitcnt lgkmcnt(0)
s_memtime s[20:21]
s_waitcnt lgkmcnt(0)
s_sub_u32 s62, s20, s62
s_min_u32 s{60+c}, s{60+c}, s62
''')
    if opt['share']:
        A(f'''
s_lshl_b32 s69, s79, 4
v_mov_b32 v1, s69
v_mov_b32 v4, s60
v_mov_b32 v5, s61
v_mov_b32 v6, s30
v_mov_b32 v7, s31
s_mov_b64 exec, 1
buffer_store_dwordx4 v[4:7], v1, s[32:35], s67 offen
s_mov_b64 exec, -1
''')
    A('L_nopr1:')
else:
    A('s_mov_b32 s47, 0')
mark(2)
A('v_and_b32 v1, 7, v0\nv_lshlrev_b32 v1, 4, v1')
def body():
    A(f'ds_read_b128 v[4:7], v1 offset:{SL}')
    A('s_waitcnt lgkmcnt(0)')
    A('v_cmp_eq_u32 vcc, 0, v7')
spin(body, 4)
def combine_stats():
    A(f's_mov_b32 s68, {f32(LOG2E)}')
    A('v_mov_b32 v2, v4')
    allreduce8('v_max_f32', [2])
    A('v_sub_f32 v4, v4, v2\nv_mul_f32 v4, s68, v4\nv_exp_f32 v4, v4\nv_mul_f32 v3, v4, v5')
    allreduce8('v_add_f32', [3])
combine_stats()
A(f'''
s_lshl_b32 s68, s71, 4
s_add_u32 s68, s68, {ST}
v_mov_b32 v4, s30
v_mov_b32 v5, s31
''')
publish([(1, 'buffer_store_dwordx4 v[2:5], v1, @, s68 offen')])
if opt['near']:
    if opt['share']:
        A(f'''
s_cmp_lg_u32 s46, 1
s_cbranch_scc1 L_noshare
v_and_b32 v8, {7 if opt['npw'] <= 8 else 31}, v0
v_lshlrev_b32 v8, 4, v8
buffer_load_dwordx4 v[4:7], v8, s[32:35], s67 offen{LF}
s_waitcnt vmcnt(0)
v_cmp_eq_u64 vcc, s[30:31], v[6:7]
v_cndmask_b32 v4, -1, v4, vcc
v_cndmask_b32 v5, -1, v5, vcc
''')
        allreduce16('v_min_u32', [4, 5])
        swapreduce(S16, 'v_min_u32', [4, 5], [6, 7])
        A('''
v_readfirstlane_b32 s62, v4
v_readfirstlane_b32 s63, v5
s_min_u32 s60, s60, s62
s_min_u32 s61, s61, s63
L_noshare:
''')
    A('s_cmp_lt_u32 s61, s60\ns_cselect_b32 s47, 8192, 0')
    if opt['fixnear'] >= 0: A(f"s_mov_b32 s47, {8192*opt['fixnear']}")
    if STAMPS: A('s_mov_b32 s90, s60\ns_mov_b32 s91, s61')
A(f'v_mov_b32 v8, 0\nv_mov_b32 v4, s47\nds_write_b32 v8, v4 offset:{NEAR}')
A(f's_lshl_b32 s74, s6, 7\ns_add_u32 s74, s74, {ST}')
def body():
    sleep(opt['stsleep'])
    A(f'buffer_load_dwordx4 v[4:7], v1, s[16:19], s74 offen{LF}')
    A('s_waitcnt vmcnt(0)')
    tagcheck([6])
spin2(body, 0, local_only=True)
mark(3)
combine_stats()
A(f'''
v_rcp_f32 v3, v3
v_mov_b32 v4, 1
v_mov_b32 v5, 1
v_mov_b32 v1, 0
ds_write_b128 v1, v[2:5] offset:{GS}
''')
flush([(1, 3), (2, 4), (3, 5), (5, 7)])
if opt['abl'] & 16: A('s_endpgm')
if opt['nA'] or (opt['nB'] and opt['hintB'] == 1):
    lds_wait_ge(CNT + 4, 8, 1)
    A(f'''
s_lshl_b32 s68, s4, 9
s_lshl4_add_u32 s68, s79, s68
s_add_u32 s68, s68, {DN1}
v_mov_b32 v6, s30
v_mov_b32 v7, s31
s_mov_b64 exec, 1
buffer_store_dwordx4 v[4:7], v1, s[32:35], s68 offen
s_mov_b64 exec, -1
''')

A('L_role:')
get_role(opt['rsleep'])
A('s_cmp_lt_u32 s5, 20\ns_cbranch_scc0 ' + ('L_tiles' if opt['tearly'] else 'L_end'))
BW = 64
XM = 52
def tr_addr(dst, tmp):
    A(f'''
v_lshrrev_b32 v{dst}, 4, v0
v_lshlrev_b32 v{dst}, 10, v{dst}
v_bfe_u32 v{tmp}, v0, 2, 2
v_lshl_add_u32 v{dst}, v{tmp}, 7, v{dst}
v_and_b32 v{tmp}, 3, v0
v_lshl_add_u32 v{dst}, v{tmp}, 3, v{dst}
''')
srd(12, 44, 6144 * 640 * 2)
tr_addr(24, 25)
A(f'''
s_cmp_ge_u32 s5, 10
s_cselect_b32 s76, 1, 0
s_mul_i32 s77, s76, 10
s_sub_u32 s77, s5, s77
s_lshl1_add_u32 s78, s4, s76
s_lshl2_add_u32 s78, s78, s73
v_lshrrev_b32 v2, 3, v0
v_mul_u32_u24 v26, 1280, v2
v_and_b32 v3, 7, v0
v_lshl_add_u32 v26, v3, 4, v26
s_mul_i32 s60, s78, {96*1280}
s_lshl_b32 s69, s77, 7
s_add_u32 s60, s60, s69
s_mul_i32 s61, s73, 12288
v_add_u32 v24, s61, v24
s_add_u32 s61, s61, {WL}
v_lshlrev_b32 v60, 4, v0
s_mul_i32 s74, s78, 3072
s_add_u32 s74, s74, {OP}
v_lshlrev_b32 v62, 2, v0
s_lshl_b32 s68, s73, 8
v_add_u32 v61, s68, v62
s_mul_i32 s75, s4, 5120
s_lshl_b32 s69, s5, 8
s_add_u32 s75, s75, s69
s_and_b32 s69, s75, 0xffffe000
s_add_u32 s75, s75, s69
s_add_u32 s75, s75, {YP}
s_xor_b32 s62, s47, 8192
s_add_u32 s62, s62, s75
s_add_u32 s63, s47, s75
s_mov_b32 s66, 0xff00ff00
s_mov_b32 s67, 0xff00ff00
v_mov_b32 v50, s30
v_mov_b32 v51, s31
v_cndmask_b32 v{XM}, 0, v50, s[66:67]
v_cndmask_b32 v{XM+1}, 0, v51, s[66:67]
v_cndmask_b32 v{XM+2}, v50, 0, s[66:67]
v_cndmask_b32 v{XM+3}, v51, 0, s[66:67]
''')
AO = 8
RF = ' sc1' if opt['fnt'] else LF
def op_loads(srdn, fl=LF, AO=8):
    for t in range(3):
        A(f'buffer_load_dwordx4 v[{AO+4*t}:{AO+4*t+3}], v60, s[{srdn}:{srdn+3}], s74 offen offset:{1024*t}{fl}')
if opt['prer'] == 2: op_loads(32)
lds_wait_ge(CNT + 4, 8, 1)
hint_wait(DN1, opt['nA'])
mark(3)
if opt['prer'] == 1: op_loads(32)
DW = opt['DWO'] if not opt['nb1'] else 12
def wo_issue(DW, nb1):
    for n in range(12):
        if n >= DW: A(f's_waitcnt vmcnt({DW-1})')
        if nb1 and n == nb1: lds_wait_ge(INFO + 4, 1, 1)
        A('s_mov_b32 m0, s61')
        A('buffer_load_dwordx4 v26, s[12:15], s60 offen nt lds')
        if n < 11:
            A(f's_add_u32 s60, s60, {8*1280}')
            A('s_add_u32 s61, s61, 1024')
if opt['mA']:
    A(f"s_and_b32 s68, s28, 0xff\ns_cmp_ge_u32 s68, {opt['GA']}\ns_cbranch_scc1 L_wofast")
    wo_issue(opt['gA'], 0)
    A('s_branch L_wodone\nL_wofast:')
wo_issue(DW, opt['nb1'])
A('L_wodone:')
if opt['oppipe']:
    A(f's_cmp_eq_u32 s46, 1\ns_cselect_b32 s16, s32, s24\ns_cselect_b32 s17, s33, s25\ns_mov_b32 s18, {WSN}\ns_mov_b32 s19, 0x20000\ns_mov_b32 s70, {SPIN}')
    assert opt['ope'] >= 0
E = 0
for t in range(3):
    if t == 2 and opt['ope'] >= 0:
        A(f"s_waitcnt vmcnt({opt['ope']})")
        if opt['opdiag']: mark(1)
        op_loads(32, RF); E = 3
    if opt['hist']:
        for m in range(11 - 4 * t, 7 - 4 * t, -1):
            if m < DW: A(f's_waitcnt vmcnt({m + E})'); hstamp(21 - m)
    A(f's_waitcnt vmcnt({8 - 4 * t + E})')
    for u in range(4):
        r = BW + 4 * (4 * t + u)
        A(f'ds_read_b64_tr_b16 v[{r}:{r+1}], v24 offset:{WL + 4096*t + 32*u}')
        A(f'ds_read_b64_tr_b16 v[{r+2}:{r+3}], v24 offset:{WL + 4096*t + 32*u + 512}')
mark(4)
if not E:
    lds_wait_ge(CNT, 8, 1)
    if opt['opdiag']: mark(1)
    op_loads(32, RF if opt['prer'] else LF)
else: A('s_waitcnt lgkmcnt(8)' if not STAMPS else 's_waitcnt lgkmcnt(0)')
def op_use(AO, later):
    for t in range(3):
        A(f's_waitcnt vmcnt({2-t+later})' + (' lgkmcnt(0)' if t == 2 else ''))
        q = AO + 4 * t
        for e in range(4): A(f'v_xor_b32 v{q+e}, v{q+e}, v{XM+e}')
        for u in range(4):
            r = BW + 4 * (4 * t + u)
            c = '0' if t == 0 else f'v[{32+4*u}:{35+4*u}]'
            A(f'v_mfma_f32_16x16x32_bf16 v[{32+4*u}:{35+4*u}], v[{q}:{q+3}], v[{r}:{r+3}], {c}')
        if t == 0:
            A(f'v_or_b32 v2, v{q}, v{q+1}\nv_or_b32 v3, v{q+2}, v{q+3}')
        else:
            A(f'v_or3_b32 v2, v2, v{q}, v{q+1}\nv_or3_b32 v3, v3, v{q+2}, v{q+3}')
    A('v_cndmask_b32 v2, v3, v2, s[66:67]')
    A('v_cmp_ne_u32 vcc, 0, v2')
if not opt['oppipe']:
    def body():
        op_loads(16, RF)
        A('L_opw0:')
        op_use(8, 0)
    spin2(body, 0, local_only=True, enter='L_opw0')
else:
    A('L_opp:')
    op_loads(16, RF, 124)
    op_use(8, 3)
    A('s_nop 0\ns_cbranch_vccz L_opd')
    op_loads(32, RF, 8)
    op_use(124, 3)
    A('s_nop 0\ns_cbranch_vccz L_opd\ns_sub_u32 s70, s70, 1\ns_cbranch_scc0 L_opp\nL_opd:')
mark(5)
for u in range(4):
    A(f'v_add_f32 v{4+u}, v{32+4*u}, v{33+4*u}\nv_add_f32 v{20+u}, v{34+4*u}, v{35+4*u}')
for u in range(4): A(f'v_add_f32 v{4+u}, v{4+u}, v{20+u}')
A(f'''
{S32} v4, v6
{S32} v5, v7
v_add_f32 v4, v4, v6
v_add_f32 v5, v5, v7
{S16} v4, v5
v_add_f32 v4, v4, v5
ds_write_b32 v61, v4 offset:{RL}
s_cmp_lg_u32 s3, 8
s_waitcnt lgkmcnt(0)
s_barrier
s_cbranch_scc1 {'L_opdiag' if opt['opdiag'] else 'L_end'}
ds_read_b32 v5, v62 offset:{RL+256}
ds_read_b32 v6, v62 offset:{RL+512}
ds_read_b32 v7, v62 offset:{RL+768}
s_waitcnt lgkmcnt(0)
v_add_f32 v4, v4, v5
v_add_f32 v6, v6, v7
v_add_f32 v48, v4, v6
v_mov_b32_dpp v49, v48 quad_perm:[1,0,3,2] {DPPM}
v_cvt_pk_bf16_f32 v48, v48, v49
v_mov_b32_dpp v49, v48 quad_perm:[2,3,0,1] {DPPM}
''')
setexec(0x1111111111111111)
if opt['near']: A('buffer_store_dwordx4 v[48:51], v62, s[24:27], s62 offen sc1')
A('buffer_store_dwordx4 v[48:51], v62, s[24:27], s63 offen sc1')
mark(6)
A('s_barrier')
if STAMPS:
    A('s_mov_b32 s94, s5\ns_mov_b32 s95, 0')
flush([(3, 11), (4, 12), (5, 13), (6, 14), (7, 15)])
if opt['opdiag']:
    A(f'''
L_opdiag:
s_lshl_b32 s98, s2, 8
s_lshl_b32 s97, s73, 5
s_add_u32 s98, s98, s97
s_add_u32 s98, s98, {HB}
s_sub_u32 s97, {SPIN}, s70
s_waitcnt lgkmcnt(0)
v_mov_b32 v4, s86
v_mov_b32 v5, s88
v_mov_b32 v6, s90
v_mov_b32 v7, s97
v_mov_b32 v8, s82
v_mov_b32 v9, s5
v_mov_b32 v1, 0
s_mov_b64 exec, 1
buffer_store_dwordx4 v[4:7], v1, s[24:27], s98 offen
buffer_store_dwordx2 v[8:9], v1, s[24:27], s98 offen offset:16
''')
A('s_endpgm')

if opt['tearly']:
    A('L_tiles:')
    srd(12, 48, 640 * 1536 * 2); srd(16, 50, 640 * 1536 * 2)
    A(f'''
s_sub_u32 s75, s5, 20
s_lshr_b32 s78, s75, 2
s_and_b32 s75, s75, 3
s_mul_i32 s72, s75, {160*3072}
s_mul_i32 s68, s73, {8*3072}
s_add_u32 s72, s72, s68
s_mul_i32 s68, s4, 3
s_add_u32 s78, s78, s68
s_lshl_b32 s68, s78, 7
s_add_u32 s72, s72, s68
s_lshl_b32 s61, s73, 10
s_add_u32 s61, s61, {WL}
v_lshrrev_b32 v2, 3, v0
v_and_b32 v3, 7, v0
v_mul_u32_u24 v62, 3072, v2
v_lshl_add_u32 v62, v3, 4, v62
''')
    hint_wait(DN1 if opt['hintB'] == 1 else DN2, opt['nB'])
    if opt['tB'] == 0: lds_wait_ge(CNT + 4, 8, 1)
    elif opt['tB'] == 9: lds_wait_ge(INFO + 4, 1, 1)
    else: lds_wait_ge(CNT, opt['tB'], 1)
    mark(3)
    def tile_issue(DW, nb1):
        n = 0
        for t in range(5):
            for m in range(2):
                if n >= DW: A(f"s_waitcnt vmcnt({DW-1})")
                if nb1 and n == nb1: lds_wait_ge(INFO + 4, 1, 1)
                A(f's_add_u32 m0, s61, {8192*t + 4096*m}')
                A(f'buffer_load_dwordx4 v62, s[{12+4*m}:{15+4*m}], s72 offen nt lds')
                n += 1
            if t < 4: A(f's_add_u32 s72, s72, {32*3072}')
    if opt['mB']:
        A(f"s_lshr_b32 s68, s28, 8\ns_cmp_ge_u32 s68, {opt['GB']}\ns_cbranch_scc1 L_tfast")
        lds_wait_ge(INFO + 4, 1, 1)
        tile_issue(opt['gB'], 0)
        A('s_branch L_tdone\nL_tfast:')
    tile_issue(opt['DWB'], opt['nb1B'])
    A('L_tdone:')
    if opt['hist']:
        for m in reversed(range(opt['DWB'])):
            A(f's_waitcnt vmcnt({m})'); hstamp(39 - m)
    A('s_waitcnt vmcnt(0)')
    mark(4)
    A('s_barrier')
    if STAMPS:
        A('s_cmp_lg_u32 s3, 8\ns_cbranch_scc1 L_end')
        flush([(3, 18), (4, 19)])
    A('s_endpgm')

B1R = 64
DR = 16
HRDY = CNT + 12
def yp_loads(fl='', b=96):
    A(f'buffer_load_dwordx4 v[{b}:{b+3}], v53, s[24:27], s60 offen sc1' + fl)
    A(f'buffer_load_dwordx4 v[{b+4}:{b+7}], v59, s[24:27], s60 offen sc1' + fl)
def f1_mfma():
    for k in range(8):
        A(f'v_mfma_f32_16x16x32_bf16 v[{DR+4*k}:{DR+3+4*k}], v[8:11], v[{B1R+4*k}:{B1R+4*k+3}], 0')
def f1_select():
    for m in range(2):
        b = DR + 16 * m
        A(f'v_cndmask_b32 v{12+m}, v{b}, v{b+4}, s[62:63]')
        A(f'v_cndmask_b32 v{12+m}, v{12+m}, v{b+8}, s[64:65]')
        A(f'v_cndmask_b32 v{12+m}, v{12+m}, v{b+12}, s[66:67]')
A('L_f1:')
tr_addr(58, 5)
srd(12, 48, 640 * 1536 * 2); srd(16, 50, 640 * 1536 * 2)
A(f"""
s_sub_u32 s75, s5, 20
s_lshr_b32 s78, s75, 2
s_mul_i32 s75, s75, 5
s_add_u32 s75, s75, s3
s_mul_i32 s68, s78, 20
s_sub_u32 s74, s75, s68
s_mul_i32 s68, s4, 3
s_add_u32 s78, s78, s68
s_mul_i32 s68, s4, 60
s_add_u32 s75, s75, s68
s_lshl_b32 s68, s3, 13
v_add_u32 v58, s68, v58
s_add_u32 s73, s68, {WL}
v_lshrrev_b32 v3, 4, v0
v_and_b32 v2, 7, v0
v_lshl_add_u32 v50, v2, 2, v3
v_lshlrev_b32 v50, 1, v50
s_lshl_b32 s68, s74, 6
v_add_u32 v61, s68, v50
s_lshl_b32 s68, s3, 6
v_add_u32 v51, s68, v50
v_lshlrev_b32 v52, 4, v3
v_add_u32 v52, s68, v52
v_lshlrev_b32 v54, 3, v2
v_add_u32 v54, s68, v54
v_lshrrev_b32 v53, 3, v0
v_mul_u32_u24 v62, 3072, v53
v_lshl_add_u32 v62, v2, 4, v62
v_mul_u32_u24 v53, 2560, v53
v_lshl_add_u32 v53, v2, 4, v53
s_lshl_b32 s68, s74, 7
v_add_u32 v53, s68, v53
v_add_u32 v59, {8*2560}, v53
s_add_u32 s60, s47, {YP}
v_and_b32 v55, 15, v0
v_lshlrev_b32 v55, 4, v55
v_mul_u32_u24 v63, 5120, v3
v_add_u32 v55, v55, v63
v_mov_b32 v57, 0
v_cmp_eq_u32 s[62:63], 1, v3
v_cmp_eq_u32 s[64:65], 2, v3
v_cmp_eq_u32 s[66:67], 3, v3
s_mul_i32 s76, s78, 20480
s_lshl_b32 s68, s74, 8
s_add_u32 s76, s76, s68
s_add_u32 s76, s76, {PA}
s_lshl_b32 s68, s78, 9
s_lshl4_add_u32 s68, s74, s68
s_add_u32 s68, s68, {PS}
s_mul_i32 s69, s4, 2560
s_lshl_b32 s61, s74, 7
s_add_u32 s69, s69, s61
s_add_u32 s69, s69, {PH}
v_lshl_add_u32 v63, v2, 4, s69
v_mov_b32 v4, s68
s_mov_b32 s8, 0xff00
s_mov_b32 s9, 0
v_cndmask_b32 v63, v63, v4, s[8:9]
s_cmp_lt_u32 s5, 24
s_cselect_b32 s61, 0xff, 0
s_or_b32 s61, s61, 0x100
s_mov_b32 s77, 0xffff0000
v_mov_b32 v14, s30
v_mov_b32 v15, s31
s_mul_i32 s72, s74, {32*3072}
s_lshl_b32 s68, s78, 7
s_add_u32 s72, s72, s68
""")
place(53, 4); place(59, 4)
if opt['tearly']:
    A('global_load_ushort v56, v61, s[36:37]')
    A('s_setprio 3\ns_barrier')
else:
    hint_wait(DN1 if opt['hintB'] == 1 else DN2, opt['nB'])
    lds_wait_ge(INFO + 4, 1, 1)
    for n in range(4):
        for m in range(2):
            A(f's_add_u32 m0, s73, {4096*m + 1024*n}')
            A(f'buffer_load_dwordx4 v62, s[{12+4*m}:{15+4*m}], s72 offen nt lds')
        if n < 3: A(f's_add_u32 s72, s72, {8*3072}')
    A('global_load_ushort v56, v61, s[36:37]')
    A('s_setprio 3')
    if opt['hist']:
        for m in reversed(range(1, 9)):
            A(f's_waitcnt vmcnt({m})'); hstamp(56 - m)
    A('s_waitcnt vmcnt(0)')
yp_loads(' nt' if opt['ynt'] else '')
mark(4)
for m in range(2):
    for u in range(4):
        r = B1R + 4 * (4 * m + u)
        A(f'ds_read_b64_tr_b16 v[{r}:{r+1}], v58 offset:{WL + 4096*m + 32*u}')
        A(f'ds_read_b64_tr_b16 v[{r+2}:{r+3}], v58 offset:{WL + 4096*m + 32*u + 512}')
A("""
v_mov_b32 v8, 0x3f803f80
v_mov_b32 v9, 0x3f803f80
v_mov_b32 v10, 0x3f803f80
v_mov_b32 v11, 0x3f803f80
s_waitcnt lgkmcnt(0)
""")
f1_mfma()
f1_select()
A('v_mov_b32 v60, v12\nv_mov_b32 v61, v13')
A('s_waitcnt vmcnt(2)\nv_lshlrev_b32 v56, 16, v56')
A(f's_mov_b32 s70, {SPIN}')
A('v_mov_b32 v8, 0\nv_mov_b32 v9, 0\nv_mov_b32 v10, 0\nv_mov_b32 v11, 0\nv_mov_b32 v112, 0x3f80\nv_mov_b32 v113, 0x3f800000')
def yp_use(b):
    mark(5)
    for n in (0, 4):
        A(f'v_dot2c_f32_bf16 v8, v{b+n}, v112\nv_dot2c_f32_bf16 v10, v{b+n+1}, v112\nv_dot2c_f32_bf16 v9, v{b+n}, v113\nv_dot2c_f32_bf16 v11, v{b+n+1}, v113')
if not opt['yppipe']:
    A('s_branch L_ypw0')
    A('L_yppoll:')
    yp_loads()
    A('L_ypw0:')
    A('s_waitcnt vmcnt(0)')
    tagcheck([98, 102])
    A('s_nop 0\ns_cbranch_vccz L_ypok\ns_sub_u32 s70, s70, 1\ns_cbranch_scc0 L_yppoll\nL_ypok:')
    yp_use(96)
else:
    A('L_yppoll:')
    yp_loads('', 104)
    A('s_waitcnt vmcnt(2)')
    tagcheck([98, 102])
    A('s_nop 0\ns_cbranch_vccz L_ypd0')
    sleep(opt['yppipe'] - 1)
    yp_loads('', 96)
    A('s_waitcnt vmcnt(2)')
    tagcheck([106, 110])
    A('s_nop 0\ns_cbranch_vccz L_ypd1')
    sleep(opt['yppipe'] - 1)
    A('s_sub_u32 s70, s70, 1\ns_cbranch_scc0 L_yppoll\nL_ypd1:')
    yp_use(104)
    A('s_branch L_ypj\nL_ypd0:')
    yp_use(96)
    A('L_ypj:')
A(f"""
{S32} v8, v10
{S32} v9, v11
v_add_f32 v8, v8, v10
v_add_f32 v9, v9, v11
{S16} v8, v9
v_add_f32 v8, v8, v9
v_add_f32_dpp v8, v8, v8 row_ror:8 {DPPM}
v_cvt_pk_bf16_f32 v8, v57, v8
v_add_f32 v8, v8, v56
v_cvt_pk_bf16_f32 v8, v8, v8
ds_write_b16 v51, v8 offset:{HL}
v_and_b32 v48, s77, v8
v_mul_f32 v49, v48, v48
s_waitcnt lgkmcnt(0)
ds_read_b128 v[8:11], v52 offset:{HL}
ds_read_b64 v[4:5], v54 offset:{HL}
""")
allreduce8('v_add_f32', [48, 49])
A('s_waitcnt lgkmcnt(0)')
f1_mfma()
swapreduce(S16, 'v_add_f32', [48, 49], [6, 7])
swapreduce(S32, 'v_add_f32', [48, 49], [6, 7])
A('v_mov_b32 v6, s30\nv_mov_b32 v7, s31')
A('v_cndmask_b32 v4, v4, v48, s[8:9]\nv_cndmask_b32 v5, v5, v49, s[8:9]')
f1_select()
A('v_cvt_pk_bf16_f32 v12, v12, v60\nv_cvt_pk_bf16_f32 v13, v13, v61')
publish([(None, 'buffer_store_dwordx4 v[12:15], v55, @, s76 offen'),
         ('s61', 'buffer_store_dwordx4 v[4:7], v63, @, 0 offen')])
mark(6)
if STAMPS:
    flush([(6, 27), (5, 11)], True)
    A('s_cmp_lg_u32 s3, 4\ns_cbranch_scc1 L_end')
    flush([(4, 17)])
A('s_endpgm')

A('L_ffn:')
A("""
v_mov_b32 v57, 0
s_mul_i32 s72, s4, 12
s_add_u32 s72, s72, s5
s_cmp_lt_u32 s3, 5
s_cbranch_scc1 L_f2
s_cmp_eq_u32 s3, 5
s_cbranch_scc1 L_hid
s_cmp_ge_u32 s5, 10
s_cbranch_scc1 L_end
""")
A(f"""
s_mul_i32 s72, s4, 10
s_add_u32 s72, s72, s5
v_lshrrev_b32 v2, 1, v0
v_mul_u32_u24 v2, 2560, v2
v_and_b32 v3, 1, v0
v_lshl_add_u32 v96, v3, 4, v2
s_lshl_b32 s68, s72, 5
v_add_u32 v96, s68, v96
v_add_u32 v100, {32*2560}, v96
v_add_u32 v101, {64*2560}, v96
s_add_u32 s10, s47, {FP}
v_lshrrev_b32 v4, 4, v0
v_lshl_add_u32 v97, v3, 2, v4
v_lshlrev_b32 v97, 1, v97
v_lshlrev_b32 v99, 4, v3
v_and_b32 v98, 16, v0
s_mul_i32 s13, s4, 2560
s_lshl_b32 s68, s72, 5
s_add_u32 s13, s13, s68
s_add_u32 s13, s13, {PH}
s_lshl_b32 s14, s72, 4
s_mov_b32 s69, 0xffff0000
""")
place(96, 4); place(100, 4); place(101, 4)
FS = 16
srd(64, 54, 1280)
A('v_cmp_lt_u32 s[62:63], 31, v0')
A('s_setprio 3\ns_barrier\ns_barrier')
if opt['hwarm']: A('buffer_load_dwordx4 v[12:15], v99, s[32:35], s13 offen nt')
A('v_mov_b32 v8, 0\nv_mov_b32 v9, 0\nv_mov_b32 v10, 0\nv_mov_b32 v11, 0\nv_mov_b32 v112, 0x3f80\nv_mov_b32 v113, 0x3f800000')
if opt['hbar']: A('s_barrier')
else: lds_wait_ge(HRDY, 1, 2)
sleep(opt['fsleep'])
def body():
    A(f'buffer_load_dwordx4 v[4:7], v99, s[16:19], s13 offen{RF}')
    for n, a in enumerate((96, 100, 101)):
        r = FS + 4 * n
        A(f'buffer_load_dwordx4 v[{r}:{r+3}], v{a}, s[24:27], s10 offen sc1')
    A('s_waitcnt vmcnt(0)')
    tagcheck([6, FS + 2, FS + 6, FS + 10])
spin2(body, 0, local_only=True)
mark(5)
for n in range(3):
    r = FS + 4 * n
    A(f'v_dot2c_f32_bf16 v8, v{r}, v112\nv_dot2c_f32_bf16 v10, v{r+1}, v112\nv_dot2c_f32_bf16 v9, v{r}, v113\nv_dot2c_f32_bf16 v11, v{r+1}, v113')
A(f"""
v_cndmask_b32 v58, v4, v5, s[62:63]
v_lshrrev_b32 v58, v98, v58
{S32} v8, v10
{S32} v9, v11
v_add_f32 v8, v8, v10
v_add_f32 v9, v9, v11
v_lshlrev_b32 v58, 16, v58
{S16} v8, v9
v_add_f32 v8, v8, v9
v_add_f32_dpp v8, v8, v8 row_ror:8 {DPPM}
v_add_f32_dpp v8, v8, v8 row_ror:4 {DPPM}
v_add_f32_dpp v8, v8, v8 quad_perm:[2,3,0,1] {DPPM}
v_cvt_pk_bf16_f32 v8, v57, v8
v_add_f32 v8, v8, v58
v_cvt_pk_bf16_f32 v8, v8, v8
""")
setexec(0x0003000300030003)
A(f"""
buffer_store_short v8, v97, s[64:67], s14 offen
s_cmp_lg_u32 s72, 0
s_cbranch_scc1 L_fin_exit
s_mov_b64 exec, 1
v_mov_b32 v4, s30
v_mov_b32 v5, s31
s_mov_b32 s68, {EP}
buffer_store_dwordx2 v[4:5], v57, s[24:27], s68 offen
L_fin_exit:
""")
if opt['dbg']:
    A(f'''
s_cmp_lg_u32 s72, 0
s_cbranch_scc1 L_end
s_memrealtime s[82:83]
s_waitcnt lgkmcnt(0)
s_sub_u32 s84, s82, s80
s_sub_u32 s84, s84, 1500
s_mul_i32 s84, s84, {opt['dbg']}
s_min_u32 s84, s84, 20000
L_dbgspin:
s_memrealtime s[86:87]
s_waitcnt lgkmcnt(0)
s_sub_u32 s86, s86, s82
s_cmp_lt_u32 s86, s84
s_cbranch_scc1 L_dbgspin
''')
if STAMPS:
    A('s_waitcnt vmcnt(0)')
    mark(6)
    A(f's_sub_u32 s94, {SPIN}, s70\ns_mov_b32 s95, 0')
    flush([(5, 25), (6, 26), (7, 8)])
A('s_endpgm')

A('L_hid:')
A(f"""
v_and_b32 v62, 15, v0
v_lshlrev_b32 v62, 1, v62
v_lshlrev_b32 v60, 4, v0
v_and_b32 v3, 31, v0
v_lshlrev_b32 v61, 4, v3
s_lshr_b32 s68, s72, 2
s_lshl_b32 s65, s68, 9
s_add_u32 s65, s65, {PS}
s_mul_i32 s60, s72, 5120
s_add_u32 s60, s60, {PA}
s_add_u32 s61, s60, 4096
v_mov_b32 v36, 0
v_mov_b32 v37, 0
v_mov_b32 v38, s30
v_mov_b32 v39, s31
v_mov_b32 v59, 1
s_mov_b32 s69, 0xffff0000
s_setprio 3
s_barrier
s_barrier
""")
def pa_loads(srdn, fl, b=16):
    setexec(0x000fffff000fffff)
    A(f'buffer_load_dwordx4 v[{b+20}:{b+23}], v61, s[{srdn}:{srdn+3}], s65 offen{fl}')
    setexec(ALL)
    for n in range(5):
        A(f'buffer_load_dwordx4 v[{b+4*n}:{b+3+4*n}], v60, s[{srdn}:{srdn+3}], s{60+n//4} offen offset:{1024*(n%4)}{fl}')
def pa_check(b): tagcheck([b + 22, b + 2, b + 6, b + 10, b + 14, b + 18])
def pa_use(b):
    mark(5)
    A(f'v_add_f32_dpp v4, v{b+20}, v{b+20} quad_perm:[1,0,3,2] {DPPM}\nv_add_f32_dpp v5, v{b+21}, v{b+21} quad_perm:[1,0,3,2] {DPPM}')
    for pat in ('quad_perm:[2,3,0,1]', 'row_half_mirror', 'row_mirror'):
        for r in (4, 5): A(f'v_add_f32_dpp v{r}, v{r}, v{r} {pat} {DPPM}')
    swapreduce(S16, 'v_add_f32', [4, 5], [6, 7])
    A(f"""
v_mul_f32 v6, {f32(-1.0/640)}, v4
v_mul_f32 v5, {f32(1.0/640)}, v5
v_cvt_pk_bf16_f32 v4, 1.0, v6
v_fma_f32 v5, -v6, v6, v5
v_dot2c_f32_bf16 v8, v{b}, v4
v_dot2c_f32_bf16 v9, v{b+1}, v4
v_max_f32 v5, 0, v5
v_dot2c_f32_bf16 v8, v{b+4}, v4
v_dot2c_f32_bf16 v9, v{b+5}, v4
v_cvt_pk_bf16_f32 v5, v57, v5
v_dot2c_f32_bf16 v8, v{b+8}, v4
v_dot2c_f32_bf16 v9, v{b+9}, v4
v_add_f32 v5, {f32(1e-5)}, v5
v_dot2c_f32_bf16 v8, v{b+12}, v4
v_dot2c_f32_bf16 v9, v{b+13}, v4
v_cvt_pk_bf16_f32 v5, v57, v5
v_dot2c_f32_bf16 v8, v{b+16}, v4
v_dot2c_f32_bf16 v9, v{b+17}, v4
""")
A('v_mov_b32 v8, 0\nv_mov_b32 v9, 0')
pa_loads(32, LF)
if not opt['papipe']:
    def body():
        pa_loads(16, RF)
        A('L_paw0:')
        A('s_waitcnt vmcnt(0)')
        pa_check(16)
    spin2(body, opt['hsleep'], local_only=True, enter='L_paw0')
    pa_use(16)
else:
    A(f"""
v_mov_b32 v84, 0
v_mov_b32 v85, 0
v_mov_b32 v86, s30
v_mov_b32 v87, s31
s_cmp_eq_u32 s46, 1
s_cselect_b32 s16, s32, s24
s_cselect_b32 s17, s33, s25
s_mov_b32 s18, {WSN}
s_mov_b32 s19, 0x20000
s_mov_b32 s70, {SPIN}
L_pap:
""")
    pa_loads(16, RF, 64)
    A('s_waitcnt vmcnt(6)')
    pa_check(16)
    A('s_nop 0\ns_cbranch_vccz L_pad0')
    sleep(opt['psl'])
    pa_loads(32, RF, 16)
    A('s_waitcnt vmcnt(6)')
    pa_check(64)
    A('s_nop 0\ns_cbranch_vccz L_pad1')
    sleep(opt['psl'])
    A('s_sub_u32 s70, s70, 1\ns_cbranch_scc0 L_pap\nL_pad1:')
    pa_use(64)
    A('s_branch L_paj\nL_pad0:')
    pa_use(16)
    A('L_paj:')
A(f"""
v_sqrt_f32 v5, v5
s_nop 1
{S32} v8, v9
v_cvt_pk_bf16_f32 v5, v57, v5
v_add_f32 v8, v8, v9
v_rcp_f32 v5, v5
v_mov_b32 v10, v8
{S16} v8, v10
v_add_f32 v8, v8, v10
v_mul_f32 v8, v8, v5
v_cvt_pk_bf16_f32 v8, v57, v8
v_mul_f32 v12, {f32(-LOG2E)}, v8
v_mov_b32 v9, v8
v_exp_f32 v12, v12
{S32} v8, v9
v_add_f32 v12, 1.0, v12
v_rcp_f32 v12, v12
v_mul_f32 v8, v8, v12
v_cvt_pk_bf16_f32 v8, v57, v8
v_mul_f32 v8, v8, v9
v_cvt_pk_bf16_f32 v8, v8, v8
s_mov_b64 exec, 0xffff
ds_write_b16 v62, v8 offset:{HID}
""")
if opt['hbar']: A('s_waitcnt lgkmcnt(0)\ns_barrier')
else: A(f'ds_write_b32 v57, v59 offset:{HRDY}')
flush([(5, 24)])
A('s_endpgm')

A('L_f2:')
W2R = 64
srd(8, 52, 1536 * 640 * 2)
A(f"""
s_lshl_b32 s68, s3, 8
v_lshlrev_b32 v58, 2, v0
v_add_u32 v58, s68, v58
v_lshlrev_b32 v116, 1, v58
s_mul_i32 s68, s72, 2560
v_add_u32 v116, s68, v116
s_xor_b32 s78, s47, 8192
s_add_u32 s78, s78, {FP}
s_add_u32 s77, s47, {FP}
s_mov_b32 s60, 0x05040100
s_mov_b32 s61, 0x07060302
s_mul_i32 s62, s72, 20480
""")
place(116, 4)
A('s_setprio 3\ns_barrier\ns_barrier')
for k in range(16):
    A(f'buffer_load_dword v{W2R+k}, v58, s[8:11], s62 offen offset:{1280*(k%3)} nt')
    if k % 3 == 2: A('s_add_u32 s62, s62, 3840')
if opt['hist']:
    for m in (12, 8, 4, 0):
        A(f's_waitcnt vmcnt({m})'); hstamp(51 - m // 4)
A('s_waitcnt vmcnt(0)')
mark(4)
for kp in range(8):
    A(f'v_perm_b32 v{80+kp}, v{W2R+2*kp+1}, v{W2R+2*kp}, s60')
    A(f'v_perm_b32 v{88+kp}, v{W2R+2*kp+1}, v{W2R+2*kp}, s61')
A("""
v_mov_b32 v16, 0
v_mov_b32 v17, 0
v_mov_b32 v6, s30
v_mov_b32 v7, s31
""")
if opt['fprew']:
    A('s_not_b32 s20, s30\nv_mov_b32 v20, s20\nv_mov_b32 v21, s20\nv_mov_b32 v22, s20\nv_mov_b32 v23, s20')
    setexec(0x5555555555555555)
    A('buffer_store_dwordx4 v[20:23], v116, s[24:27], s78 offen sc1')
    A('buffer_store_dwordx4 v[20:23], v116, s[24:27], s77 offen sc1')
    setexec(ALL)
if opt['hbar']:
    if opt['fprew']: A('s_waitcnt vmcnt(0)')
    A(f"""s_barrier
ds_read_b128 v[8:11], v57 offset:{HID}
ds_read_b128 v[12:15], v57 offset:{HID+16}
s_waitcnt lgkmcnt(1)""")
else:
    def body():
        A(f'ds_read_b32 v4, v57 offset:{HRDY}')
        A(f'ds_read_b128 v[8:11], v57 offset:{HID}')
        A(f'ds_read_b128 v[12:15], v57 offset:{HID+16}')
        A('s_waitcnt lgkmcnt(0)')
        A('v_cmp_eq_u32 vcc, 0, v4')
    spin(body)
for kp in range(8):
    if kp == 4: A('s_waitcnt lgkmcnt(0)')
    A(f'v_dot2c_f32_bf16 v16, v{8+kp}, v{80+kp}')
    A(f'v_dot2c_f32_bf16 v17, v{8+kp}, v{88+kp}')
A(f"""
v_cvt_pk_bf16_f32 v4, v16, v17
v_mov_b32_dpp v5, v4 quad_perm:[1,0,3,2] {DPPM}
""")
setexec(0x5555555555555555)
if opt['near']: A('buffer_store_dwordx4 v[4:7], v116, s[24:27], s78 offen sc1')
A('buffer_store_dwordx4 v[4:7], v116, s[24:27], s77 offen sc1')
mark(6)
if STAMPS:
    flush([(6, 27)], True)
    A('s_cmp_lg_u32 s3, 0\ns_cbranch_scc1 L_end')
    flush([(4, 22)])
A('L_end:')
A('s_endpgm')
for blk in outline: A(blk)
if opt['hist']:
    A.lines = [('s_branch L_hexit' if l.strip() == 's_endpgm' else l) for l in A.lines]
    i = A.lines.index('s_cbranch_scc1 L_end'); A.lines[i] = 's_cbranch_scc1 L_realend'
    A(f'''
L_hexit:
s_mov_b64 exec, -1
s_memrealtime s[96:97]
s_getreg_b32 s64, hwreg(HW_REG_XCC_ID)
s_waitcnt lgkmcnt(0)
{''.join('v_writelane_b32 v159, s%d, %d' % (80 + 2 * i, 54 + i) + chr(10) for i in range(6)) if opt['sdiag'] else ''}
v_writelane_b32 v159, s96, 61
v_writelane_b32 v159, s94, 62
v_writelane_b32 v159, s64, 63
s_mul_i32 s64, s2, 12
s_add_u32 s64, s64, s3
s_lshl_b32 s64, s64, 8
s_add_u32 s64, s64, {HB}
v_lshlrev_b32 v1, 2, v0
s_nop 4
buffer_store_dword v159, v1, s[24:27], s64 offen
L_realend:
s_endpgm
''')
A('L_codeend:')

A.raw('.section .rodata,"a"')
A.raw('.p2align 6')
A.raw(f'.amdhsa_kernel {NAME}_kernel')
A.raw('  .amdhsa_next_free_vgpr 168')
A.raw('  .amdhsa_next_free_sgpr 100')
A.raw('  .amdhsa_accum_offset 168')
A.raw('  .amdhsa_group_segment_fixed_size 0')
A.raw('  .amdhsa_kernarg_size 96')
A.raw('  .amdhsa_user_sgpr_count 2')
A.raw('  .amdhsa_user_sgpr_kernarg_segment_ptr 1')
A.raw('  .amdhsa_system_sgpr_workgroup_id_x 1')
A.raw('.end_amdhsa_kernel')
open(sys.argv[1], 'w').write(A.finalize())
```

```python
import sys, struct, os
from asmlib import Asm

NAME = "sequential_preLN__sliding_block_cached__glu_gated_swiglu__decode"
opt = dict(D=3, stamps=0, hist=0, spin=200007, Vpre=3, qsleep=20, qdelay=40, stsleep=16, idtries=12, idsleep=16,
           t1=3, t2=0, DWO=8, nA=0, nB=0, hintB=2, fsleep=0, forceslow=0, trap=0, dyn=5, near=1, dbg=0, hsleep=0,
           cpf=3, nprobe=2, fixnear=-1, share=1, tearly=1, DWB=10, opearly=0, tB=0, prew=0, npw=4, abl=0, lnt=1, prer=2, ynt=0, hwarm=1, fnt=1, pubwait=0, opdiag=0, nb1=8, ope=2, tlb=0, sdiag=0, deep=0, shal=0, shper=4, nb1B=4, mA=0, gA=4, mB=0, gB=3, rsleep=4, GA=8, GB=8, hbar=1, papipe=1, fprew=0, psl=0, oppipe=1, yppipe=0, wbl=0, red=0, ysl=0, ord=0, hred=1, spec=3, ovl=1, fack=0)
for a in sys.argv[2:]:
    k, v = a.split('=')
    assert k in opt, k
    opt[k] = int(v)
D = opt['D']; STAMPS = opt['stamps']; SPIN = opt['spin']

LF = ' sc1 nt' if opt['lnt'] else ' sc1'
def f32(x): return '0x%08x' % struct.unpack('<I', struct.pack('<f', x))[0]
LOG2E = 1.4426950408889634

YP = 0x0
PR = 0x20000
FP = 0x80000
EP = 0xFF000
ST = 0x101000
ID = 0x102000
DN1 = 0x103000
DN2 = 0x104000
TK = 0x108000
PV = 0x105000
OP = 0x110000
QP = 0x140000
if opt['ovl']: QP = OP
SP = 0x200000
PA = 0x220000
PS = 0x2A0000
PH = 0x2A8000
HB = 0x300000
WSN = 0x400000
FAST = 0x400000
QL = 0
QF = 384
SL = 512
CNT = 640
INFO = 656
GS = 672
HID = 896
OL = 1024
RL = 7168
HL = 8192
WL = 8704
LDS = WL + 49152

A = Asm()
A.raw(open(os.path.join(os.path.dirname(os.path.abspath(__file__)), '..', NAME + '.s.ref')).read().split('; Override launch')[0].rstrip())
A.raw(f"; @launch grid=(256,1,1) block=(768,1,1) lds={LDS}")
A.raw('''; Generated by gen/gen12.py (hand-written generator).  One persistent launch, 256 workgroups x 12 waves, 1 per CU.
;  waves 0..7 : stream this workgroup's 512 keys of K then V (nt loads, depth-limited), QK / PV with v_dot2c bf16,
;  s_sleep is used only as back-off inside / ahead of polling loops.''')
A.raw('.amdgcn_target "amdgcn-amd-amdhsa--gfx950"')
A.raw('.text')
A.raw(f'.globl {NAME}_kernel')
A.raw('.p2align 8')
A.raw(f'.type {NAME}_kernel,@function')
A.raw(f'{NAME}_kernel:')

def stamp(idx, plus_wave=False):
    if not STAMPS: return
    A('s_memrealtime s[96:97]')
    A('s_lshl_b32 s98, s2, 8')
    A(f's_add_u32 s98, s98, {SP + idx*8}')
    if plus_wave: A('s_lshl3_add_u32 s98, s3, s98')
    A('s_mov_b64 s[94:95], exec')
    A('s_mov_b64 exec, 1')
    A('s_waitcnt lgkmcnt(0)')
    A('v_mov_b32 v120, s96\nv_mov_b32 v121, s97\nv_mov_b32 v122, 0')
    A('buffer_store_dwordx2 v[120:121], v122, s[24:27], s98 offen')
    A('s_mov_b64 exec, s[94:95]')
def mark(i):
    if STAMPS: A(f's_memrealtime s[{80+2*i}:{81+2*i}]')
def flush(pairs, plus_wave=False):
    if not STAMPS: return
    A('s_lshl_b32 s98, s2, 8')
    A(f's_add_u32 s98, s98, {SP}')
    if plus_wave: A('s_lshl3_add_u32 s98, s3, s98')
    A('s_mov_b64 exec, 1\ns_waitcnt lgkmcnt(0)\nv_mov_b32 v122, 0')
    for i, slot in pairs:
        A(f'v_mov_b32 v120, s{80+2*i}\nv_mov_b32 v121, s{81+2*i}')
        A(f'buffer_store_dwordx2 v[120:121], v122, s[24:27], s98 offen offset:{8*slot}')
        A('s_nop 1')
    A('s_mov_b64 exec, -1')
def hstamp(ks):
    if not opt['hist'] or opt['sdiag']: return
    if isinstance(ks, int): ks = [ks]
    ks = list(ks)
    if not ks: return
    A('s_memrealtime s[96:97]\ns_waitcnt lgkmcnt(0)')
    for k in ks: A(f'v_writelane_b32 v159, s96, {k}')

def sd(i):
    if opt['sdiag']: A(f's_memrealtime s[{80+2*i}:{81+2*i}]')
def srd(d, ptr, nbytes):
    A(f's_mov_b32 s{d}, s{ptr}')
    A(f's_mov_b32 s{d+1}, s{ptr+1}')
    A(f's_mov_b32 s{d+2}, {nbytes}')
    A(f's_mov_b32 s{d+3}, 0x20000')
def ws_srds():
    srd(24, 58, WSN)
    A(f's_add_u32 s32, s58, {FAST}')
    A('s_addc_u32 s33, s59, 0')
    A(f's_mov_b32 s34, {WSN}')
    A('s_mov_b32 s35, 0x20000')
    A('s_lshl3_add_u32 s71, s6, s7')
    A('s_lshr_b32 s79, s2, 3')

ALL = (1 << 64) - 1
def setexec(mask):
    if mask == ALL: A('s_mov_b64 exec, -1'); return
    A(f's_mov_b32 exec_lo, 0x{mask & 0xffffffff:x}')
    A(f's_mov_b32 exec_hi, 0x{mask >> 32:x}')

DPPM = 'row_mask:0xf bank_mask:0xf'
def allreduce8(op, regs):
    for pat in ('quad_perm:[1,0,3,2]', 'quad_perm:[2,3,0,1]', 'row_half_mirror'):
        for r in regs: A(f'{op}_dpp v{r}, v{r}, v{r} {pat} {DPPM}')
def allreduce16(op, regs):
    allreduce8(op, regs)
    for r in regs: A(f'{op}_dpp v{r}, v{r}, v{r} row_mirror {DPPM}')
def swapreduce(sw, op, regs, tmps):
    for r, t in zip(regs, tmps): A(f'v_mov_b32 v{t}, v{r}')
    for r, t in zip(regs, tmps): A(f'{sw} v{r}, v{t}')
    for r, t in zip(regs, tmps): A(f'{op} v{r}, v{r}, v{t}')
S16 = 'v_permlane16_swap_b32'; S32 = 'v_permlane32_swap_b32'
def allreduce_rows(op, regs, tmps):
    swapreduce(S16, op, regs, tmps); swapreduce(S32, op, regs, tmps)
def allreduce64(op, regs, tmps):
    allreduce16(op, regs); allreduce_rows(op, regs, tmps)
def bf16r(d, s):
    A(f'v_cvt_pk_bf16_f32 v{d}, v{s}, v{s}')
    A(f'v_lshlrev_b32 v{d}, 16, v{d}')
def mktag():
    A('''
s_waitcnt lgkmcnt(0)
s_mul_i32 s30, s28, 0x2c9277b5
s_add_u32 s30, s30, 0xac564b05
s_mul_i32 s31, s29, 0x0019660d
s_add_u32 s31, s31, 0x3c6ef35f
''')
def place(v, t):
    A(f'v_and_b32 v{t}, 0xffffe000, v{v}\nv_add_u32 v{v}, v{v}, v{t}')
lbl = [0]
def newlabel(p):
    lbl[0] += 1
    return f'L_{p}_{lbl[0]}'

def tagcheck(pairs):
    A(f'v_cmp_ne_u64 vcc, s[30:31], v[{pairs[0]}:{pairs[0]+1}]')
    tm = [(20, 21), (22, 23)]
    pend = []
    for i, p in enumerate(pairs[1:]):
        t = tm[i % 2]
        if len(pend) == 2:
            q = pend.pop(0); A(f's_or_b64 vcc, vcc, s[{q[0]}:{q[1]}]')
        A(f'v_cmp_ne_u64 s[{t[0]}:{t[1]}], s[30:31], v[{p}:{p+1}]')
        pend.append(t)
    for q in pend: A(f's_or_b64 vcc, vcc, s[{q[0]}:{q[1]}]')

def sleep(n):
    while n > 0:
        A(f's_sleep {min(n, 127)}'); n -= 127
def trap(n):
    if not opt['trap']: return
    A(f's_lshl_b32 s99, s2, 8\ns_or_b32 s99, s99, s3\ns_lshl_b32 s99, s99, 8\ns_or_b32 s99, s99, {n & 255}')
    A(f'v_mov_b32 v163, {16 * (n % 16)}\nv_mov_b32 v164, s99\nv_mov_b32 v165, vcc_lo\nv_mov_b32 v166, vcc_hi\nv_mov_b32 v167, s5')
    A('global_store_dwordx4 v163, v[164:167], s[56:57]')
def spin(body, slp=0, retry=None, enter=None):
    top = newlabel('spin'); done = newlabel('sdone')
    A(f's_mov_b32 s70, {SPIN}')
    if enter: A(f's_branch {enter}')
    A(f'{top}:')
    body()
    A('s_nop 0')
    A(f's_cbranch_vccz {done}')
    sleep(slp)
    if retry: retry()
    A('s_sub_u32 s70, s70, 1')
    A(f's_cbranch_scc0 {top}')
    trap(lbl[0])
    A(f'{done}:')
def spin2(body, slp=0, retry=None, local_only=False, enter=None):
    A(f's_mov_b32 s16, s32\ns_mov_b32 s17, s33\ns_mov_b32 s18, {WSN}\ns_mov_b32 s19, 0x20000')
    def rt():
        if retry: retry()
        A('s_and_b32 s99, s70, 7')
        if local_only:
            A('s_cmp_eq_u32 s46, 1')
            A('s_cselect_b32 s99, 1, s99')
            A('s_cmp_lg_u32 s99, 0')
        A('s_cselect_b32 s16, s32, s24')
        A('s_cselect_b32 s17, s33, s25')
    spin(body, slp, rt, enter)

def lds_wait_ge(off, n, slp, dst=4, adr=1):
    A(f'v_mov_b32 v{adr}, 0')
    def body():
        A(f'ds_read_b32 v{dst}, v{adr} offset:{off}')
        A('s_waitcnt lgkmcnt(0)')
        A(f'v_cmp_gt_u32 vcc, {n}, v{dst}')
    spin(body, slp)
def get_mode(dst=4, adr=1):
    lds_wait_ge(INFO, 1, 2, dst, adr)
    A(f'v_readfirstlane_b32 s46, v{dst}')
def get_role(slp):
    A('v_mov_b32 v1, 0')
    def body():
        A(f'ds_read_b64 v[4:5], v1 offset:{INFO + 8}')
        A('s_waitcnt lgkmcnt(0)')
        A('v_cmp_eq_u32 vcc, 0, v5')
    spin(body, slp)
    A('v_readfirstlane_b32 s5, v5\nv_readfirstlane_b32 s47, v4\ns_lshr_b32 s28, s5, 8\ns_and_b32 s5, s5, 0xff\ns_sub_u32 s5, s5, 1')
ROLE = INFO + 12; NEAR = INFO + 8

outline = []
def publish(stores):
    def emit(srdn, fl, AA):
        cur = ALL
        for m, line in stores:
            m = ALL if m is None else m
            if m != cur:
                if m == ALL: AA('s_mov_b64 exec, -1')
                elif isinstance(m, str): AA(f's_mov_b64 exec, {m}')
                else: AA(f's_mov_b32 exec_lo, 0x{m & 0xffffffff:x}\ns_mov_b32 exec_hi, 0x{m >> 32:x}')
                cur = m
            AA(line.replace('@', f's[{srdn}:{srdn+3}]') + fl)
        if cur != ALL: AA('s_mov_b64 exec, -1')
    if not opt['forceslow']: emit(32, '', A)
    slow = newlabel('slow'); back = newlabel('back')
    A('s_cmp_lg_u32 s46, 1')
    A(f's_cbranch_scc1 {slow}')
    A(f'{back}:')
    blk = [f'{slow}:']
    emit(24, ' sc1', lambda t: blk.append(t))
    blk.append('s_nop 1')
    blk.append(f's_branch {back}')
    outline.append('\n'.join(blk))
def hint_wait(base, n):
    if not n: return
    lp = newlabel('gpoll'); ld = newlabel('gdone')
    A(f"""
v_and_b32 v1, 31, v0
v_lshlrev_b32 v1, 4, v1
s_lshl_b32 s68, s4, 9
s_add_u32 s68, s68, {base}
s_mov_b32 s70, 40
s_cmp_lg_u32 s46, 1
s_cbranch_scc1 {ld}
{lp}:
buffer_load_dwordx4 v[4:7], v1, s[32:35], s68 offen{LF}
s_waitcnt vmcnt(0)
v_cmp_eq_u64 vcc, s[30:31], v[6:7]
s_nop 0
s_bcnt1_i32_b32 s69, vcc_lo
s_cmp_ge_u32 s69, {n}
s_cbranch_scc1 {ld}
s_sleep 2
s_sub_u32 s70, s70, 1
s_cbranch_scc0 {lp}
{ld}:
""")

A("""
s_cmp_ge_u32 s2, 256
s_cbranch_scc1 L_end
s_load_dwordx2 s[8:9], s[0:1], 8
s_load_dwordx16 s[36:51], s[0:1], 0
s_load_dwordx8 s[52:59], s[0:1], 64
""")
mark(0)
if opt['dbg']: A('s_memrealtime s[80:81]')
if opt['hist']: A('s_memrealtime s[94:95]\nv_mov_b32 v159, 0')
A("""
v_lshrrev_b32 v1, 6, v0
v_and_b32 v0, 63, v0
v_readfirstlane_b32 s3, v1
s_and_b32 s4, s2, 7
s_lshr_b32 s79, s2, 6
s_lshl2_add_u32 s6, s4, s79
s_bfe_u32 s7, s2, 0x30003
""")
if opt['cpf'] >= 3:
    A(f'''
s_cmp_lg_u32 s3, 0
s_cbranch_scc1 L_nocpf
s_getpc_b64 s[20:21]
L_pc0:
''')
    if opt['cpf'] == 3:
        A(f'''
s_mul_i32 s68, s7, {2560 if (STAMPS or opt['hist']) else 2048}
v_min_u32 v8, {19 if (STAMPS or opt['hist']) else 15}, v0
v_lshl_add_u32 v8, v8, 7, s68
v_min_u32 v8, L_codeend-L_pc0-4, v8
global_load_dword v10, v8, s[20:21]
''')
    else:
        A(f'''
v_lshlrev_b32 v8, 7, v0
v_add_u32 v9, 8192, v8
v_min_u32 v9, L_codeend-L_pc0-4, v9
global_load_dword v10, v8, s[20:21]
global_load_dword v11, v9, s[20:21]
''')
    A('L_nocpf:')
A("""
v_lshrrev_b32 v2, 3, v0
v_and_b32 v3, 7, v0
v_lshlrev_b32 v3, 4, v3
s_mov_b32 s11, 0x20000
s_cmp_gt_u32 s3, 7
s_cbranch_scc1 L_helper
""")
G = 8; GST = 3072 * 64
GOFF = [60, 61, 62, 63, 64, 65, 66, 67]
A("""
s_lshl3_add_u32 s68, s7, s3
s_mul_i32 s60, s6, 4096
s_add_u32 s60, s60, s68
s_addk_i32 s60, 3584
s_mul_i32 s60, s60, 3072
v_mul_u32_u24 v2, 384, v2
v_add_u32 v1, v2, v3
s_mov_b32 s10, 402653184
""")
if opt['tlb'] & 1: A('s_mul_i32 s69, s3, 983040')
A('s_waitcnt lgkmcnt(0)')
sd(1)
QR = 4; KR = 16
SC = 168 - G
VR = KR + 12 * G
nV1 = min((SC - VR) // 12, G) - (1 if opt['hist'] else 0)
ACC = KR + 12 * (G - 2)
T = ACC
st = dict(n=0); hs = dict(done=0)
def hupto(n):
    hstamp(range(hs['done'], n)); hs['done'] = max(hs['done'], n)
def vreg(g): return VR + 12 * g if g < nV1 else KR + 12 * (g - nV1)
ADP = opt['deep'] or opt['shal']
DC = D + 1 if opt['deep'] else D
def issue_load(kind, g, j, depth):
    if depth and st['n'] >= depth:
        if opt['shal'] and st['n'] > 4 and st['n'] % opt['shper'] == 0:
            l1 = newlabel('sh'); A(f's_bitcmp0_b32 s77, 1\ns_cbranch_scc1 {l1}\ns_waitcnt vmcnt({depth-2})\n{l1}:')
        if opt['deep'] and st['n'] > 3:
            l1 = newlabel('dp'); A(f's_bitcmp1_b32 s77, 0\ns_cbranch_scc1 {l1}\ns_waitcnt vmcnt({depth-1})\n{l1}:\ns_waitcnt vmcnt({depth})')
        else: A(f's_waitcnt vmcnt({depth-1})')
    r = (KR + 12 * g + 4 * j) if kind == 'K' else vreg(g) + 4 * j
    s = 8 if kind == 'K' else 12
    A(f'buffer_load_dwordx4 v[{r}:{r+3}], v1, s[{s}:{s+3}], s{GOFF[g]} offen offset:{128*j} nt')
    if depth and st['n'] >= depth: hupto(st['n'] - DC + 1)
    st['n'] += 1
def touches():
    if opt['tlb'] & 1: A('s_load_dword s20, s[42:43], s69\ns_load_dword s21, s[36:37], 0')
    if opt['tlb'] & 2: A('s_load_dword s22, s[40:41], s60')
if opt['tlb'] & 4: touches()
for j in range(3): issue_load('K', 0, j, D)
if not opt['tlb'] & 4: touches()
sd(2)
A('s_barrier')
A('s_branch L_stream')

A('L_helper:')
sd(1)
A(f'''
v_lshlrev_b32 v1, 3, v0
v_mov_b32 v4, 0
v_mov_b32 v5, 0
ds_write_b64 v1, v[4:5] offset:{QF}
s_sub_u32 s73, s3, 8
s_cmp_eq_u32 s3, 11
s_cbranch_scc1 L_misc
''')
A('''
s_mul_i32 s68, s7, 80
v_add_u32 v7, s68, v2
v_lshlrev_b32 v7, 1, v7
v_mul_u32_u24 v2, 12288, v2
v_add_u32 v2, v2, v3
s_mul_i32 s68, s68, 12288
s_mul_i32 s69, s6, 384
s_add_u32 s68, s68, s69
s_lshl_b32 s69, s73, 7
s_add_u32 s68, s68, s69
v_lshlrev_b32 v1, 2, v0
s_setprio 3
s_waitcnt lgkmcnt(0)
s_barrier
''')
sd(2)
XS = 64; XU = 70; XR = 8; WQ = 24; QA = 80
A(f's_mov_b32 s8, s42\ns_mov_b32 s9, s43\ns_mov_b32 s10, {640 * 6144 * 2}')
for i in range(5): A(f'global_load_dword v{XS+i}, v1, s[36:37] offset:{256*i}')
for r in range(10): A(f'global_load_ushort v{XR+r}, v7, s[36:37] offset:{16*r}')
sd(3)
for r in range(10):
    A(f'buffer_load_dwordx4 v[{WQ+4*r}:{WQ+4*r+3}], v2, s[8:11], s68 offen nt')
    if r < 9: A('s_add_u32 s68, s68, 98304')
A(f's_load_dwordx2 s[28:29], s[58:59], {EP}')
sd(4)
A('s_branch L_q2')
A('L_misc:')
if opt['cpf'] in (1, 2):
    A(f'''
s_getpc_b64 s[20:21]
L_pc0:
''')
    if opt['cpf'] == 1:
        A(f'''
s_lshr_b32 s68, s2, 3
s_lshl_b32 s68, s68, 9
v_lshlrev_b32 v8, 7, v0
v_and_b32 v8, 0x1ff, v8
v_add_u32 v8, s68, v8
v_min_u32 v8, L_codeend-L_pc0-4, v8
global_load_dword v10, v8, s[20:21]
''')
    else:
        A(f'''
v_lshlrev_b32 v8, 7, v0
v_add_u32 v9, 8192, v8
v_min_u32 v9, L_codeend-L_pc0-4, v9
global_load_dword v10, v8, s[20:21]
global_load_dword v11, v9, s[20:21]
''')
A(f'''
s_setprio 3
s_waitcnt lgkmcnt(0)
s_barrier
s_load_dwordx2 s[28:29], s[58:59], {EP}
s_branch L_misc2
''')

A('L_stream:')
sd(3)
for g in range(1, G):
    A(f's_add_u32 s{GOFF[g]}, s{GOFF[g-1]}, {GST}')
    for j in range(3):
        issue_load('K', g, j, D)
        if g == 1 and j == 0: sd(4)
        if g == 2 and j == 0: sd(5)
        if g == 1 and j == 0:
            A(f's_load_dwordx2 s[28:29], s[58:59], {EP}')
            ws_srds(); srd(12, 40, 402653184)
            if ADP:
                A(f'''s_getreg_b32 s76, hwreg(HW_REG_XCC_ID)
s_and_b32 s76, s76, 7
s_lshr_b32 s77, {opt['deep']}, s76
s_and_b32 s77, s77, 1
s_lshr_b32 s76, {opt['shal']}, s76
s_and_b32 s76, s76, 1
s_lshl1_add_u32 s77, s76, s77''')
mark(1)
nv = 0; NV = 3 * G
for n in range(min(opt['Vpre'], 3 * nV1)):
    issue_load('V', nv // 3, nv % 3, D); nv += 1
mktag()
A('v_and_b32 v2, 3, v0\nv_min_u32 v2, 2, v2\nv_lshlrev_b32 v2, 3, v2')
def body():
    A(f'ds_read_b32 v{QR}, v2 offset:{QF}')
    A('s_waitcnt lgkmcnt(0)')
    A(f'v_cmp_eq_u32 vcc, 0, v{QR}')
spin(body, 1)
A(f'''
ds_read_b128 v[{QR}:{QR+3}], v3 offset:{QL}
ds_read_b128 v[{QR+4}:{QR+7}], v3 offset:{QL+128}
ds_read_b128 v[{QR+8}:{QR+11}], v3 offset:{QL+256}
''')
for g in range(G): A(f'v_mov_b32 v{SC+g}, 0')
A(f's_waitcnt vmcnt({nv}) lgkmcnt(0)')
hupto(3 * G)
for gs in (range(4), range(4, G)):
    for i in range(12):
        for g in gs:
            A(f'v_dot2c_f32_bf16 v{SC+g}, v{KR+12*g+i}, v{QR+i}')
allreduce8('v_add_f32', [SC + g for g in range(G)])
A(f's_mov_b32 s68, {f32(192 ** -0.5)}')
A('v_mov_b32 v2, 0')
for g in range(G): A(f'v_cvt_pk_bf16_f32 v{SC+g}, v2, v{SC+g}')
for g in range(G): A(f'v_mul_f32 v{SC+g}, s68, v{SC+g}')
for g in range(G): A(f'v_cvt_pk_bf16_f32 v{SC+g}, v2, v{SC+g}')
A(f'v_max_f32 v4, v{SC}, v{SC+1}')
for g in range(2, G, 2): A(f'v_max3_f32 v4, v4, v{SC+g}, v{SC+g+1}')
A(f'v_max_f32_dpp v4, v4, v4 row_ror:8 {DPPM}')
allreduce_rows('v_max_f32', [4], [T])
A(f's_mov_b32 s68, {f32(LOG2E)}')
for g in range(G): A(f'v_sub_f32 v{SC+g}, v{SC+g}, v4')
for g in range(G): A(f'v_mul_f32 v{SC+g}, s68, v{SC+g}')
for g in range(G): A(f'v_exp_f32 v{SC+g}, v{SC+g}')
A(f'v_add_f32 v5, v{SC}, v{SC+1}')
for g in range(2, G): A(f'v_add_f32 v5, v5, v{SC+g}')
A(f'v_add_f32_dpp v5, v5, v5 row_ror:8 {DPPM}')
allreduce_rows('v_add_f32', [5], [T])
A(f'''
s_lshl_b32 s69, s3, 4
v_mov_b32 v{T}, s69
v_mov_b32 v6, 1
v_mov_b32 v7, 1
ds_write_b128 v{T}, v[4:7] offset:{SL}
''')
mark(2)
for g in range(G): A(f'v_cvt_pk_bf16_f32 v{SC+g}, v{SC+g}, v2')
for i in range(24): A(f'v_mov_b32 v{ACC+i}, 0')
A('''
v_and_b32 v8, 7, v0
v_lshlrev_b32 v8, 5, v8
v_lshrrev_b32 v9, 4, v0
v_lshl_add_u32 v8, v9, 3, v8
s_mul_i32 s69, s3, 768
v_add_u32 v8, s69, v8
v_mov_b32 v11, 1
''')
def pv(idx):
    g, j = divmod(idx, 3)
    r = vreg(g) + 4 * j
    if j == 0: A(f'v_lshlrev_b32 v10, 16, v{SC+g}')
    for e in range(4):
        A(f'v_dot2c_f32_bf16 v{ACC+8*j+2*e}, v{r+e}, v{SC+g}')
        A(f'v_dot2c_f32_bf16 v{ACC+8*j+2*e+1}, v{r+e}, v10')
done_idx = -1; pv_next = 0
assert nv < NV - opt['t1'] and opt['t1'] >= opt['t2']
while nv < NV:
    issue_load('V', nv // 3, nv % 3, D)
    done_idx = nv - DC
    nv += 1
    for key, off in (('t1', 8), ('t2', 4)):
        if nv == NV - opt[key]:
            A(f's_mov_b64 exec, 1\nds_add_u32 v2, v11 offset:{CNT+off}\ns_mov_b64 exec, -1')
    cnt = 0
    while pv_next <= done_idx and cnt < 2:
        pv(pv_next); pv_next += 1; cnt += 1
def scale_factor():
    def body():
        A(f'ds_read_b128 v[12:15], v2 offset:{GS}')
        A(f'ds_read_b32 v7, v2 offset:{INFO}')
        A('s_waitcnt lgkmcnt(0)')
        A('v_cmp_eq_u32 vcc, 0, v15')
    spin(body, 1)
    A('v_sub_f32 v9, v4, v12\nv_mul_f32 v9, s68, v9\nv_exp_f32 v9, v9\nv_readfirstlane_b32 s46, v7\nv_mul_f32 v9, v9, v13')
    A(f'''
v_min_u32 v12, 47, v0
v_lshlrev_b32 v13, 7, v12
v_lshlrev_b32 v12, 4, v12
s_mul_i32 s74, s6, 6144
s_lshl4_add_u32 s74, s7, s74
s_add_u32 s74, s74, {OP}
s_lshl_b32 s75, s4, 9
s_lshl4_add_u32 s75, s79, s75
s_add_u32 s75, s75, {DN2}
s_mov_b32 s22, 0xaaaaaaaa
s_mov_b32 s23, 0xaaaaaaaa
v_mov_b32 v14, s30
v_mov_b32 v15, s31
''')
def reduce_js(js):
    B_ = [ACC + 8 * j for j in js]
    for b in B_:
        for e in range(4): A(f'{S32} v{b+e}, v{b+e+4}')
    for b in B_:
        if opt['red'] & 1:
            for e in (0, 2): A(f'v_pk_add_f32 v[{b+e}:{b+e+1}], v[{b+e}:{b+e+1}], v[{b+e+4}:{b+e+5}]')
        else:
            for e in range(4): A(f'v_add_f32 v{b+e}, v{b+e}, v{b+e+4}')
    for b in B_:
        for e in range(2): A(f'{S16} v{b+e}, v{b+e+2}')
    for b in B_:
        if opt['red'] & 1: A(f'v_pk_add_f32 v[{b}:{b+1}], v[{b}:{b+1}], v[{b+2}:{b+3}]')
        else:
            for e in range(2): A(f'v_add_f32 v{b+e}, v{b+e}, v{b+e+2}')
    for b in B_:
        for e in range(2): A(f'v_add_f32_dpp v{b+e}, v{b+e}, v{b+e} row_ror:8 {DPPM}')
    for j, b in zip(js, B_):
        for e in range(2): A(f'v_mul_f32 v{b+e}, v9, v{b+e}')
        A(f'ds_write_b64 v8, v[{b}:{b+1}] offset:{OL+256*j}')
PLAN = {0: {0: [0], 1: [1], 2: [2]}, 1: {1: [0, 1], 2: [2]}, 2: {2: [0, 1, 2]}, 3: {0: [0], 2: [1, 2]}}[opt['red'] >> 1]
fd = False
while pv_next < NV:
    if pv_next >= NV - 3 and not fd:
        scale_factor(); fd = True
    if pv_next > done_idx:
        A(f's_waitcnt vmcnt({NV - 1 - pv_next})')
        hupto(3 * G + pv_next + 1)
        done_idx = pv_next
    pv(pv_next); pv_next += 1
    if pv_next > NV - 3 and (pv_next - 1) % 3 in PLAN: reduce_js(PLAN[(pv_next - 1) % 3])
if opt['spec'] & 1:
    A(f's_mov_b64 exec, 1\nds_add_rtn_u32 v10, v2, v11 offset:{CNT}\ns_mov_b64 exec, -1')
    for w in range(8): A(f'ds_read_b128 v[{16+4*w}:{19+4*w}], v12 offset:{OL+768*w}')
    A('s_waitcnt lgkmcnt(8)\nv_readfirstlane_b32 s68, v10\ns_cmp_lg_u32 s68, 7\ns_cbranch_scc1 L_nopub')
else:
    A(f'''
s_mov_b64 exec, 1
ds_add_rtn_u32 v10, v2, v11 offset:{CNT}
s_waitcnt lgkmcnt(0)
v_readfirstlane_b32 s68, v10
s_mov_b64 exec, -1
s_cmp_lg_u32 s68, 7
s_cbranch_scc1 L_nopub
''')
    for w in range(8): A(f'ds_read_b128 v[{16+4*w}:{19+4*w}], v12 offset:{OL+768*w}')
def add4(d, a_, b_):
    if opt['red'] & 1:
        for e in (0, 2): A(f'v_pk_add_f32 v[{d+e}:{d+e+1}], v[{a_+e}:{a_+e+1}], v[{b_+e}:{b_+e+1}]')
    else:
        for e in range(4): A(f'v_add_f32 v{d+e}, v{a_+e}, v{b_+e}')
for w in range(0, 8, 2):
    A(f's_waitcnt lgkmcnt({6-w})')
    add4(16 + 4 * w, 16 + 4 * w, 20 + 4 * w)
    if w == 2 or w == 6: add4(8 + 4 * w, 8 + 4 * w, 16 + 4 * w)
add4(4, 16, 32)
A('''
v_cvt_pk_bf16_f32 v8, v4, v5
v_cvt_pk_bf16_f32 v9, v6, v7
v_cndmask_b32 v4, v8, v14, s[22:23]
v_cndmask_b32 v5, v9, v15, s[22:23]
v_cndmask_b32 v6, v14, v8, s[22:23]
v_cndmask_b32 v7, v15, v9, s[22:23]
''')
publish([((1 << 48) - 1, 'buffer_store_dwordx4 v[4:7], v13, @, s74 offen')])
mark(3)
A('s_mov_b64 exec, 1')
if opt['nB'] and opt['hintB'] == 2: A('buffer_store_dwordx4 v[4:7], v12, s[32:35], s75 offen')
if opt['pubwait']: A('s_waitcnt vmcnt(0)')
if opt['pubwait'] and opt['opdiag']: mark(1)
A(f'ds_write_b32 v2, v11 offset:{INFO + 4}')
A('s_mov_b64 exec, -1')
flush([(1, 9), (2, 10), (3, 16)])
A('L_nopub:')
if STAMPS:
    A('s_cmp_lg_u32 s3, 0\ns_cbranch_scc1 L_nost0')
    flush([(0, 0)])
    A('L_nost0:')
if opt['abl'] & 16: A('s_endpgm')
A('s_cmp_eq_u32 s3, 7\ns_cbranch_scc1 L_end')
get_role(1)
A('''
s_cmp_lt_u32 s5, 12
s_cbranch_scc1 L_ffn
s_cmp_lt_u32 s5, 20
s_cbranch_scc1 L_end
s_cmp_lt_u32 s3, 5
s_cbranch_scc1 L_f1
s_endpgm
''')

A('L_q2:')
A('s_mov_b32 s69, 0xffff0000')
ws_srds()
mktag()
QX = 0
if opt['dyn'] in (4, 5):
    A(f'''
s_mul_i32 s64, s4, 768
s_add_u32 s64, s64, {TK}
s_add_u32 s65, s79, s73
s_cmp_eq_u32 s65, 0
s_cselect_b32 s64, s64, {WSN}
v_mov_b32 v92, 0
v_mov_b32 v93, 0
v_mov_b32 v94, s30
v_mov_b32 v95, s31
s_mov_b64 exec, 1
buffer_store_dwordx4 v[92:95], off, s[24:27], s64 sc1
s_mov_b64 exec, -1
''')
    QX += 1
if opt['dyn'] == 3:
    A(f'''
s_mul_i32 s64, s6, 768
s_add_u32 s64, s64, {TK}
s_add_u32 s65, s7, s73
s_cmp_eq_u32 s65, 0
s_cselect_b32 s64, s64, {WSN}
v_mov_b32 v91, 0
s_mov_b64 exec, 1
buffer_store_dword v91, off, s[24:27], s64 sc1
s_mov_b64 exec, -1
''')
    QX += 1
A(f's_waitcnt vmcnt({20+QX})')
sd(5)
for i in range(5):
    A(f'v_lshlrev_b32 v{XU+2*i}, 16, v{XS+i}')
    A(f'v_and_b32 v{XU+1+2*i}, s69, v{XS+i}')
A(f'''
v_add_f32 v4, v{XU}, v{XU+1}
v_add_f32 v5, v{XU+2}, v{XU+3}
v_add_f32 v6, v{XU+4}, v{XU+5}
v_add_f32 v7, v{XU+6}, v{XU+7}
v_add_f32 v4, v4, v5
v_add_f32 v6, v6, v7
v_add_f32 v5, v{XU+8}, v{XU+9}
v_add_f32 v4, v4, v6
v_add_f32 v4, v4, v5
''')
allreduce64('v_add_f32', [4], [5])
A(f'v_mul_f32 v4, {f32(1.0/640)}, v4')
for i in range(10): A(f'v_sub_f32 v{XU+i}, v{XU+i}, v4')
A(f'v_mul_f32 v5, v{XU}, v{XU}')
for i in range(1, 10): A(f'v_fmac_f32 v5, v{XU+i}, v{XU+i}')
allreduce64('v_add_f32', [5], [6])
A(f'v_mul_f32 v5, {f32(1.0/640)}, v5')
bf16r(4, 4); bf16r(5, 5)
A(f'v_add_f32 v5, {f32(1e-5)}, v5')
bf16r(5, 5)
A('v_sqrt_f32 v5, v5')
bf16r(5, 5)
A('v_rcp_f32 v5, v5')
A('v_mov_b32 v6, 0')
A(f's_waitcnt vmcnt({10+QX})')
for r in range(10): A(f'v_lshlrev_b32 v{XR+r}, 16, v{XR+r}')
for r in range(10): A(f'v_sub_f32 v{XR+r}, v{XR+r}, v4')
for r in range(10): A(f'v_cvt_pk_bf16_f32 v{XR+r}, v6, v{XR+r}')
for r in range(10): A(f'v_mul_f32 v{XR+r}, v{XR+r}, v5')
for r in range(10):
    A(f'v_cvt_pk_bf16_f32 v{XU+r}, v6, v{XR+r}')
    A(f'v_cvt_pk_bf16_f32 v{XR+r}, v{XR+r}, v6')
for e in range(8): A(f'v_mov_b32 v{QA+e}, 0')
A(f'''
v_and_b32 v90, 7, v0
v_lshrrev_b32 v6, 5, v0
v_lshl_add_u32 v90, v90, 1, v6
v_lshlrev_b32 v90, 4, v90
s_mul_i32 s60, s6, 3
s_add_u32 s60, s60, s73
s_lshl_b32 s60, s60, 11
s_add_u32 s60, s60, {QP}
s_lshl_b32 s64, s7, 8
s_add_u32 s64, s64, s60
''')
for r in range(10):
    A(f's_waitcnt vmcnt({9-r+QX if r < 9 else 0})')
    hstamp(r)
    for e in range(4):
        A(f'v_dot2c_f32_bf16 v{QA+2*e}, v{WQ+4*r+e}, v{XR+r}')
        A(f'v_dot2c_f32_bf16 v{QA+2*e+1}, v{WQ+4*r+e}, v{XU+r}')
mark(1)
for e in range(4): A(f'{S32} v{QA+e}, v{QA+e+4}')
for e in range(4): A(f'v_add_f32 v{QA+e}, v{QA+e}, v{QA+e+4}')
swapreduce(S16, 'v_add_f32', [QA + e for e in range(4)], [QA + 4 + e for e in range(4)])
for e in range(4): A(f'v_add_f32_dpp v{QA+e}, v{QA+e}, v{QA+e} row_ror:8 {DPPM}')
for e in range(3):
    A(f's_mov_b32 s68, 0x070605{e+1:02x}\nv_perm_b32 v{QA+e}, v{QA+e}, v{QA+3}, s68')
A(f'v_mov_b32 v{QA+3}, s30')
QM = 0x000000ff000000ff
if not opt['forceslow'] and not opt['abl'] & 2:
    setexec(QM)
    A(f'buffer_store_dwordx4 v[{QA}:{QA+3}], v90, s[32:35], s64 offen')
    setexec(ALL)
A('''
v_lshlrev_b32 v2, 4, v0
v_and_b32 v3, 15, v0
v_lshl_add_u32 v3, v3, 1, v6
v_lshlrev_b32 v3, 2, v3
s_lshl_b32 s69, s73, 7
v_add_u32 v3, s69, v3
v_mov_b32 v1, 0
s_mov_b32 s65, 0
s_mov_b32 s61, 0x0c04000c
s_mov_b32 s62, 0x0402010c
''')
def q_lazy():
    skip = newlabel('qlazy')
    A(f'''
ds_read_b32 v4, v1 offset:{INFO}
s_waitcnt lgkmcnt(0)
v_readfirstlane_b32 s46, v4
s_sub_u32 s68, s46, s65
s_cmp_lg_u32 s68, 2
s_cbranch_scc1 {skip}
''')
    setexec(QM)
    A(f'buffer_store_dwordx4 v[{QA}:{QA+3}], v90, s[24:27], s64 offen sc1')
    setexec(ALL)
    A(f's_mov_b32 s65, 1\n{skip}:')
def body():
    for n in range(2):
        A(f'buffer_load_dwordx4 v[{8+4*n}:{11+4*n}], v2, s[16:19], s60 offen offset:{1024*n}{LF}')
    A('s_waitcnt vmcnt(0)')
    A('v_cmp_ne_u32 vcc, s30, v11\nv_cmp_ne_u32 s[20:21], s30, v15\ns_or_b64 vcc, vcc, s[20:21]')
sleep(opt['qdelay'])
if not opt['abl'] & 34: spin2(body, opt['qsleep'], retry=q_lazy)
mark(2)
for n in (8, 12):
    A(f'v_perm_b32 v{n+3}, v{n+1}, v{n}, s61\nv_perm_b32 v{n+3}, v{n+2}, v{n+3}, s62')
for e in range(4): A(f'v_add_f32 v{8+e}, v{8+e}, v{12+e}')
A(f'{S32} v8, v10\n{S32} v9, v11\nv_add_f32 v8, v8, v10\nv_add_f32 v9, v9, v11')
swapreduce(S16, 'v_add_f32', [8, 9], [10, 11])
A(f'''
v_cvt_pk_bf16_f32 v8, v8, v9
ds_write_b32 v3, v8 offset:{QL}
''')
get_mode()
q_lazy()
A(f'''
s_lshl_b32 s69, s73, 3
v_mov_b32 v4, s69
v_mov_b32 v6, 1
s_waitcnt vmcnt(0) lgkmcnt(0)
ds_write_b32 v4, v6 offset:{QF}
''')
if opt['abl'] & 16: A('s_endpgm')
A('s_cmp_lg_u32 s3, 8\ns_cbranch_scc1 L_role')
if opt['dyn'] == 1:
    lds_wait_ge(CNT + 8, 8, 2)
    A('''
s_lshl_b32 s68, s4, 3
s_lshl_b64 s[20:21], 1, s68
v_mov_b32 v6, s20
v_mov_b32 v7, s21
s_mov_b64 exec, 1
global_atomic_add_x2 v[4:5], v1, v[6:7], s[56:57] sc0 sc1
s_waitcnt vmcnt(0)
v_readfirstlane_b32 s20, v4
v_readfirstlane_b32 s21, v5
s_lshr_b64 s[22:23], s[20:21], s68
s_and_b32 s22, s22, 31
s_and_b32 s23, s20, 0xff
''')
    for i in range(1, 8):
        A(f's_bfe_u32 s69, s{20 + i // 4}, {(8 << 16) | (8 * (i % 4))}\ns_min_u32 s23, s23, s69')
    A('s_lshl_b32 s23, s23, 8\ns_add_u32 s22, s22, s23\ns_add_u32 s22, s22, 1\nv_mov_b32 v5, s22')
elif opt['dyn'] == 2:
    lds_wait_ge(CNT + 8, 8, 2)
    A('''
s_lshl_b32 s68, s4, 5
v_mov_b32 v6, s68
v_mov_b32 v5, 1
s_mov_b64 exec, 1
global_atomic_add v5, v6, v5, s[56:57] sc0 sc1
s_waitcnt vmcnt(0)
v_and_b32 v5, 31, v5
v_add_u32 v5, 1, v5
''')
elif opt['dyn'] == 4:
    A(f's_mul_i32 s66, s4, 768\ns_add_u32 s66, s66, {TK}')
    def body():
        A('buffer_load_dwordx4 v[4:7], off, s[24:27], s66 sc1')
        A('s_waitcnt vmcnt(0)')
        tagcheck([6])
    spin(body, 20)
    lds_wait_ge(CNT + 8, 8, 2)
    A(f'''
v_mov_b32 v5, 1
s_mov_b64 exec, 1
buffer_atomic_add v5, off, s[24:27], s66 sc0 sc1
s_waitcnt vmcnt(0)
v_and_b32 v5, 31, v5
v_add_u32 v5, 1, v5
''')
elif opt['dyn'] == 5:
    A(f'''
s_mul_i32 s66, s4, 768
s_add_u32 s66, s66, {TK}
s_mov_b32 s70, {SPIN}
s_load_dwordx4 s[20:23], s[58:59], s66
s_branch L_tkw0
L_tkchk:
s_load_dwordx4 s[20:23], s[58:59], s66 glc
L_tkw0:
s_waitcnt lgkmcnt(0)
s_cmp_eq_u64 s[22:23], s[30:31]
s_cbranch_scc1 L_tkok
s_sleep 20
s_sub_u32 s70, s70, 1
s_cbranch_scc0 L_tkchk
''')
    trap(204)
    A('L_tkok:')
    lds_wait_ge(CNT + 8, 8, 1)
    A(f'''
s_mov_b32 s20, 1
s_atomic_add s20, s[58:59], s66 glc
''')
    if opt['mA'] or opt['mB']:
        A(f'''
s_load_dword s21, s[56:57], 0
s_waitcnt lgkmcnt(0)
s_cmp_eq_u32 s20, {opt['mA'] - 1}
s_cselect_b32 s22, 1, 0
s_cmp_eq_u32 s20, {opt['mB'] - 1}
s_cselect_b32 s23, 0x100, 0
s_or_b32 s22, s22, s23
s_cbranch_scc0 L_nog
s_atomic_add s22, s[56:57], 0
L_nog:
s_lshl_b32 s21, s21, 8
''')
    else: A('s_mov_b32 s21, 0')
    A(f'''
s_mov_b64 exec, 1
s_waitcnt lgkmcnt(0)
s_and_b32 s20, s20, 31
s_add_u32 s20, s20, 1
s_add_u32 s20, s20, s21
v_mov_b32 v5, s20
''')
elif opt['dyn'] == 3:
    lds_wait_ge(CNT + 8, 8, 2)
    A(f'''
s_mul_i32 s68, s6, 768
s_add_u32 s68, s68, {TK}
v_mov_b32 v5, 1
s_mov_b64 exec, 1
buffer_atomic_add v5, off, s[24:27], s68 sc0 sc1
s_and_b32 s68, s6, 3
s_add_u32 s68, s68, 1
s_waitcnt vmcnt(0)
v_and_b32 v5, 7, v5
v_lshl_add_u32 v5, v5, 2, s68
''')
else:
    A('s_add_u32 s68, s79, 1\nv_mov_b32 v5, s68\ns_mov_b64 exec, 1')
A(f'''
ds_write_b32 v1, v5 offset:{ROLE}
s_mov_b64 exec, -1
''')
mark(4)
flush([(1, 1), (2, 2), (4, 6)])
A('s_branch L_role')

A('L_misc2:')
A('s_getreg_b32 s64, hwreg(HW_REG_XCC_ID)')
ws_srds()
NP = opt['nprobe']
if opt['near']:
    A(f'''
v_and_b32 v1, 31, v0
v_lshlrev_b32 v1, 4, v1
v_lshrrev_b32 v2, 5, v0
v_lshl_add_u32 v1, v2, 13, v1
s_lshl_b32 s66, s2, 9
s_and_b32 s68, s66, 0xffffe000
s_add_u32 s66, s66, s68
s_add_u32 s66, s66, {PR}
v_mov_b32 v6, 0
v_mov_b32 v7, 0
''')
    A(f"s_cmp_ge_u32 s79, {opt['npw']}\ns_cbranch_scc1 L_nopr0")
    setexec(((1 << (8 * NP)) - 1) * 0x100000001)
    A('buffer_store_dwordx4 v[4:7], v1, s[24:27], s66 offen sc1')
    setexec(ALL)
    A('L_nopr0:')
mktag()
A(f'''
{'s_mov_b32 s46, 1' + chr(10) + 's_branch L_idset' if opt['abl'] & 1 else ''}
s_and_b32 s64, s64, 15
v_mov_b32 v4, s30
v_mov_b32 v5, s31
v_mov_b32 v6, s64
v_mov_b32 v7, s64
s_lshl_b32 s68, s4, 9
s_add_u32 s68, s68, {ID}
s_lshl_b32 s69, s79, 4
v_mov_b32 v1, s69
s_mov_b64 exec, 1
buffer_store_dwordx4 v[4:7], v1, s[32:35], s68 offen
s_mov_b64 exec, -1
v_and_b32 v1, 31, v0
v_lshlrev_b32 v1, 4, v1
s_mov_b32 s70, {opt['idtries']}
s_mov_b32 s46, 2
L_idpoll:
s_sleep {opt['idsleep']}
buffer_load_dwordx4 v[8:11], v1, s[32:35], s68 offen{LF}
s_waitcnt vmcnt(0)
v_cmp_ne_u64 vcc, s[30:31], v[8:9]
s_nop 0
s_cbranch_vccz L_iddone
s_sub_u32 s70, s70, 1
s_cbranch_scc0 L_idpoll
s_branch L_idset
L_iddone:
v_cmp_ne_u32 vcc, s64, v10
s_nop 0
s_cbranch_vccnz L_idset
s_mov_b32 s46, {2 if opt['forceslow'] else 1}
L_idset:
v_mov_b32 v1, 0
v_mov_b32 v4, s46
ds_write_b32 v1, v4 offset:{INFO}
''')
mark(1)
if opt['near']:
    A(f's_mov_b32 s60, -1\ns_mov_b32 s61, -1\ns_lshl_b32 s67, s4, 9\ns_add_u32 s67, s67, {PV}')
    A(f"s_cmp_ge_u32 s79, {opt['npw']}\ns_cbranch_scc1 L_nopr1\ns_waitcnt lgkmcnt(0)")
    for i in range(NP):
        for c in range(2):
            A(f'''
s_add_u32 s69, s66, {128*i + 8192*c}
s_memtime s[62:63]
s_waitcnt lgkmcnt(0)
s_load_dword s65, s[58:59], s69
s_waitcnt lgkmcnt(0)
s_memtime s[20:21]
s_waitcnt lgkmcnt(0)
s_sub_u32 s62, s20, s62
s_min_u32 s{60+c}, s{60+c}, s62
''')
    if opt['share']:
        A(f'''
s_lshl_b32 s69, s79, 4
v_mov_b32 v1, s69
v_mov_b32 v4, s60
v_mov_b32 v5, s61
v_mov_b32 v6, s30
v_mov_b32 v7, s31
s_mov_b64 exec, 1
buffer_store_dwordx4 v[4:7], v1, s[32:35], s67 offen
s_mov_b64 exec, -1
''')
    A('L_nopr1:')
else:
    A('s_mov_b32 s47, 0')
mark(2)
A('v_and_b32 v1, 7, v0\nv_lshlrev_b32 v1, 4, v1')
def body():
    A(f'ds_read_b128 v[4:7], v1 offset:{SL}')
    A('s_waitcnt lgkmcnt(0)')
    A('v_cmp_eq_u32 vcc, 0, v7')
spin(body, 4)
def combine_stats():
    A(f's_mov_b32 s68, {f32(LOG2E)}')
    A('v_mov_b32 v2, v4')
    allreduce8('v_max_f32', [2])
    A('v_sub_f32 v4, v4, v2\nv_mul_f32 v4, s68, v4\nv_exp_f32 v4, v4\nv_mul_f32 v3, v4, v5')
    allreduce8('v_add_f32', [3])
combine_stats()
A(f'''
s_lshl_b32 s68, s71, 4
s_add_u32 s68, s68, {ST}
v_mov_b32 v4, s30
v_mov_b32 v5, s31
''')
publish([(1, 'buffer_store_dwordx4 v[2:5], v1, @, s68 offen')])
if opt['near']:
    if opt['share']:
        A(f'''
s_cmp_lg_u32 s46, 1
s_cbranch_scc1 L_noshare
v_and_b32 v8, {7 if opt['npw'] <= 8 else 31}, v0
v_lshlrev_b32 v8, 4, v8
buffer_load_dwordx4 v[4:7], v8, s[32:35], s67 offen{LF}
s_waitcnt vmcnt(0)
v_cmp_eq_u64 vcc, s[30:31], v[6:7]
v_cndmask_b32 v4, -1, v4, vcc
v_cndmask_b32 v5, -1, v5, vcc
''')
        allreduce16('v_min_u32', [4, 5])
        swapreduce(S16, 'v_min_u32', [4, 5], [6, 7])
        A('''
v_readfirstlane_b32 s62, v4
v_readfirstlane_b32 s63, v5
s_min_u32 s60, s60, s62
s_min_u32 s61, s61, s63
L_noshare:
''')
    A('s_cmp_lt_u32 s61, s60\ns_cselect_b32 s47, 8192, 0')
    if opt['fixnear'] >= 0: A(f"s_mov_b32 s47, {8192*opt['fixnear']}")
    if STAMPS: A('s_mov_b32 s90, s60\ns_mov_b32 s91, s61')
A(f'v_mov_b32 v8, 0\nv_mov_b32 v4, s47\nds_write_b32 v8, v4 offset:{NEAR}')
A(f's_lshl_b32 s74, s6, 7\ns_add_u32 s74, s74, {ST}')
def body():
    sleep(opt['stsleep'])
    A(f'buffer_load_dwordx4 v[4:7], v1, s[16:19], s74 offen{LF}')
    A('s_waitcnt vmcnt(0)')
    tagcheck([6])
spin2(body, 0, local_only=True)
mark(3)
combine_stats()
A(f'''
v_rcp_f32 v3, v3
v_mov_b32 v4, 1
v_mov_b32 v5, 1
v_mov_b32 v1, 0
ds_write_b128 v1, v[2:5] offset:{GS}
''')
flush([(1, 3), (2, 4), (3, 5), (5, 7)])
if opt['abl'] & 16: A('s_endpgm')
if opt['nA'] or (opt['nB'] and opt['hintB'] == 1):
    lds_wait_ge(CNT + 4, 8, 1)
    A(f'''
s_lshl_b32 s68, s4, 9
s_lshl4_add_u32 s68, s79, s68
s_add_u32 s68, s68, {DN1}
v_mov_b32 v6, s30
v_mov_b32 v7, s31
s_mov_b64 exec, 1
buffer_store_dwordx4 v[4:7], v1, s[32:35], s68 offen
s_mov_b64 exec, -1
''')

A('L_role:')
get_role(opt['rsleep'])
A('s_cmp_lt_u32 s5, 20\ns_cbranch_scc0 ' + ('L_tiles' if opt['tearly'] else 'L_end'))
BW = 64
XM = 52
def tr_addr(dst, tmp):
    A(f'''
v_lshrrev_b32 v{dst}, 4, v0
v_lshlrev_b32 v{dst}, 10, v{dst}
v_bfe_u32 v{tmp}, v0, 2, 2
v_lshl_add_u32 v{dst}, v{tmp}, 7, v{dst}
v_and_b32 v{tmp}, 3, v0
v_lshl_add_u32 v{dst}, v{tmp}, 3, v{dst}
''')
srd(12, 44, 6144 * 640 * 2)
tr_addr(24, 25)
A(f'''
s_cmp_ge_u32 s5, 10
s_cselect_b32 s76, 1, 0
s_mul_i32 s77, s76, 10
s_sub_u32 s77, s5, s77
s_lshl1_add_u32 s78, s4, s76
s_lshl2_add_u32 s78, s78, s73
v_lshrrev_b32 v2, 3, v0
v_mul_u32_u24 v26, 1280, v2
v_and_b32 v3, 7, v0
v_lshl_add_u32 v26, v3, 4, v26
s_mul_i32 s60, s78, {96*1280}
s_lshl_b32 s69, s77, 7
s_add_u32 s60, s60, s69
s_mul_i32 s61, s73, 12288
v_add_u32 v24, s61, v24
s_add_u32 s61, s61, {WL}
v_lshlrev_b32 v60, 4, v0
s_mul_i32 s74, s78, 3072
s_add_u32 s74, s74, {OP}
v_lshlrev_b32 v62, 2, v0
s_lshl_b32 s68, s73, 8
v_add_u32 v61, s68, v62
s_mul_i32 s75, s4, 5120
s_lshl_b32 s69, s5, 8
s_add_u32 s75, s75, s69
s_and_b32 s69, s75, 0xffffe000
s_add_u32 s75, s75, s69
s_add_u32 s75, s75, {YP}
s_xor_b32 s{62 + (opt['ord'] & 1)}, s47, 8192
s_add_u32 s{62 + (opt['ord'] & 1)}, s{62 + (opt['ord'] & 1)}, s75
s_add_u32 s{63 - (opt['ord'] & 1)}, s47, s75
s_mov_b32 s66, 0xff00ff00
s_mov_b32 s67, 0xff00ff00
v_mov_b32 v50, s30
v_mov_b32 v51, s31
v_mov_b32 v28, 0
v_mov_b32 v29, 1
v_cndmask_b32 v{XM}, 0, v50, s[66:67]
v_cndmask_b32 v{XM+1}, 0, v51, s[66:67]
v_cndmask_b32 v{XM+2}, v50, 0, s[66:67]
v_cndmask_b32 v{XM+3}, v51, 0, s[66:67]
''')
AO = 8
RF = ' sc1' if opt['fnt'] else LF
def op_loads(srdn, fl=LF, AO=8):
    for t in range(3):
        A(f'buffer_load_dwordx4 v[{AO+4*t}:{AO+4*t+3}], v60, s[{srdn}:{srdn+3}], s74 offen offset:{1024*t}{fl}')
if opt['prer'] == 2: op_loads(32)
lds_wait_ge(CNT + 4, 8, 1)
hint_wait(DN1, opt['nA'])
mark(3)
if opt['prer'] == 1: op_loads(32)
DW = opt['DWO'] if not opt['nb1'] else 12
def wo_issue(DW, nb1):
    for n in range(12):
        if n >= DW: A(f's_waitcnt vmcnt({DW-1})')
        if nb1 and n == nb1: lds_wait_ge(INFO + 4, 1, 1)
        A('s_mov_b32 m0, s61')
        if not opt['abl'] & 64: A('buffer_load_dwordx4 v26, s[12:15], s60 offen nt lds')
        if n < 11:
            A(f's_add_u32 s60, s60, {8*1280}')
            A('s_add_u32 s61, s61, 1024')
if opt['mA']:
    A(f"s_and_b32 s68, s28, 0xff\ns_cmp_ge_u32 s68, {opt['GA']}\ns_cbranch_scc1 L_wofast")
    wo_issue(opt['gA'], 0)
    A('s_branch L_wodone\nL_wofast:')
wo_issue(DW, opt['nb1'])
A('L_wodone:')
if opt['oppipe']:
    A(f's_cmp_eq_u32 s46, 1\ns_cselect_b32 s16, s32, s24\ns_cselect_b32 s17, s33, s25\ns_mov_b32 s18, {WSN}\ns_mov_b32 s19, 0x20000\ns_mov_b32 s70, {SPIN}')
    assert opt['ope'] >= 0
E = 0
for t in range(3):
    if t == 2 and opt['ope'] >= 0:
        A(f"s_waitcnt vmcnt({opt['ope']})")
        if opt['opdiag']: mark(1)
        op_loads(32, RF); E = 3
    if opt['hist']:
        for m in range(11 - 4 * t, 7 - 4 * t, -1):
            if m < DW: A(f's_waitcnt vmcnt({m + E})'); hstamp(21 - m)
    A(f's_waitcnt vmcnt({8 - 4 * t + E})')
    for u in range(4):
        r = BW + 4 * (4 * t + u)
        A(f'ds_read_b64_tr_b16 v[{r}:{r+1}], v24 offset:{WL + 4096*t + 32*u}')
        A(f'ds_read_b64_tr_b16 v[{r+2}:{r+3}], v24 offset:{WL + 4096*t + 32*u + 512}')
mark(4)
if not E:
    lds_wait_ge(CNT, 8, 1)
    if opt['opdiag']: mark(1)
    op_loads(32, RF if opt['prer'] else LF)
else: A('s_waitcnt lgkmcnt(8)' if not STAMPS else 's_waitcnt lgkmcnt(0)')
def op_use(AO, later):
    for t in range(3):
        A(f's_waitcnt vmcnt({2-t+later})' + (' lgkmcnt(0)' if t == 2 else ''))
        q = AO + 4 * t
        for e in range(4): A(f'v_xor_b32 v{q+e}, v{q+e}, v{XM+e}')
        for u in range(4):
            r = BW + 4 * (4 * t + u)
            c = '0' if t == 0 else f'v[{32+4*u}:{35+4*u}]'
            A(f'v_mfma_f32_16x16x32_bf16 v[{32+4*u}:{35+4*u}], v[{q}:{q+3}], v[{r}:{r+3}], {c}')
        if t == 0:
            A(f'v_or_b32 v2, v{q}, v{q+1}\nv_or_b32 v3, v{q+2}, v{q+3}')
        else:
            A(f'v_or3_b32 v2, v2, v{q}, v{q+1}\nv_or3_b32 v3, v3, v{q+2}, v{q+3}')
    A('v_cndmask_b32 v2, v3, v2, s[66:67]')
    A('v_cmp_ne_u32 vcc, 0, v2')
if not opt['oppipe']:
    def body():
        op_loads(16, RF)
        A('L_opw0:')
        op_use(8, 0)
    spin2(body, 0, local_only=True, enter='L_opw0')
else:
    A('L_opp:')
    op_loads(16, RF, 124)
    op_use(8, 3)
    A('s_nop 0\ns_cbranch_vccz L_opd')
    op_loads(32, RF, 8)
    op_use(124, 3)
    A('s_nop 0\ns_cbranch_vccz L_opd\ns_sub_u32 s70, s70, 1\ns_cbranch_scc0 L_opp')
    trap(201)
    A('L_opd:')
mark(5)
for u in range(4):
    A(f'v_add_f32 v{4+u}, v{32+4*u}, v{33+4*u}\nv_add_f32 v{20+u}, v{34+4*u}, v{35+4*u}')
for u in range(4): A(f'v_add_f32 v{4+u}, v{4+u}, v{20+u}')
A(f'''
{S32} v4, v6
{S32} v5, v7
v_add_f32 v4, v4, v6
v_add_f32 v5, v5, v7
{S16} v4, v5
v_add_f32 v4, v4, v5
ds_write_b32 v61, v4 offset:{RL}
''')
if opt['spec'] & 2:
    A(f'''
s_mov_b64 exec, 1
ds_add_rtn_u32 v27, v28, v29 offset:{CNT + 12}
s_mov_b64 exec, -1
ds_read2st64_b32 v[4:5], v62 offset0:{RL // 256} offset1:{RL // 256 + 1}
ds_read2st64_b32 v[6:7], v62 offset0:{RL // 256 + 2} offset1:{RL // 256 + 3}
s_waitcnt lgkmcnt(2)
v_readfirstlane_b32 s68, v27
s_cmp_lg_u32 s68, 3
s_cbranch_scc1 {'L_opdiag' if opt['opdiag'] else 'L_end'}
s_waitcnt lgkmcnt(0)
''')
else:
    A(f'''
s_cmp_lg_u32 s3, 8
s_waitcnt lgkmcnt(0)
s_barrier
s_cbranch_scc1 {'L_opdiag' if opt['opdiag'] else 'L_end'}
ds_read_b32 v5, v62 offset:{RL+256}
ds_read_b32 v6, v62 offset:{RL+512}
ds_read_b32 v7, v62 offset:{RL+768}
s_waitcnt lgkmcnt(0)
''')
A(f'''
v_add_f32 v4, v4, v5
v_add_f32 v6, v6, v7
v_add_f32 v48, v4, v6
v_mov_b32_dpp v49, v48 quad_perm:[1,0,3,2] {DPPM}
v_cvt_pk_bf16_f32 v48, v48, v49
v_mov_b32_dpp v49, v48 quad_perm:[2,3,0,1] {DPPM}
''')
setexec(0x1111111111111111)
if opt['near']: A('buffer_store_dwordx4 v[48:51], v62, s[24:27], s62 offen sc1')
A('buffer_store_dwordx4 v[48:51], v62, s[24:27], s63 offen sc1')
mark(6)
A('s_barrier')
if opt['wbl']:
    A(f"s_cmp_lg_u32 s5, {opt['wbl']}\ns_cbranch_scc1 L_nowb\nbuffer_wbl2 sc1\nL_nowb:")
if STAMPS:
    A('s_mov_b32 s94, s5\ns_mov_b32 s95, 0')
flush([(3, 11), (4, 12), (5, 13), (6, 14), (7, 15)])
if opt['opdiag']:
    A(f'''
L_opdiag:
s_lshl_b32 s98, s2, 8
s_lshl_b32 s97, s73, 5
s_add_u32 s98, s98, s97
s_add_u32 s98, s98, {HB}
s_sub_u32 s97, {SPIN}, s70
s_waitcnt lgkmcnt(0)
v_mov_b32 v4, s86
v_mov_b32 v5, s88
v_mov_b32 v6, s90
v_mov_b32 v7, s97
v_mov_b32 v8, s82
v_mov_b32 v9, s5
v_mov_b32 v1, 0
s_mov_b64 exec, 1
buffer_store_dwordx4 v[4:7], v1, s[24:27], s98 offen
buffer_store_dwordx2 v[8:9], v1, s[24:27], s98 offen offset:16
''')
A('s_endpgm')

if opt['tearly']:
    A('L_tiles:')
    srd(12, 48, 640 * 1536 * 2); srd(16, 50, 640 * 1536 * 2)
    A(f'''
s_sub_u32 s75, s5, 20
s_lshr_b32 s78, s75, 2
s_and_b32 s75, s75, 3
s_mul_i32 s72, s75, {160*3072}
s_mul_i32 s68, s73, {8*3072}
s_add_u32 s72, s72, s68
s_mul_i32 s68, s4, 3
s_add_u32 s78, s78, s68
s_lshl_b32 s68, s78, 7
s_add_u32 s72, s72, s68
s_lshl_b32 s61, s73, 10
s_add_u32 s61, s61, {WL}
v_lshrrev_b32 v2, 3, v0
v_and_b32 v3, 7, v0
v_mul_u32_u24 v62, 3072, v2
v_lshl_add_u32 v62, v3, 4, v62
''')
    hint_wait(DN1 if opt['hintB'] == 1 else DN2, opt['nB'])
    if opt['tB'] == 0: lds_wait_ge(CNT + 4, 8, 1)
    elif opt['tB'] == 9: lds_wait_ge(INFO + 4, 1, 1)
    else: lds_wait_ge(CNT, opt['tB'], 1)
    mark(3)
    def tile_issue(DW, nb1):
        n = 0
        for t in range(5):
            for m in range(2):
                if n >= DW: A(f"s_waitcnt vmcnt({DW-1})")
                if nb1 and n == nb1: lds_wait_ge(INFO + 4, 1, 1)
                A(f's_add_u32 m0, s61, {8192*t + 4096*m}')
                if not opt['abl'] & 128: A(f'buffer_load_dwordx4 v62, s[{12+4*m}:{15+4*m}], s72 offen nt lds')
                n += 1
            if t < 4: A(f's_add_u32 s72, s72, {32*3072}')
    if opt['mB']:
        A(f"s_lshr_b32 s68, s28, 8\ns_cmp_ge_u32 s68, {opt['GB']}\ns_cbranch_scc1 L_tfast")
        lds_wait_ge(INFO + 4, 1, 1)
        tile_issue(opt['gB'], 0)
        A('s_branch L_tdone\nL_tfast:')
    tile_issue(opt['DWB'], opt['nb1B'])
    A('L_tdone:')
    if opt['hist']:
        for m in reversed(range(opt['DWB'])):
            A(f's_waitcnt vmcnt({m})'); hstamp(39 - m)
    A('s_waitcnt vmcnt(0)')
    mark(4)
    A('s_barrier')
    if STAMPS:
        A('s_cmp_lg_u32 s3, 8\ns_cbranch_scc1 L_end')
        flush([(3, 18), (4, 19)])
    A('s_endpgm')

assert opt['tearly']
B1R = 64
AR = 24
HRDY = CNT + 12
def yp_loads(fl='', b=104):
    A(f'buffer_load_dwordx4 v[{b}:{b+3}], v53, s[24:27], s60 offen sc1' + fl)
    A(f'buffer_load_dwordx4 v[{b+4}:{b+7}], v59, s[24:27], s60 offen sc1' + fl)
A('L_f1:')
tr_addr(58, 5)
A(f"""
s_sub_u32 s75, s5, 20
s_lshr_b32 s78, s75, 2
s_and_b32 s75, s75, 3
s_mul_i32 s74, s75, 5
s_add_u32 s74, s74, s3
s_mul_i32 s68, s4, 3
s_add_u32 s78, s78, s68
s_lshl_b32 s68, s3, 5
v_add_u32 v58, s68, v58
v_lshrrev_b32 v3, 4, v0
v_and_b32 v2, 7, v0
v_lshl_add_u32 v50, v2, 2, v3
v_lshlrev_b32 v50, 1, v50
s_lshl_b32 s68, s74, 6
v_add_u32 v61, s68, v50
s_lshl_b32 s68, s3, 6
v_add_u32 v51, s68, v50
v_lshlrev_b32 v52, 4, v3
v_lshlrev_b32 v54, 3, v0
v_lshrrev_b32 v53, 3, v0
v_mul_u32_u24 v53, 2560, v53
v_lshl_add_u32 v53, v2, 4, v53
s_lshl_b32 s68, s74, 7
v_add_u32 v53, s68, v53
v_add_u32 v59, {8*2560}, v53
s_add_u32 s60, s47, {YP}
v_lshlrev_b32 v55, 4, v0
v_mov_b32 v57, 0
s_lshl2_add_u32 s76, s78, s3
s_lshl2_add_u32 s76, s76, s75
s_lshl_b32 s76, s76, 8
s_add_u32 s76, s76, {PA}
s_lshl3_add_u32 s68, s78, s75
s_lshl_b32 s68, s68, 4
s_add_u32 s68, s68, {PS}
s_lshl2_add_u32 s69, s4, s75
s_mul_i32 s69, s69, 640
s_add_u32 s69, s69, {PH}
v_add_u32 v63, s69, v55
v_mov_b32 v4, s68
s_mov_b32 s8, 0
s_mov_b32 s9, 0x100
v_cndmask_b32 v63, v63, v4, s[8:9]
s_cmp_lt_u32 s5, 24
s_cselect_b32 s62, -1, 0
s_cselect_b32 s63, 0xff, 0
s_or_b32 s63, s63, 0x100
v_mov_b32 v14, s30
v_mov_b32 v15, s31
v_mov_b32 v44, 0x3f803f80
v_mov_b32 v45, 0x3f803f80
v_mov_b32 v46, 0x3f803f80
v_mov_b32 v47, 0x3f803f80
v_mov_b32 v8, 0
v_mov_b32 v9, 0
v_mov_b32 v10, 0
v_mov_b32 v11, 0
v_mov_b32 v112, 0x3f80
v_mov_b32 v113, 0x3f800000
""")
place(53, 4); place(59, 4)
A('global_load_ushort v56, v61, s[36:37]')
A('s_setprio 3\ns_barrier')
yp_loads()
mark(4)
A('s_cmp_eq_u32 s3, 4\ns_cbranch_scc1 L_f1nob')
for t in range(5):
    for m in range(2):
        r = B1R + 4 * (2 * t + m)
        A(f'ds_read_b64_tr_b16 v[{r}:{r+1}], v58 offset:{WL + 8192*t + 4096*m}')
        A(f'ds_read_b64_tr_b16 v[{r+2}:{r+3}], v58 offset:{WL + 8192*t + 4096*m + 512}')
A('s_waitcnt lgkmcnt(0)')
for t in range(5):
    for m in range(2):
        r = B1R + 4 * (2 * t + m); d = (116, 124)[m]
        A(f"v_mfma_f32_16x16x32_bf16 v[{d}:{d+3}], v[44:47], v[{r}:{r+3}], {'0' if t == 0 else 'v[%d:%d]' % (d, d+3)}")
A('L_f1nob:')
A('s_waitcnt vmcnt(2)\nv_lshlrev_b32 v56, 16, v56')
A(f's_mov_b32 s70, {SPIN}')
A('s_branch L_ypw0')
A('L_yppoll:')
yp_loads()
A('L_ypw0:')
A('s_waitcnt vmcnt(0)')
tagcheck([106, 110])
A('s_nop 0\ns_cbranch_vccz L_ypok')
sleep(opt['ysl'])
A('s_sub_u32 s70, s70, 1\ns_cbranch_scc0 L_yppoll')
trap(202)
A('L_ypok:')
mark(5)
for n in (104, 108):
    A(f'v_dot2c_f32_bf16 v8, v{n}, v112\nv_dot2c_f32_bf16 v10, v{n+1}, v112\nv_dot2c_f32_bf16 v9, v{n}, v113\nv_dot2c_f32_bf16 v11, v{n+1}, v113')
A(f"""
{S32} v8, v10
{S32} v9, v11
v_add_f32 v8, v8, v10
v_add_f32 v9, v9, v11
{S16} v8, v9
v_add_f32 v8, v8, v9
v_add_f32_dpp v8, v8, v8 row_ror:8 {DPPM}
v_cvt_pk_bf16_f32 v8, v57, v8
v_add_f32 v8, v8, v56
v_cvt_pk_bf16_f32 v8, v8, v8
ds_write_b16 v51, v8 offset:{HL}
s_cmp_eq_u32 s3, 4
s_waitcnt lgkmcnt(0)
s_barrier
""")
for t in range(5): A(f'ds_read_b128 v[{AR+4*t}:{AR+4*t+3}], v52 offset:{HL + 64*t}')
A('s_cbranch_scc1 L_f1st')
for t in range(5):
    A(f's_waitcnt lgkmcnt({4-t})')
    for m in range(2):
        r = B1R + 4 * (2 * t + m); d = 16 + 4 * m
        A(f"v_mfma_f32_16x16x32_bf16 v[{d}:{d+3}], v[{AR+4*t}:{AR+4*t+3}], v[{r}:{r+3}], {'0' if t == 0 else 'v[%d:%d]' % (d, d+3)}")
A('v_cvt_pk_bf16_f32 v12, v16, v116\nv_cvt_pk_bf16_f32 v13, v20, v124')
publish([(0xffff, 'buffer_store_dwordx4 v[12:15], v55, @, s76 offen')])
mark(6)
flush([(6, 27), (5, 11)], True)
A('s_endpgm')
A('L_f1st:')
A(f'ds_read_b64 v[12:13], v54 offset:{HL}')
for t in range(5):
    A(f's_waitcnt lgkmcnt({5-t})')
    a_ = f'v[{AR+4*t}:{AR+4*t+3}]'
    A(f"v_mfma_f32_16x16x32_bf16 v[16:19], {a_}, v[44:47], {'0' if t == 0 else 'v[16:19]'}")
    A(f"v_mfma_f32_16x16x32_bf16 v[20:23], {a_}, {a_}, {'0' if t == 0 else 'v[20:23]'}")
A('s_waitcnt lgkmcnt(0)\nv_cndmask_b32 v12, v12, v16, s[8:9]\nv_cndmask_b32 v13, v13, v20, s[8:9]')
publish([('s[62:63]', 'buffer_store_dwordx4 v[12:15], v63, @, 0 offen')])
mark(6)
flush([(6, 27), (5, 11)], True)
flush([(4, 17)])
A('s_endpgm')

A('L_ffn:')
A("""
v_mov_b32 v57, 0
s_mul_i32 s72, s4, 12
s_add_u32 s72, s72, s5
s_cmp_lt_u32 s3, 5
s_cbranch_scc1 L_f2
s_cmp_eq_u32 s3, 5
s_cbranch_scc1 L_hid
s_cmp_ge_u32 s5, 10
s_cbranch_scc1 L_end
""")
A(f"""
s_mul_i32 s72, s4, 10
s_add_u32 s72, s72, s5
v_lshrrev_b32 v2, 1, v0
v_mul_u32_u24 v2, 2560, v2
v_and_b32 v3, 1, v0
v_lshl_add_u32 v96, v3, 4, v2
s_lshl_b32 s68, s72, 5
v_add_u32 v96, s68, v96
v_add_u32 v100, {32*2560}, v96
v_add_u32 v101, {64*2560}, v96
s_add_u32 s10, s47, {FP}
v_lshrrev_b32 v4, 4, v0
v_lshl_add_u32 v97, v3, 2, v4
v_lshlrev_b32 v97, 1, v97
v_lshlrev_b32 v99, 4, v3
v_and_b32 v98, 16, v0
s_mul_i32 s13, s4, 2560
s_lshl_b32 s68, s72, 5
s_add_u32 s13, s13, s68
s_add_u32 s13, s13, {PH}
s_lshl_b32 s14, s72, 4
s_mov_b32 s69, 0xffff0000
""")
place(96, 4); place(100, 4); place(101, 4)
FS = 16
srd(64, 54, 1280)
A('v_cmp_lt_u32 s[62:63], 31, v0')
A('s_setprio 3\ns_barrier' + ('' if opt['spec'] & 2 else '\ns_barrier'))
if opt['hwarm']: A('buffer_load_dwordx4 v[12:15], v99, s[32:35], s13 offen nt')
A('v_mov_b32 v8, 0\nv_mov_b32 v9, 0\nv_mov_b32 v10, 0\nv_mov_b32 v11, 0\nv_mov_b32 v112, 0x3f80\nv_mov_b32 v113, 0x3f800000')
A('s_barrier')
if opt['fack']: A('s_barrier')
sleep(opt['fsleep'])
def body():
    A(f'buffer_load_dwordx4 v[4:7], v99, s[16:19], s13 offen{RF}')
    for n, a in enumerate((96, 100, 101)):
        r = FS + 4 * n
        A(f'buffer_load_dwordx4 v[{r}:{r+3}], v{a}, s[24:27], s10 offen sc1')
    A('s_waitcnt vmcnt(0)')
    tagcheck([6, FS + 2, FS + 6, FS + 10])
spin2(body, 0, local_only=True)
mark(5)
for n in range(3):
    r = FS + 4 * n
    A(f'v_dot2c_f32_bf16 v8, v{r}, v112\nv_dot2c_f32_bf16 v10, v{r+1}, v112\nv_dot2c_f32_bf16 v9, v{r}, v113\nv_dot2c_f32_bf16 v11, v{r+1}, v113')
A(f"""
v_cndmask_b32 v58, v4, v5, s[62:63]
v_lshrrev_b32 v58, v98, v58
{S32} v8, v10
{S32} v9, v11
v_add_f32 v8, v8, v10
v_add_f32 v9, v9, v11
v_lshlrev_b32 v58, 16, v58
{S16} v8, v9
v_add_f32 v8, v8, v9
v_add_f32_dpp v8, v8, v8 row_ror:8 {DPPM}
v_add_f32_dpp v8, v8, v8 row_ror:4 {DPPM}
v_add_f32_dpp v8, v8, v8 quad_perm:[2,3,0,1] {DPPM}
v_cvt_pk_bf16_f32 v8, v57, v8
v_add_f32 v8, v8, v58
v_cvt_pk_bf16_f32 v8, v8, v8
""")
setexec(0x0003000300030003)
A(f"""
buffer_store_short v8, v97, s[64:67], s14 offen
s_cmp_lg_u32 s72, 0
s_cbranch_scc1 L_fin_exit
s_mov_b64 exec, 1
v_mov_b32 v4, s30
v_mov_b32 v5, s31
s_mov_b32 s68, {EP}
buffer_store_dwordx2 v[4:5], v57, s[24:27], s68 offen
L_fin_exit:
""")
if opt['dbg']:
    A(f'''
s_cmp_lg_u32 s72, 0
s_cbranch_scc1 L_end
s_memrealtime s[82:83]
s_waitcnt lgkmcnt(0)
s_sub_u32 s84, s82, s80
s_sub_u32 s84, s84, 1500
s_mul_i32 s84, s84, {opt['dbg']}
s_min_u32 s84, s84, 20000
L_dbgspin:
s_memrealtime s[86:87]
s_waitcnt lgkmcnt(0)
s_sub_u32 s86, s86, s82
s_cmp_lt_u32 s86, s84
s_cbranch_scc1 L_dbgspin
''')
if STAMPS:
    A('s_waitcnt vmcnt(0)')
    mark(6)
    A(f's_sub_u32 s94, {SPIN}, s70\ns_mov_b32 s95, 0')
    flush([(5, 25), (6, 26), (7, 8)])
A('s_endpgm')

def pa_loads(srdn, fl, b):
    A(f'buffer_load_dwordx4 v[{b+4}:{b+7}], v61, s[{srdn}:{srdn+3}], s65 offen{fl}')
    A(f'buffer_load_dwordx4 v[{b}:{b+3}], v60, s[{srdn}:{srdn+3}], s64 offen{fl}')
def pa_use(b):
    mark(5)
    A(f"""
v_add_f32_dpp v4, v{b+4}, v{b+4} quad_perm:[1,0,3,2] {DPPM}
v_add_f32_dpp v5, v{b+5}, v{b+5} quad_perm:[1,0,3,2] {DPPM}
v_add_f32_dpp v4, v4, v4 quad_perm:[2,3,0,1] {DPPM}
v_add_f32_dpp v5, v5, v5 quad_perm:[2,3,0,1] {DPPM}
v_mul_f32 v6, {f32(-1.0/640)}, v4
v_mul_f32 v5, {f32(1.0/640)}, v5
v_cvt_pk_bf16_f32 v4, 1.0, v6
v_fma_f32 v5, -v6, v6, v5
v_dot2c_f32_bf16 v8, v{b}, v4
v_dot2c_f32_bf16 v9, v{b+1}, v4
""")
def hid_setup():
    A(f"""
v_lshlrev_b32 v60, 4, v0
v_and_b32 v61, 48, v60
s_lshr_b32 s68, s72, 2
s_lshl_b32 s65, s68, 7
s_add_u32 s65, s65, {PS}
s_lshl_b32 s64, s72, 10
s_add_u32 s64, s64, {PA}
v_mov_b32 v8, 0
v_mov_b32 v9, 0
s_cmp_eq_u32 s46, 1
s_cselect_b32 s16, s32, s24
s_cselect_b32 s17, s33, s25
s_mov_b32 s18, {WSN}
s_mov_b32 s19, 0x20000
s_mov_b32 s70, {SPIN}
""")
def hid_compute():
    A('L_pap:')
    pa_loads(16, RF, 24)
    A('s_waitcnt vmcnt(2)')
    tagcheck([18, 22])
    A('s_nop 0\ns_cbranch_vccz L_pad0')
    sleep(opt['psl'])
    pa_loads(32, RF, 16)
    A('s_waitcnt vmcnt(2)')
    tagcheck([26, 30])
    A('s_nop 0\ns_cbranch_vccz L_pad1')
    sleep(opt['psl'])
    A('s_sub_u32 s70, s70, 1\ns_cbranch_scc0 L_pap')
    trap(203)
    A('L_pad1:')
    pa_use(24)
    A('s_branch L_paj\nL_pad0:')
    pa_use(16)
    A('L_paj:')
    A(f"""
v_max_f32 v5, 0, v5
v_cvt_pk_bf16_f32 v5, v57, v5
v_add_f32 v5, {f32(1e-5)}, v5
{S32} v8, v9
v_cvt_pk_bf16_f32 v5, v57, v5
v_add_f32 v8, v8, v9
v_sqrt_f32 v5, v5
v_mov_b32 v10, v8
v_cvt_pk_bf16_f32 v5, v57, v5
v_rcp_f32 v5, v5
{S16} v8, v10
v_add_f32 v8, v8, v10
v_mul_f32 v8, v8, v5
v_cvt_pk_bf16_f32 v8, v57, v8
v_mul_f32 v12, {f32(-LOG2E)}, v8
v_mov_b32 v9, v8
v_exp_f32 v12, v12
{S32} v8, v9
v_add_f32 v12, 1.0, v12
v_rcp_f32 v12, v12
v_mul_f32 v8, v8, v12
v_cvt_pk_bf16_f32 v8, v57, v8
v_mul_f32 v8, v8, v9
""")
BAR1 = 's_setprio 3\ns_barrier' + ('' if opt['spec'] & 2 else '\ns_barrier')
A('L_hid:')
if opt['hred']: A('s_endpgm')
else:
    A('v_and_b32 v62, 15, v0\nv_lshlrev_b32 v62, 1, v62')
    hid_setup()
    A(BAR1)
    pa_loads(32, LF, 16)
    hid_compute()
    A(f"""
v_cvt_pk_bf16_f32 v8, v8, v8
s_mov_b64 exec, 0xffff
ds_write_b16 v62, v8 offset:{HID}
s_waitcnt lgkmcnt(0)
s_barrier
""")
    flush([(5, 24)])
    A('s_endpgm')

A('L_f2:')
W2R = 64
srd(8, 52, 1536 * 640 * 2)
A(f"""
s_lshl_b32 s68, s3, 8
v_lshlrev_b32 v58, 2, v0
v_add_u32 v58, s68, v58
v_lshlrev_b32 v116, 1, v58
s_mul_i32 s68, s72, 2560
v_add_u32 v116, s68, v116
s_xor_b32 s78, s47, 8192
s_add_u32 s78, s78, {FP}
s_add_u32 s77, s47, {FP}
s_mov_b32 s60, 0x05040100
s_mov_b32 s61, 0x07060302
s_mul_i32 s62, s72, 20480
v_mov_b32 v40, 0
v_mov_b32 v41, 0
v_mov_b32 v46, s30
v_mov_b32 v47, s31
""")
place(116, 4)
if opt['hred']: hid_setup()
A(BAR1)
for k in range(16):
    if not opt['abl'] & 256: A(f'buffer_load_dword v{W2R+k}, v58, s[8:11], s62 offen offset:{1280*(k%3)} nt')
    if k % 3 == 2: A('s_add_u32 s62, s62, 3840')
HX = 0
if opt['hred']: pa_loads(32, LF, 16); HX = 2
if opt['hist']:
    for m in (12, 8, 4, 0):
        A(f's_waitcnt vmcnt({m + HX})'); hstamp(51 - m // 4)
A(f's_waitcnt vmcnt({HX})')
mark(4)
for kp in range(8):
    A(f'v_perm_b32 v{80+kp}, v{W2R+2*kp+1}, v{W2R+2*kp}, s60')
    A(f'v_perm_b32 v{88+kp}, v{W2R+2*kp+1}, v{W2R+2*kp}, s61')
if opt['hred']:
    hid_compute()
    A(f'v_mov_b32_dpp v9, v8 quad_perm:[1,0,3,2] {DPPM}\nv_cvt_pk_bf16_f32 v8, v8, v9')
    for kp in range(8): A(f'v_readlane_b32 s{8+kp}, v8, {2*kp}')
    for kp in range(8):
        A(f'v_dot2c_f32_bf16 v40, s{8+kp}, v{80+kp}')
        A(f'v_dot2c_f32_bf16 v41, s{8+kp}, v{88+kp}')
else:
    A(f"""s_barrier
ds_read_b128 v[8:11], v57 offset:{HID}
ds_read_b128 v[12:15], v57 offset:{HID+16}
s_waitcnt lgkmcnt(1)""")
    for kp in range(8):
        if kp == 4: A('s_waitcnt lgkmcnt(0)')
        A(f'v_dot2c_f32_bf16 v40, v{8+kp}, v{80+kp}')
        A(f'v_dot2c_f32_bf16 v41, v{8+kp}, v{88+kp}')
A(f"""
v_cvt_pk_bf16_f32 v44, v40, v41
v_mov_b32_dpp v45, v44 quad_perm:[1,0,3,2] {DPPM}
""")
setexec(0x5555555555555555)
if opt['near']: A('buffer_store_dwordx4 v[44:47], v116, s[24:27], s78 offen sc1')
A('buffer_store_dwordx4 v[44:47], v116, s[24:27], s77 offen sc1')
mark(6)
if opt['hred'] == 2: A('s_barrier')
if STAMPS:
    flush([(6, 27)], True)
    A('s_cmp_lg_u32 s3, 0\ns_cbranch_scc1 L_end')
    flush([(4, 22)] + ([(5, 24)] if opt['hred'] else []))
A('L_end:')
A('s_endpgm')
for blk in outline: A(blk)
if opt['hist']:
    A.lines = [('s_branch L_hexit' if l.strip() == 's_endpgm' else l) for l in A.lines]
    i = A.lines.index('s_cbranch_scc1 L_end'); A.lines[i] = 's_cbranch_scc1 L_realend'
    A(f'''
L_hexit:
s_mov_b64 exec, -1
s_memrealtime s[96:97]
s_getreg_b32 s64, hwreg(HW_REG_XCC_ID)
s_waitcnt lgkmcnt(0)
{''.join('v_writelane_b32 v159, s%d, %d' % (80 + 2 * i, 54 + i) + chr(10) for i in range(6)) if opt['sdiag'] else ''}
v_writelane_b32 v159, s96, 61
v_writelane_b32 v159, s94, 62
v_writelane_b32 v159, s64, 63
s_mul_i32 s64, s2, 12
s_add_u32 s64, s64, s3
s_lshl_b32 s64, s64, 8
s_add_u32 s64, s64, {HB}
v_lshlrev_b32 v1, 2, v0
s_nop 4
buffer_store_dword v159, v1, s[24:27], s64 offen
L_realend:
s_endpgm
''')
A('L_codeend:')

A.raw('.section .rodata,"a"')
A.raw('.p2align 6')
A.raw(f'.amdhsa_kernel {NAME}_kernel')
A.raw('  .amdhsa_next_free_vgpr 168')
A.raw('  .amdhsa_next_free_sgpr 100')
A.raw('  .amdhsa_accum_offset 168')
A.raw('  .amdhsa_group_segment_fixed_size 0')
A.raw('  .amdhsa_kernarg_size 96')
A.raw('  .amdhsa_user_sgpr_count 2')
A.raw('  .amdhsa_user_sgpr_kernarg_segment_ptr 1')
A.raw('  .amdhsa_system_sgpr_workgroup_id_x 1')
A.raw('.end_amdhsa_kernel')
open(sys.argv[1], 'w').write(A.finalize())
```

```python
import sys, struct, os
from asmlib import Asm

NAME = "sequential_preLN__sliding_block_cached__glu_gated_swiglu__decode"
opt = dict(D=3, stamps=0, hist=0, spin=200007, Vpre=3, qsleep=20, qdelay=40, stsleep=16, idtries=12, idsleep=16,
           t1=3, t2=0, DWO=8, nA=0, nB=0, hintB=2, fsleep=0, forceslow=0, trap=0, dyn=5, near=1, dbg=0, hsleep=0,
           cpf=3, nprobe=4, fixnear=-1, share=1, tearly=1, DWB=10, opearly=0, tB=0, prew=0, npw=4, abl=0, lnt=1, prer=0, ynt=0, hwarm=1, fnt=1, pubwait=0, opdiag=0, nb1=8, ope=2, tlb=0, sdiag=0, deep=0, shal=0, shper=4, nb1B=4, mA=0, gA=4, mB=0, gB=3, rsleep=4, GA=8, GB=8, hbar=1, papipe=1, fprew=0, psl=0, oppipe=1, yppipe=0, wbl=0, red=1, ysl=0, ord=0, hred=1, spec=3, ovl=1, fack=0, sched=4, shp=1, idpre=0, pal=0, opsl=0, ydel=0, wpre=0, wpw=2, opl=1, stv=1, opchk=0, wdef=0, kvfl=0, wqfl=0, rowl=1, bywave=0)
for a in sys.argv[2:]:
    k, v = a.split('=')
    assert k in opt, k
    opt[k] = int(v)
D = opt['D']; STAMPS = opt['stamps']; SPIN = opt['spin']

LF = ' sc1 nt' if opt['lnt'] else ' sc1'
def f32(x): return '0x%08x' % struct.unpack('<I', struct.pack('<f', x))[0]
LOG2E = 1.4426950408889634

YP = 0x0
PR = 0x20000
FP = 0x80000
EP = 0xFF000
ST = 0x101000
ID = 0x102000
DN1 = 0x103000
DN2 = 0x104000
TK = 0x108000
PV = 0x105000
OP = 0x110000
QP = 0x140000
if opt['ovl']: QP = OP
SP = 0x200000
PA = 0x220000
PS = 0x2A0000
PH = 0x2A8000
HB = 0x300000
WSN = 0x400000
FAST = 0x400000
QL = 0
QF = 384
SL = 512
CNT = 640
INFO = 656
GS = 672
HID = 896
OL = 1024
RL = 7168
HL = 8192
WL = 8704
LDS = WL + 49152

A = Asm()
A.raw(open(os.path.join(os.path.dirname(os.path.abspath(__file__)), '..', NAME + '.s.ref')).read().split('; Override launch')[0].rstrip())
A.raw(f"; @launch grid=(256,1,1) block=(768,1,1) lds={LDS}")
A.raw('''; Generated by gen/gen12.py (hand-written generator).  One persistent launch, 256 workgroups x 12 waves, 1 per CU.
;  waves 0..7 : stream this workgroup's 512 keys of K then V (nt loads, depth-limited), QK / PV with v_dot2c bf16,
;  one XCD, a write-through copy as well, so any placement is correct.  Chip-wide hand-offs are written through twice
;  s_sleep is used only as back-off inside / ahead of polling loops.''')
A.raw('.amdgcn_target "amdgcn-amd-amdhsa--gfx950"')
A.raw('.text')
A.raw(f'.globl {NAME}_kernel')
A.raw('.p2align 8')
A.raw(f'.type {NAME}_kernel,@function')
A.raw(f'{NAME}_kernel:')

def stamp(idx, plus_wave=False):
    if not STAMPS: return
    A('s_memrealtime s[96:97]')
    A('s_lshl_b32 s98, s2, 8')
    A(f's_add_u32 s98, s98, {SP + idx*8}')
    if plus_wave: A('s_lshl3_add_u32 s98, s3, s98')
    A('s_mov_b64 s[94:95], exec')
    A('s_mov_b64 exec, 1')
    A('s_waitcnt lgkmcnt(0)')
    A('v_mov_b32 v120, s96\nv_mov_b32 v121, s97\nv_mov_b32 v122, 0')
    A('buffer_store_dwordx2 v[120:121], v122, s[24:27], s98 offen')
    A('s_mov_b64 exec, s[94:95]')
def mark(i):
    if STAMPS: A(f's_memrealtime s[{80+2*i}:{81+2*i}]')
def flush(pairs, plus_wave=False):
    if not STAMPS: return
    A('s_lshl_b32 s98, s2, 8')
    A(f's_add_u32 s98, s98, {SP}')
    if plus_wave: A('s_lshl3_add_u32 s98, s3, s98')
    A('s_mov_b64 exec, 1\ns_waitcnt lgkmcnt(0)\nv_mov_b32 v122, 0')
    for i, slot in pairs:
        A(f'v_mov_b32 v120, s{80+2*i}\nv_mov_b32 v121, s{81+2*i}')
        A(f'buffer_store_dwordx2 v[120:121], v122, s[24:27], s98 offen offset:{8*slot}')
        A('s_nop 1')
    A('s_mov_b64 exec, -1')
def hstamp(ks):
    if not opt['hist'] or opt['sdiag']: return
    if isinstance(ks, int): ks = [ks]
    ks = list(ks)
    if not ks: return
    A('s_memrealtime s[96:97]\ns_waitcnt lgkmcnt(0)')
    for k in ks: A(f'v_writelane_b32 v159, s96, {k}')

def sd(i):
    if opt['sdiag']: A(f's_memrealtime s[{80+2*i}:{81+2*i}]')
def srd(d, ptr, nbytes):
    A(f's_mov_b32 s{d}, s{ptr}')
    A(f's_mov_b32 s{d+1}, s{ptr+1}')
    A(f's_mov_b32 s{d+2}, {nbytes}')
    A(f's_mov_b32 s{d+3}, 0x20000')
def ws_srds():
    srd(24, 58, WSN)
    A(f's_add_u32 s32, s58, {FAST}')
    A('s_addc_u32 s33, s59, 0')
    A(f's_mov_b32 s34, {WSN}')
    A('s_mov_b32 s35, 0x20000')
    A('s_lshl3_add_u32 s71, s6, s7')
    A('s_lshr_b32 s79, s2, 3')

ALL = (1 << 64) - 1
def setexec(mask):
    if mask == ALL: A('s_mov_b64 exec, -1'); return
    A(f's_mov_b32 exec_lo, 0x{mask & 0xffffffff:x}')
    A(f's_mov_b32 exec_hi, 0x{mask >> 32:x}')

DPPM = 'row_mask:0xf bank_mask:0xf'
def allreduce8(op, regs):
    for pat in ('quad_perm:[1,0,3,2]', 'quad_perm:[2,3,0,1]', 'row_half_mirror'):
        for r in regs: A(f'{op}_dpp v{r}, v{r}, v{r} {pat} {DPPM}')
def allreduce16(op, regs):
    allreduce8(op, regs)
    for r in regs: A(f'{op}_dpp v{r}, v{r}, v{r} row_mirror {DPPM}')
def swapreduce(sw, op, regs, tmps):
    for r, t in zip(regs, tmps): A(f'v_mov_b32 v{t}, v{r}')
    for r, t in zip(regs, tmps): A(f'{sw} v{r}, v{t}')
    for r, t in zip(regs, tmps): A(f'{op} v{r}, v{r}, v{t}')
S16 = 'v_permlane16_swap_b32'; S32 = 'v_permlane32_swap_b32'
def allreduce_rows(op, regs, tmps):
    swapreduce(S16, op, regs, tmps); swapreduce(S32, op, regs, tmps)
def allreduce64(op, regs, tmps):
    allreduce16(op, regs); allreduce_rows(op, regs, tmps)
def bf16r(d, s):
    A(f'v_cvt_pk_bf16_f32 v{d}, v{s}, v{s}')
    A(f'v_lshlrev_b32 v{d}, 16, v{d}')
def mktag():
    A('''
s_waitcnt lgkmcnt(0)
s_mul_i32 s30, s28, 0x2c9277b5
s_add_u32 s30, s30, 0xac564b05
s_or_b32 s30, s30, 1
s_mul_i32 s31, s29, 0x0019660d
s_add_u32 s31, s31, 0x3c6ef35f
''')
def place(v, t):
    A(f'v_and_b32 v{t}, 0xffffe000, v{v}\nv_add_u32 v{v}, v{v}, v{t}')
lbl = [0]
def newlabel(p):
    lbl[0] += 1
    return f'L_{p}_{lbl[0]}'

def tagcheck(pairs):
    A(f'v_cmp_ne_u64 vcc, s[30:31], v[{pairs[0]}:{pairs[0]+1}]')
    tm = [(20, 21), (22, 23)]
    pend = []
    for i, p in enumerate(pairs[1:]):
        t = tm[i % 2]
        if len(pend) == 2:
            q = pend.pop(0); A(f's_or_b64 vcc, vcc, s[{q[0]}:{q[1]}]')
        A(f'v_cmp_ne_u64 s[{t[0]}:{t[1]}], s[30:31], v[{p}:{p+1}]')
        pend.append(t)
    for q in pend: A(f's_or_b64 vcc, vcc, s[{q[0]}:{q[1]}]')

def sleep(n):
    while n > 0:
        A(f's_sleep {min(n, 127)}'); n -= 127
def trap(n):
    if not opt['trap']: return
    A(f's_lshl_b32 s99, s2, 8\ns_or_b32 s99, s99, s3\ns_lshl_b32 s99, s99, 8\ns_or_b32 s99, s99, {n & 255}')
    A(f'v_mov_b32 v163, {16 * (n % 16)}\nv_mov_b32 v164, s99\nv_mov_b32 v165, vcc_lo\nv_mov_b32 v166, vcc_hi\nv_mov_b32 v167, s5')
    A('global_store_dwordx4 v163, v[164:167], s[56:57]')
def spin(body, slp=0, retry=None, enter=None):
    top = newlabel('spin'); done = newlabel('sdone')
    A(f's_mov_b32 s70, {SPIN}')
    if enter: A(f's_branch {enter}')
    A(f'{top}:')
    body()
    A('s_nop 0')
    A(f's_cbranch_vccz {done}')
    sleep(slp)
    if retry: retry()
    A('s_sub_u32 s70, s70, 1')
    A(f's_cbranch_scc0 {top}')
    trap(lbl[0])
    A(f'{done}:')
def spin2(body, slp=0, retry=None, local_only=False, enter=None):
    A(f's_mov_b32 s16, s32\ns_mov_b32 s17, s33\ns_mov_b32 s18, {WSN}\ns_mov_b32 s19, 0x20000')
    def rt():
        if retry: retry()
        A('s_and_b32 s99, s70, 7')
        if local_only:
            A('s_cmp_eq_u32 s46, 1')
            A('s_cselect_b32 s99, 1, s99')
            A('s_cmp_lg_u32 s99, 0')
        A('s_cselect_b32 s16, s32, s24')
        A('s_cselect_b32 s17, s33, s25')
    spin(body, slp, rt, enter)

def lds_wait_ge(off, n, slp, dst=4, adr=1):
    A(f'v_mov_b32 v{adr}, 0')
    def body():
        A(f'ds_read_b32 v{dst}, v{adr} offset:{off}')
        A('s_waitcnt lgkmcnt(0)')
        A(f'v_cmp_gt_u32 vcc, {n}, v{dst}')
    spin(body, slp)
def get_mode(dst=4, adr=1):
    lds_wait_ge(INFO, 1, 2, dst, adr)
    A(f'v_readfirstlane_b32 s46, v{dst}')
def get_role(slp):
    A('v_mov_b32 v1, 0')
    def body():
        A(f'ds_read_b64 v[4:5], v1 offset:{INFO + 8}')
        A('s_waitcnt lgkmcnt(0)')
        A('v_cmp_eq_u32 vcc, 0, v5')
    spin(body, slp)
    A('v_readfirstlane_b32 s5, v5\nv_readfirstlane_b32 s47, v4\ns_lshr_b32 s28, s5, 8\ns_and_b32 s5, s5, 0xff\ns_sub_u32 s5, s5, 1')
ROLE = INFO + 12; NEAR = INFO + 8

outline = []
def publish(stores):
    def emit(srdn, fl, AA):
        cur = ALL
        for m, line in stores:
            m = ALL if m is None else m
            if m != cur:
                if m == ALL: AA('s_mov_b64 exec, -1')
                elif isinstance(m, str): AA(f's_mov_b64 exec, {m}')
                else: AA(f's_mov_b32 exec_lo, 0x{m & 0xffffffff:x}\ns_mov_b32 exec_hi, 0x{m >> 32:x}')
                cur = m
            AA(line.replace('@', f's[{srdn}:{srdn+3}]') + fl)
        if cur != ALL: AA('s_mov_b64 exec, -1')
    if not opt['forceslow']: emit(32, '', A)
    slow = newlabel('slow'); back = newlabel('back')
    A('s_cmp_lg_u32 s46, 1')
    A(f's_cbranch_scc1 {slow}')
    A(f'{back}:')
    blk = [f'{slow}:']
    emit(24, ' sc1', lambda t: blk.append(t))
    blk.append('s_nop 1')
    blk.append(f's_branch {back}')
    outline.append('\n'.join(blk))
def hint_wait(base, n):
    if not n: return
    lp = newlabel('gpoll'); ld = newlabel('gdone')
    A(f"""
v_and_b32 v1, 31, v0
v_lshlrev_b32 v1, 4, v1
s_lshl_b32 s68, s4, 9
s_add_u32 s68, s68, {base}
s_mov_b32 s70, 40
s_cmp_lg_u32 s46, 1
s_cbranch_scc1 {ld}
{lp}:
buffer_load_dwordx4 v[4:7], v1, s[32:35], s68 offen{LF}
s_waitcnt vmcnt(0)
v_cmp_eq_u64 vcc, s[30:31], v[6:7]
s_nop 0
s_bcnt1_i32_b32 s69, vcc_lo
s_cmp_ge_u32 s69, {n}
s_cbranch_scc1 {ld}
s_sleep 2
s_sub_u32 s70, s70, 1
s_cbranch_scc0 {lp}
{ld}:
""")

A("""
s_cmp_ge_u32 s2, 256
s_cbranch_scc1 L_end
s_load_dwordx2 s[8:9], s[0:1], 8
s_load_dwordx16 s[36:51], s[0:1], 0
s_load_dwordx8 s[52:59], s[0:1], 64
""")
mark(0)
if opt['dbg']: A('s_memrealtime s[80:81]')
if opt['hist']: A('s_memrealtime s[94:95]\nv_mov_b32 v159, 0')
A("""
v_lshrrev_b32 v1, 6, v0
v_and_b32 v0, 63, v0
v_readfirstlane_b32 s3, v1
s_and_b32 s4, s2, 7
s_lshr_b32 s79, s2, 6
s_lshl2_add_u32 s6, s4, s79
s_bfe_u32 s7, s2, 0x30003
""")
if opt['cpf'] >= 3:
    A(f'''
s_cmp_lg_u32 s3, 0
s_cbranch_scc1 L_nocpf
s_getpc_b64 s[20:21]
L_pc0:
''')
    if opt['cpf'] == 3:
        A(f'''
s_mul_i32 s68, s7, {2560 if (STAMPS or opt['hist']) else 2048}
v_min_u32 v8, {19 if (STAMPS or opt['hist']) else 15}, v0
v_lshl_add_u32 v8, v8, 7, s68
v_min_u32 v8, L_codeend-L_pc0-4, v8
global_load_dword v10, v8, s[20:21]
''')
    else:
        A(f'''
v_lshlrev_b32 v8, 7, v0
v_add_u32 v9, 8192, v8
v_min_u32 v9, L_codeend-L_pc0-4, v9
global_load_dword v10, v8, s[20:21]
global_load_dword v11, v9, s[20:21]
''')
    A('L_nocpf:')
A("""
v_lshrrev_b32 v2, 3, v0
v_and_b32 v3, 7, v0
v_lshlrev_b32 v3, 4, v3
s_mov_b32 s11, 0x20000
s_cmp_gt_u32 s3, 7
s_cbranch_scc1 L_helper
""")
G = 8; GST = 3072 * 64
GOFF = [60, 61, 62, 63, 64, 65, 66, 67]
A("""
s_lshl3_add_u32 s68, s7, s3
s_mul_i32 s60, s6, 4096
s_add_u32 s60, s60, s68
s_addk_i32 s60, 3584
s_mul_i32 s60, s60, 3072
v_mul_u32_u24 v2, 384, v2
v_add_u32 v1, v2, v3
s_mov_b32 s10, 402653184
""")
if opt['tlb'] & 1: A('s_mul_i32 s69, s3, 983040')
A('s_waitcnt lgkmcnt(0)')
sd(1)
QR = 4; KR = 16
SC = 168 - G
VR = KR + 12 * G
nV1 = min((SC - VR) // 12, G) - (1 if opt['hist'] else 0)
ACC = KR + 12 * (G - 2)
T = ACC
st = dict(n=0); hs = dict(done=0)
def hupto(n):
    hstamp(range(hs['done'], n)); hs['done'] = max(hs['done'], n)
def vreg(g): return VR + 12 * g if g < nV1 else KR + 12 * (g - nV1)
ADP = opt['deep'] or opt['shal']
DC = D + 1 if opt['deep'] else D
def issue_load(kind, g, j, depth):
    if depth and st['n'] >= depth:
        if opt['shal'] and st['n'] > 4 and st['n'] % opt['shper'] == 0:
            l1 = newlabel('sh'); A(f's_bitcmp0_b32 s77, 1\ns_cbranch_scc1 {l1}\ns_waitcnt vmcnt({depth-2})\n{l1}:')
        if opt['deep'] and st['n'] > 3:
            l1 = newlabel('dp'); A(f's_bitcmp1_b32 s77, 0\ns_cbranch_scc1 {l1}\ns_waitcnt vmcnt({depth-1})\n{l1}:\ns_waitcnt vmcnt({depth})')
        else: A(f's_waitcnt vmcnt({depth-1})')
    r = (KR + 12 * g + 4 * j) if kind == 'K' else vreg(g) + 4 * j
    s = 8 if kind == 'K' else 12
    A(f'buffer_load_dwordx4 v[{r}:{r+3}], v1, s[{s}:{s+3}], s{GOFF[g]} offen offset:{128*j} nt')
    if depth and st['n'] >= depth: hupto(st['n'] - DC + 1)
    st['n'] += 1
def touches():
    if opt['tlb'] & 1: A('s_load_dword s20, s[42:43], s69\ns_load_dword s21, s[36:37], 0')
    if opt['tlb'] & 2: A('s_load_dword s22, s[40:41], s60')
def prealloc():
    A('v_mov_b32 v4, 0\nv_mov_b32 v5, 0\nv_mov_b32 v6, 0\nv_mov_b32 v7, 0')
    if opt['pal'] & 1:
        A(f'''
s_bfe_u32 s68, s2, 0x40003
s_cmp_lg_u32 s3, 1
s_cselect_b32 s68, 15, s68
s_cmp_ge_u32 s68, 10
s_cbranch_scc1 L_pal1
s_lshr_b32 s69, s2, 7
s_lshl1_add_u32 s69, s4, s69
s_mul_i32 s69, s69, 10
s_add_u32 s68, s68, s69
s_lshl_b32 s68, s68, 8
s_and_b32 s69, s68, 0xffffe000
s_add_u32 s68, s68, s69
v_and_b32 v8, 15, v0
v_lshlrev_b32 v8, 4, v8
v_lshrrev_b32 v9, 4, v0
v_lshl_add_u32 v8, v9, 13, v8
v_add_u32 v8, s68, v8
s_mov_b32 exec_hi, 0
global_store_dwordx4 v8, v[4:7], s[58:59] sc1
s_mov_b32 exec_hi, -1
L_pal1:
''')
    if opt['pal'] & 2:
        A(f'''
s_sub_u32 s68, s3, 2
s_cmp_gt_u32 s68, 1
s_cbranch_scc1 L_pal2
s_cmp_ge_u32 s2, 240
s_cbranch_scc1 L_pal2
s_lshl_b32 s68, s68, 13
s_lshl_b32 s69, s2, 10
s_add_u32 s68, s68, s69
s_and_b32 s69, s69, 0xffffe000
s_add_u32 s68, s68, s69
s_add_u32 s68, s68, {FP}
v_lshl_add_u32 v8, v0, 4, s68
global_store_dwordx4 v8, v[4:7], s[58:59] sc1
L_pal2:
''')
if opt['tlb'] & 4: touches()
if opt['pal'] & 3: prealloc()
for j in range(3): issue_load('K', 0, j, D)
if not opt['tlb'] & 4: touches()
sd(2)
A('s_barrier')
A('s_branch L_stream')

A('L_helper:')
sd(1)
A(f'''
v_lshlrev_b32 v1, 3, v0
v_mov_b32 v4, 0
v_mov_b32 v5, 0
ds_write_b64 v1, v[4:5] offset:{QF}
s_sub_u32 s73, s3, 8
s_cmp_eq_u32 s3, 11
s_cbranch_scc1 L_misc
''')
A('''
s_mul_i32 s68, s7, 80
v_add_u32 v7, s68, v2
v_lshlrev_b32 v7, 1, v7
v_mul_u32_u24 v2, 12288, v2
v_add_u32 v2, v2, v3
s_mul_i32 s68, s68, 12288
s_mul_i32 s69, s6, 384
s_add_u32 s68, s68, s69
s_lshl_b32 s69, s73, 7
s_add_u32 s68, s68, s69
v_lshlrev_b32 v1, 2, v0
s_setprio 3
s_waitcnt lgkmcnt(0)
s_barrier
''')
sd(2)
XS = 64; XU = 70; XR = 8; WQ = 24; QA = 80
A(f's_mov_b32 s8, s42\ns_mov_b32 s9, s43\ns_mov_b32 s10, {640 * 6144 * 2}')
for i in range(5): A(f'global_load_dword v{XS+i}, v1, s[36:37] offset:{256*i}')
for r in range(10): A(f'global_load_ushort v{XR+r}, v7, s[36:37] offset:{16*r}')
sd(3)
for r in range(10):
    A(f'buffer_load_dwordx4 v[{WQ+4*r}:{WQ+4*r+3}], v2, s[8:11], s68 offen nt')
    if r < 9: A('s_add_u32 s68, s68, 98304')
A(f's_load_dwordx2 s[28:29], s[58:59], {EP}')
sd(4)
A('s_branch L_q2')
A('L_misc:')
if opt['cpf'] in (1, 2):
    A(f'''
s_getpc_b64 s[20:21]
L_pc0:
''')
    if opt['cpf'] == 1:
        A(f'''
s_lshr_b32 s68, s2, 3
s_lshl_b32 s68, s68, 9
v_lshlrev_b32 v8, 7, v0
v_and_b32 v8, 0x1ff, v8
v_add_u32 v8, s68, v8
v_min_u32 v8, L_codeend-L_pc0-4, v8
global_load_dword v10, v8, s[20:21]
''')
    else:
        A(f'''
v_lshlrev_b32 v8, 7, v0
v_add_u32 v9, 8192, v8
v_min_u32 v9, L_codeend-L_pc0-4, v9
global_load_dword v10, v8, s[20:21]
global_load_dword v11, v9, s[20:21]
''')
A(f'''
s_setprio 3
s_waitcnt lgkmcnt(0)
s_barrier
s_load_dwordx2 s[28:29], s[58:59], {EP}
s_branch L_misc2
''')

A('L_stream:')
sd(3)
for g in range(1, G):
    A(f's_add_u32 s{GOFF[g]}, s{GOFF[g-1]}, {GST}')
    for j in range(3):
        issue_load('K', g, j, D)
        if g == 1 and j == 0: sd(4)
        if g == 2 and j == 0: sd(5)
        if g == 1 and j == 0:
            A(f's_load_dwordx2 s[28:29], s[58:59], {EP}')
            ws_srds(); srd(12, 40, 402653184)
            if ADP:
                A(f'''s_getreg_b32 s76, hwreg(HW_REG_XCC_ID)
{'s_mov_b32 s76, s3' if opt['bywave'] else 's_and_b32 s76, s76, 7'}
s_lshr_b32 s77, {opt['deep']}, s76
s_and_b32 s77, s77, 1
s_lshr_b32 s76, {opt['shal']}, s76
s_and_b32 s76, s76, 1
s_lshl1_add_u32 s77, s76, s77''')
mark(1)
nv = 0; NV = 3 * G
if opt['abl'] & 512:
    while nv < NV:
        issue_load('V', nv // 3, nv % 3, D); nv += 1
    A('s_waitcnt vmcnt(0)')
    if opt['abl'] & 2048: A('s_lshl_b32 s68, s2, 7\ns_mov_b64 exec, 1\nbuffer_store_dword v1, off, s[32:35], s68')
    A('s_endpgm')
    nv = 0; st['n'] = 3 * G
for n in range(min(opt['Vpre'], 3 * nV1)):
    issue_load('V', nv // 3, nv % 3, D); nv += 1
mktag()
A('v_and_b32 v2, 3, v0\nv_min_u32 v2, 2, v2\nv_lshlrev_b32 v2, 3, v2')
def body():
    A(f'ds_read_b32 v{QR}, v2 offset:{QF}')
    A('s_waitcnt lgkmcnt(0)')
    A(f'v_cmp_eq_u32 vcc, 0, v{QR}')
spin(body, 1)
A(f'''
ds_read_b128 v[{QR}:{QR+3}], v3 offset:{QL}
ds_read_b128 v[{QR+4}:{QR+7}], v3 offset:{QL+128}
ds_read_b128 v[{QR+8}:{QR+11}], v3 offset:{QL+256}
''')
for g in range(G): A(f'v_mov_b32 v{SC+g}, 0')
A(f's_waitcnt vmcnt({nv}) lgkmcnt(0)')
hupto(3 * G)
for gs in (range(4), range(4, G)):
    for i in range(12):
        for g in gs:
            A(f'v_dot2c_f32_bf16 v{SC+g}, v{KR+12*g+i}, v{QR+i}')
def triple():
    global nv
    for n in range(3):
        issue_load('V', nv // 3, nv % 3, D); nv += 1
if opt['sched'] == 2: triple()
allreduce8('v_add_f32', [SC + g for g in range(G)])
if opt['sched'] in (1, 3): triple()
A(f's_mov_b32 s68, {f32(192 ** -0.5)}')
A('v_mov_b32 v2, 0')
for g in range(G): A(f'v_cvt_pk_bf16_f32 v{SC+g}, v2, v{SC+g}')
for g in range(G): A(f'v_mul_f32 v{SC+g}, s68, v{SC+g}')
for g in range(G): A(f'v_cvt_pk_bf16_f32 v{SC+g}, v2, v{SC+g}')
A(f'v_max_f32 v4, v{SC}, v{SC+1}')
for g in range(2, G, 2): A(f'v_max3_f32 v4, v4, v{SC+g}, v{SC+g+1}')
A(f'v_max_f32_dpp v4, v4, v4 row_ror:8 {DPPM}')
allreduce_rows('v_max_f32', [4], [T])
A(f's_mov_b32 s68, {f32(LOG2E)}')
for g in range(G): A(f'v_sub_f32 v{SC+g}, v{SC+g}, v4')
for g in range(G): A(f'v_mul_f32 v{SC+g}, s68, v{SC+g}')
for g in range(G): A(f'v_exp_f32 v{SC+g}, v{SC+g}')
A(f'v_add_f32 v5, v{SC}, v{SC+1}')
for g in range(2, G): A(f'v_add_f32 v5, v5, v{SC+g}')
A(f'v_add_f32_dpp v5, v5, v5 row_ror:8 {DPPM}')
allreduce_rows('v_add_f32', [5], [T])
A(f'''
s_lshl_b32 s69, s3, 4
v_mov_b32 v{T}, s69
v_mov_b32 v6, 1
v_mov_b32 v7, 1
ds_write_b128 v{T}, v[4:7] offset:{SL}
''')
mark(2)
if opt['sched'] in (1, 2): triple()
for g in range(G): A(f'v_cvt_pk_bf16_f32 v{SC+g}, v{SC+g}, v2')
for i in range(24): A(f'v_mov_b32 v{ACC+i}, 0')
A('''
v_and_b32 v8, 7, v0
v_lshlrev_b32 v8, 5, v8
v_lshrrev_b32 v9, 4, v0
v_lshl_add_u32 v8, v9, 3, v8
s_mul_i32 s69, s3, 768
v_add_u32 v8, s69, v8
v_mov_b32 v11, 1
''')
def pv(idx):
    g, j = divmod(idx, 3)
    r = vreg(g) + 4 * j
    if j == 0: A(f'v_lshlrev_b32 v10, 16, v{SC+g}')
    for e in range(4):
        A(f'v_dot2c_f32_bf16 v{ACC+8*j+2*e}, v{r+e}, v{SC+g}')
        A(f'v_dot2c_f32_bf16 v{ACC+8*j+2*e+1}, v{r+e}, v10')
done_idx = -1; pv_next = 0
if opt['sched'] in (1, 2):
    for n in range(3): pv(pv_next); pv_next += 1
assert nv < NV - opt['t1'] and opt['t1'] >= opt['t2']
RW = 64
PS_ = [8, 9, 10, 11, 60, 61, 62, 63, 64, 65, 66, 76, 77, 78, 20, 21]
if opt['rowl']:
    assert D == 3 and not ADP and not opt['hist'] and nV1 == 4
    A('v_min_u32 v3, 47, v0\nv_lshlrev_b32 v3, 3, v3')
while nv < NV:
    if opt['rowl'] and nv >= NV - 3:
        k = nv - (NV - 3)
        A(f's_waitcnt vmcnt({2 + 2 * k})')
        for r in range(3 * k, min(3 * k + 3, 8)):
            A(f'buffer_load_dwordx2 v[{RW+2*r}:{RW+2*r+1}], v3, s[12:15], s{GOFF[G-1]} offen offset:{384*r} nt')
    else:
        issue_load('V', nv // 3, nv % 3, D)
    done_idx = nv - DC
    nv += 1
    for key, off in (('t1', 8), ('t2', 4)):
        if nv == NV - opt[key]:
            A(f's_mov_b64 exec, 1\nds_add_u32 v2, v11 offset:{CNT+off}\ns_mov_b64 exec, -1')
    cnt = 0
    if opt['sched'] and nv % 3: continue
    while pv_next <= done_idx and cnt < (6 if opt['sched'] else 2):
        pv(pv_next); pv_next += 1; cnt += 1
def scale_factor():
    def body():
        A(f'ds_read_b128 v[12:15], v2 offset:{GS}')
        A(f'ds_read_b32 v7, v2 offset:{INFO}')
        A('s_waitcnt lgkmcnt(0)')
        A('v_cmp_eq_u32 vcc, 0, v15')
    spin(body, 1)
    A('v_sub_f32 v9, v4, v12\nv_mul_f32 v9, s68, v9\nv_exp_f32 v9, v9\nv_readfirstlane_b32 s46, v7\nv_mul_f32 v9, v9, v13')
    A(f'''
v_min_u32 v12, 47, v0
{'v_lshlrev_b32 v13, 7, v12' if not opt['opl'] else 'v_lshrrev_b32 v13, 1, v12' + chr(10) + 'v_and_b32 v14, 1, v12' + chr(10) + 'v_lshl_add_u32 v13, v13, 4, v14' + chr(10) + 'v_lshlrev_b32 v13, 4, v13'}
v_lshlrev_b32 v12, 4, v12
s_mul_i32 s74, s6, 6144
s_lshl_b32 s75, s7, {4 + opt['opl']}
s_add_u32 s74, s74, s75
s_add_u32 s74, s74, {OP}
s_lshl_b32 s75, s4, 9
s_lshl4_add_u32 s75, s79, s75
s_add_u32 s75, s75, {DN2}
s_mov_b32 s22, 0xaaaaaaaa
s_mov_b32 s23, 0xaaaaaaaa
v_mov_b32 v14, s30
v_mov_b32 v15, s31
''')
def reduce_js(js, scale=True):
    B_ = [ACC + 8 * j for j in js]
    for b in B_:
        for e in range(4): A(f'{S32} v{b+e}, v{b+e+4}')
    for b in B_:
        if opt['red'] & 1:
            for e in (0, 2): A(f'v_pk_add_f32 v[{b+e}:{b+e+1}], v[{b+e}:{b+e+1}], v[{b+e+4}:{b+e+5}]')
        else:
            for e in range(4): A(f'v_add_f32 v{b+e}, v{b+e}, v{b+e+4}')
    for b in B_:
        for e in range(2): A(f'{S16} v{b+e}, v{b+e+2}')
    for b in B_:
        if opt['red'] & 1: A(f'v_pk_add_f32 v[{b}:{b+1}], v[{b}:{b+1}], v[{b+2}:{b+3}]')
        else:
            for e in range(2): A(f'v_add_f32 v{b+e}, v{b+e}, v{b+e+2}')
    for b in B_:
        for e in range(2): A(f'v_add_f32_dpp v{b+e}, v{b+e}, v{b+e} row_ror:8 {DPPM}')
    for j, b in zip(js, B_):
        if scale:
            for e in range(2): A(f'v_mul_f32 v{b+e}, v9, v{b+e}')
        A(f'ds_write_b64 v8, v[{b}:{b+1}] offset:{OL+256*j}')
PLAN = {0: {0: [0], 1: [1], 2: [2]}, 1: {1: [0, 1], 2: [2]}, 2: {2: [0, 1, 2]}, 3: {0: [0], 2: [1, 2]}}[opt['red'] >> 1]
fd = False
if opt['rowl']:
    while pv_next < NV - 3:
        pv(pv_next); pv_next += 1
    reduce_js([0, 1, 2], False)
    A(f's_mul_i32 s69, s3, 768\nv_lshlrev_b32 v8, 1, v3\nv_add_u32 v8, s69, v8')
    A(f'ds_read_b128 v[{ACC+4}:{ACC+7}], v8 offset:{OL}')
    for r in range(8): A(f'v_readlane_b32 s{PS_[2*r]}, v{SC+G-1}, {8*r}')
    for r in range(8): A(f's_lshl_b32 s{PS_[2*r+1]}, s{PS_[2*r]}, 16')
    scale_factor()
    for r in range(8):
        A(f's_waitcnt vmcnt({7-r})')
        for e in range(2):
            A(f'v_dot2c_f32_bf16 v{ACC+4+2*e}, s{PS_[2*r]}, v{RW+2*r+e}')
            A(f'v_dot2c_f32_bf16 v{ACC+5+2*e}, s{PS_[2*r+1]}, v{RW+2*r+e}')
    for e in range(4): A(f'v_mul_f32 v{ACC+4+e}, v9, v{ACC+4+e}')
    A(f'ds_write_b128 v8, v[{ACC+4}:{ACC+7}] offset:{OL}')
    pv_next = NV
while pv_next < NV:
    if pv_next >= NV - 3 and not fd:
        scale_factor(); fd = True
    if pv_next > done_idx:
        A(f's_waitcnt vmcnt({NV - 1 - pv_next})')
        hupto(3 * G + pv_next + 1)
        done_idx = pv_next
    pv(pv_next); pv_next += 1
    if pv_next == NV and opt['abl'] & 4096: A('s_endpgm')
    if pv_next > NV - 3 and (pv_next - 1) % 3 in PLAN and not opt['abl'] & 4096: reduce_js(PLAN[(pv_next - 1) % 3])
if opt['spec'] & 1:
    A(f's_mov_b64 exec, 1\nds_add_rtn_u32 v10, v2, v11 offset:{CNT}\ns_mov_b64 exec, -1')
    for w in range(8): A(f'ds_read_b128 v[{16+4*w}:{19+4*w}], v12 offset:{OL+768*w}')
    A('s_waitcnt lgkmcnt(8)\nv_readfirstlane_b32 s68, v10\ns_cmp_lg_u32 s68, 7\ns_cbranch_scc1 L_nopub')
else:
    A(f'''
s_mov_b64 exec, 1
ds_add_rtn_u32 v10, v2, v11 offset:{CNT}
s_waitcnt lgkmcnt(0)
v_readfirstlane_b32 s68, v10
s_mov_b64 exec, -1
s_cmp_lg_u32 s68, 7
s_cbranch_scc1 L_nopub
''')
    for w in range(8): A(f'ds_read_b128 v[{16+4*w}:{19+4*w}], v12 offset:{OL+768*w}')
def add4(d, a_, b_):
    if opt['red'] & 1:
        for e in (0, 2): A(f'v_pk_add_f32 v[{d+e}:{d+e+1}], v[{a_+e}:{a_+e+1}], v[{b_+e}:{b_+e+1}]')
    else:
        for e in range(4): A(f'v_add_f32 v{d+e}, v{a_+e}, v{b_+e}')
for w in range(0, 8, 2):
    A(f's_waitcnt lgkmcnt({6-w})')
    add4(16 + 4 * w, 16 + 4 * w, 20 + 4 * w)
    if w == 2 or w == 6: add4(8 + 4 * w, 8 + 4 * w, 16 + 4 * w)
add4(4, 16, 32)
A('''
v_cvt_pk_bf16_f32 v8, v4, v5
v_cvt_pk_bf16_f32 v9, v6, v7
v_cndmask_b32 v4, v8, v14, s[22:23]
v_cndmask_b32 v5, v9, v15, s[22:23]
v_cndmask_b32 v6, v14, v8, s[22:23]
v_cndmask_b32 v7, v15, v9, s[22:23]
''')
if opt['abl'] & 8192: A('s_endpgm')
publish([((1 << 48) - 1, 'buffer_store_dwordx4 v[4:7], v13, @, s74 offen')])
mark(3)
A('s_mov_b64 exec, 1')
if opt['nB'] and opt['hintB'] == 2: A('buffer_store_dwordx4 v[4:7], v12, s[32:35], s75 offen')
if opt['pubwait']: A('s_waitcnt vmcnt(0)')
if opt['pubwait'] and opt['opdiag']: mark(1)
A(f'ds_write_b32 v2, v11 offset:{INFO + 4}')
A('s_mov_b64 exec, -1')
flush([(1, 9), (2, 10), (3, 16)])
A('L_nopub:')
if STAMPS:
    A('s_cmp_lg_u32 s3, 0\ns_cbranch_scc1 L_nost0')
    flush([(0, 0)])
    A('L_nost0:')
if opt['abl'] & 16: A('s_endpgm')
A('s_cmp_eq_u32 s3, 7\ns_cbranch_scc1 L_end')
get_role(1)
A('''
s_cmp_lt_u32 s5, 12
s_cbranch_scc1 L_ffn
s_cmp_lt_u32 s5, 20
s_cbranch_scc1 L_end
s_cmp_lt_u32 s3, 5
s_cbranch_scc1 L_f1
s_endpgm
''')

A('L_q2:')
A('s_mov_b32 s69, 0xffff0000')
ws_srds()
mktag()
QX = 0
if opt['dyn'] in (4, 5):
    A(f'''
s_mul_i32 s64, s4, 768
s_add_u32 s64, s64, {TK}
s_add_u32 s65, s79, s73
s_cmp_eq_u32 s65, 0
s_cselect_b32 s64, s64, {WSN}
v_mov_b32 v92, 0
v_mov_b32 v93, 0
v_mov_b32 v94, s30
v_mov_b32 v95, s31
s_mov_b64 exec, 1
buffer_store_dwordx4 v[92:95], off, s[24:27], s64 sc1
s_mov_b64 exec, -1
''')
    QX += 1
if opt['dyn'] == 3:
    A(f'''
s_mul_i32 s64, s6, 768
s_add_u32 s64, s64, {TK}
s_add_u32 s65, s7, s73
s_cmp_eq_u32 s65, 0
s_cselect_b32 s64, s64, {WSN}
v_mov_b32 v91, 0
s_mov_b64 exec, 1
buffer_store_dword v91, off, s[24:27], s64 sc1
s_mov_b64 exec, -1
''')
    QX += 1
A(f's_waitcnt vmcnt({20+QX})')
sd(5)
for i in range(5):
    A(f'v_lshlrev_b32 v{XU+2*i}, 16, v{XS+i}')
    A(f'v_and_b32 v{XU+1+2*i}, s69, v{XS+i}')
A(f'''
v_add_f32 v4, v{XU}, v{XU+1}
v_add_f32 v5, v{XU+2}, v{XU+3}
v_add_f32 v6, v{XU+4}, v{XU+5}
v_add_f32 v7, v{XU+6}, v{XU+7}
v_add_f32 v4, v4, v5
v_add_f32 v6, v6, v7
v_add_f32 v5, v{XU+8}, v{XU+9}
v_add_f32 v4, v4, v6
v_add_f32 v4, v4, v5
''')
allreduce64('v_add_f32', [4], [5])
A(f'v_mul_f32 v4, {f32(1.0/640)}, v4')
for i in range(10): A(f'v_sub_f32 v{XU+i}, v{XU+i}, v4')
A(f'v_mul_f32 v5, v{XU}, v{XU}')
for i in range(1, 10): A(f'v_fmac_f32 v5, v{XU+i}, v{XU+i}')
allreduce64('v_add_f32', [5], [6])
A(f'v_mul_f32 v5, {f32(1.0/640)}, v5')
bf16r(4, 4); bf16r(5, 5)
A(f'v_add_f32 v5, {f32(1e-5)}, v5')
bf16r(5, 5)
A('v_sqrt_f32 v5, v5')
bf16r(5, 5)
A('v_rcp_f32 v5, v5')
A('v_mov_b32 v6, 0')
A(f's_waitcnt vmcnt({10+QX})')
for r in range(10): A(f'v_lshlrev_b32 v{XR+r}, 16, v{XR+r}')
for r in range(10): A(f'v_sub_f32 v{XR+r}, v{XR+r}, v4')
for r in range(10): A(f'v_cvt_pk_bf16_f32 v{XR+r}, v6, v{XR+r}')
for r in range(10): A(f'v_mul_f32 v{XR+r}, v{XR+r}, v5')
for r in range(10):
    A(f'v_cvt_pk_bf16_f32 v{XU+r}, v6, v{XR+r}')
    A(f'v_cvt_pk_bf16_f32 v{XR+r}, v{XR+r}, v6')
for e in range(8): A(f'v_mov_b32 v{QA+e}, 0')
A(f'''
v_and_b32 v90, 7, v0
v_lshrrev_b32 v6, 5, v0
v_lshl_add_u32 v90, v90, 1, v6
v_lshlrev_b32 v90, 4, v90
s_mul_i32 s60, s6, 3
s_add_u32 s60, s60, s73
s_lshl_b32 s60, s60, 11
s_add_u32 s60, s60, {QP}
s_lshl_b32 s64, s7, 8
s_add_u32 s64, s64, s60
''')
for r in range(10):
    A(f's_waitcnt vmcnt({9-r+QX if r < 9 else 0})')
    hstamp(r)
    for e in range(4):
        A(f'v_dot2c_f32_bf16 v{QA+2*e}, v{WQ+4*r+e}, v{XR+r}')
        A(f'v_dot2c_f32_bf16 v{QA+2*e+1}, v{WQ+4*r+e}, v{XU+r}')
mark(1)
if opt['abl'] & 1536 == 512: A('s_endpgm')
for e in range(4): A(f'{S32} v{QA+e}, v{QA+e+4}')
for e in range(4): A(f'v_add_f32 v{QA+e}, v{QA+e}, v{QA+e+4}')
swapreduce(S16, 'v_add_f32', [QA + e for e in range(4)], [QA + 4 + e for e in range(4)])
for e in range(4): A(f'v_add_f32_dpp v{QA+e}, v{QA+e}, v{QA+e} row_ror:8 {DPPM}')
for e in range(3):
    A(f's_mov_b32 s68, 0x070605{e+1:02x}\nv_perm_b32 v{QA+e}, v{QA+e}, v{QA+3}, s68')
A(f'v_mov_b32 v{QA+3}, s30')
QM = 0x000000ff000000ff
if not opt['forceslow'] and not opt['abl'] & 2:
    setexec(QM)
    A(f'buffer_store_dwordx4 v[{QA}:{QA+3}], v90, s[32:35], s64 offen')
    setexec(ALL)
A('''
v_lshlrev_b32 v2, 4, v0
v_and_b32 v3, 15, v0
v_lshl_add_u32 v3, v3, 1, v6
v_lshlrev_b32 v3, 2, v3
s_lshl_b32 s69, s73, 7
v_add_u32 v3, s69, v3
v_mov_b32 v1, 0
s_mov_b32 s65, 0
s_mov_b32 s61, 0x0c04000c
s_mov_b32 s62, 0x0402010c
''')
def q_lazy():
    skip = newlabel('qlazy')
    A(f'''
ds_read_b32 v4, v1 offset:{INFO}
s_waitcnt lgkmcnt(0)
v_readfirstlane_b32 s46, v4
s_sub_u32 s68, s46, s65
s_cmp_lg_u32 s68, 2
s_cbranch_scc1 {skip}
''')
    setexec(QM)
    A(f'buffer_store_dwordx4 v[{QA}:{QA+3}], v90, s[24:27], s64 offen sc1')
    setexec(ALL)
    A(f's_mov_b32 s65, 1\n{skip}:')
def body():
    for n in range(2):
        A(f'buffer_load_dwordx4 v[{8+4*n}:{11+4*n}], v2, s[16:19], s60 offen offset:{1024*n}{LF}')
    A('s_waitcnt vmcnt(0)')
    A('v_cmp_ne_u32 vcc, s30, v11\nv_cmp_ne_u32 s[20:21], s30, v15\ns_or_b64 vcc, vcc, s[20:21]')
sleep(opt['qdelay'])
if not opt['abl'] & 34: spin2(body, opt['qsleep'], retry=q_lazy)
mark(2)
for n in (8, 12):
    A(f'v_perm_b32 v{n+3}, v{n+1}, v{n}, s61\nv_perm_b32 v{n+3}, v{n+2}, v{n+3}, s62')
for e in range(4): A(f'v_add_f32 v{8+e}, v{8+e}, v{12+e}')
A(f'{S32} v8, v10\n{S32} v9, v11\nv_add_f32 v8, v8, v10\nv_add_f32 v9, v9, v11')
swapreduce(S16, 'v_add_f32', [8, 9], [10, 11])
A(f'''
v_cvt_pk_bf16_f32 v8, v8, v9
ds_write_b32 v3, v8 offset:{QL}
''')
get_mode()
q_lazy()
A(f'''
s_lshl_b32 s69, s73, 3
v_mov_b32 v4, s69
v_mov_b32 v6, 1
s_waitcnt vmcnt(0) lgkmcnt(0)
ds_write_b32 v4, v6 offset:{QF}
''')
if opt['abl'] & 16: A('s_endpgm')
A('s_cmp_lg_u32 s3, 8\ns_cbranch_scc1 L_role')
if opt['dyn'] == 1:
    lds_wait_ge(CNT + 8, 8, 2)
    A('''
s_lshl_b32 s68, s4, 3
s_lshl_b64 s[20:21], 1, s68
v_mov_b32 v6, s20
v_mov_b32 v7, s21
s_mov_b64 exec, 1
global_atomic_add_x2 v[4:5], v1, v[6:7], s[56:57] sc0 sc1
s_waitcnt vmcnt(0)
v_readfirstlane_b32 s20, v4
v_readfirstlane_b32 s21, v5
s_lshr_b64 s[22:23], s[20:21], s68
s_and_b32 s22, s22, 31
s_and_b32 s23, s20, 0xff
''')
    for i in range(1, 8):
        A(f's_bfe_u32 s69, s{20 + i // 4}, {(8 << 16) | (8 * (i % 4))}\ns_min_u32 s23, s23, s69')
    A('s_lshl_b32 s23, s23, 8\ns_add_u32 s22, s22, s23\ns_add_u32 s22, s22, 1\nv_mov_b32 v5, s22')
elif opt['dyn'] == 2:
    lds_wait_ge(CNT + 8, 8, 2)
    A('''
s_lshl_b32 s68, s4, 5
v_mov_b32 v6, s68
v_mov_b32 v5, 1
s_mov_b64 exec, 1
global_atomic_add v5, v6, v5, s[56:57] sc0 sc1
s_waitcnt vmcnt(0)
v_and_b32 v5, 31, v5
v_add_u32 v5, 1, v5
''')
elif opt['dyn'] == 4:
    A(f's_mul_i32 s66, s4, 768\ns_add_u32 s66, s66, {TK}')
    def body():
        A('buffer_load_dwordx4 v[4:7], off, s[24:27], s66 sc1')
        A('s_waitcnt vmcnt(0)')
        tagcheck([6])
    spin(body, 20)
    lds_wait_ge(CNT + 8, 8, 2)
    A(f'''
v_mov_b32 v5, 1
s_mov_b64 exec, 1
buffer_atomic_add v5, off, s[24:27], s66 sc0 sc1
s_waitcnt vmcnt(0)
v_and_b32 v5, 31, v5
v_add_u32 v5, 1, v5
''')
elif opt['dyn'] == 5:
    A(f'''
s_mul_i32 s66, s4, 768
s_add_u32 s66, s66, {TK}
s_mov_b32 s70, {SPIN}
s_load_dwordx4 s[20:23], s[58:59], s66
s_branch L_tkw0
L_tkchk:
s_load_dwordx4 s[20:23], s[58:59], s66 glc
L_tkw0:
s_waitcnt lgkmcnt(0)
s_cmp_eq_u64 s[22:23], s[30:31]
s_cbranch_scc1 L_tkok
s_sleep 20
s_sub_u32 s70, s70, 1
s_cbranch_scc0 L_tkchk
''')
    trap(204)
    A('L_tkok:')
    lds_wait_ge(CNT + 8, 8, 1)
    A(f'''
s_mov_b32 s20, 1
s_atomic_add s20, s[58:59], s66 glc
''')
    if opt['mA'] or opt['mB']:
        A(f'''
s_load_dword s21, s[56:57], 0
s_waitcnt lgkmcnt(0)
s_cmp_eq_u32 s20, {opt['mA'] - 1}
s_cselect_b32 s22, 1, 0
s_cmp_eq_u32 s20, {opt['mB'] - 1}
s_cselect_b32 s23, 0x100, 0
s_or_b32 s22, s22, s23
s_cbranch_scc0 L_nog
s_atomic_add s22, s[56:57], 0
L_nog:
s_lshl_b32 s21, s21, 8
''')
    else: A('s_mov_b32 s21, 0')
    A(f'''
s_mov_b64 exec, 1
s_waitcnt lgkmcnt(0)
s_and_b32 s20, s20, 31
s_add_u32 s20, s20, 1
s_add_u32 s20, s20, s21
v_mov_b32 v5, s20
''')
elif opt['dyn'] == 3:
    lds_wait_ge(CNT + 8, 8, 2)
    A(f'''
s_mul_i32 s68, s6, 768
s_add_u32 s68, s68, {TK}
v_mov_b32 v5, 1
s_mov_b64 exec, 1
buffer_atomic_add v5, off, s[24:27], s68 sc0 sc1
s_and_b32 s68, s6, 3
s_add_u32 s68, s68, 1
s_waitcnt vmcnt(0)
v_and_b32 v5, 7, v5
v_lshl_add_u32 v5, v5, 2, s68
''')
else:
    A('s_add_u32 s68, s79, 1\nv_mov_b32 v5, s68\ns_mov_b64 exec, 1')
A(f'''
ds_write_b32 v1, v5 offset:{ROLE}
s_mov_b64 exec, -1
''')
mark(4)
flush([(1, 1), (2, 2), (4, 6)])
A('s_branch L_role')

A('L_misc2:')
if opt['abl'] & 1536 == 512: A('s_endpgm')
A('s_getreg_b32 s64, hwreg(HW_REG_XCC_ID)')
ws_srds()
NP = opt['nprobe']
if opt['near']:
    A(f'''
v_and_b32 v1, 31, v0
v_lshlrev_b32 v1, 4, v1
v_lshrrev_b32 v2, 5, v0
v_lshl_add_u32 v1, v2, 13, v1
s_lshl_b32 s66, s{79 if opt['shp'] else 2}, {11 if opt['shp'] else 9}
s_and_b32 s68, s66, 0xffffe000
s_add_u32 s66, s66, s68
s_add_u32 s66, s66, {PR}
v_mov_b32 v6, 0
v_mov_b32 v7, 0
''')
    A(f"s_cmp_ge_u32 s79, {opt['npw']}\ns_cbranch_scc1 L_nopr0")
    if opt['shp']: A('s_cmp_lg_u32 s4, 0\ns_cbranch_scc1 L_nopr0')
    setexec(((1 << (8 * NP)) - 1) * 0x100000001)
    A('buffer_store_dwordx4 v[4:7], v1, s[24:27], s66 offen sc1')
    setexec(ALL)
    A('L_nopr0:')
mktag()
sleep(opt['idpre'])
A(f'''
{'s_mov_b32 s46, 1' + chr(10) + 's_branch L_idset' if opt['abl'] & 1 else ''}
s_and_b32 s64, s64, 15
v_mov_b32 v4, s30
v_mov_b32 v5, s31
v_mov_b32 v6, s64
v_mov_b32 v7, s64
s_lshl_b32 s68, s4, 9
s_add_u32 s68, s68, {ID}
s_lshl_b32 s69, s79, 4
v_mov_b32 v1, s69
s_mov_b64 exec, 1
buffer_store_dwordx4 v[4:7], v1, s[32:35], s68 offen
s_mov_b64 exec, -1
v_and_b32 v1, 31, v0
v_lshlrev_b32 v1, 4, v1
s_mov_b32 s70, {opt['idtries']}
s_mov_b32 s46, 2
L_idpoll:
s_sleep {opt['idsleep']}
buffer_load_dwordx4 v[8:11], v1, s[32:35], s68 offen{LF}
s_waitcnt vmcnt(0)
v_cmp_ne_u64 vcc, s[30:31], v[8:9]
s_nop 0
s_cbranch_vccz L_iddone
s_sub_u32 s70, s70, 1
s_cbranch_scc0 L_idpoll
s_branch L_idset
L_iddone:
v_cmp_ne_u32 vcc, s64, v10
s_nop 0
s_cbranch_vccnz L_idset
s_mov_b32 s46, {2 if opt['forceslow'] else 1}
L_idset:
v_mov_b32 v1, 0
v_mov_b32 v4, s46
ds_write_b32 v1, v4 offset:{INFO}
''')
mark(1)
if opt['near']:
    A(f's_mov_b32 s60, -1\ns_mov_b32 s61, -1\ns_lshl_b32 s67, s4, 9\ns_add_u32 s67, s67, {PV}')
    A(f"s_cmp_ge_u32 s79, {opt['npw']}\ns_cbranch_scc1 L_nopr1\ns_waitcnt lgkmcnt(0)")
    for i in range(NP):
        for c in range(2):
            A(f'''
s_add_u32 s69, s66, {128*i + 8192*c}
s_memtime s[62:63]
s_waitcnt lgkmcnt(0)
s_load_dword s65, s[58:59], s69
s_waitcnt lgkmcnt(0)
s_memtime s[20:21]
s_waitcnt lgkmcnt(0)
s_sub_u32 s62, s20, s62
s_min_u32 s{60+c}, s{60+c}, s62
''')
    if opt['share']:
        A(f'''
s_lshl_b32 s69, s79, 4
v_mov_b32 v1, s69
v_mov_b32 v4, s60
v_mov_b32 v5, s61
v_mov_b32 v6, s30
v_mov_b32 v7, s31
s_mov_b64 exec, 1
buffer_store_dwordx4 v[4:7], v1, s[32:35], s67 offen
s_mov_b64 exec, -1
''')
    A('L_nopr1:')
else:
    A('s_mov_b32 s47, 0')
mark(2)
if opt['abl'] & 1024: A('s_endpgm')
A('v_and_b32 v1, 7, v0\nv_lshlrev_b32 v1, 4, v1')
def body():
    A(f'ds_read_b128 v[4:7], v1 offset:{SL}')
    A('s_waitcnt lgkmcnt(0)')
    A('v_cmp_eq_u32 vcc, 0, v7')
spin(body, 4)
def combine_stats():
    A(f's_mov_b32 s68, {f32(LOG2E)}')
    A('v_mov_b32 v2, v4')
    allreduce8('v_max_f32', [2])
    A('v_sub_f32 v4, v4, v2\nv_mul_f32 v4, s68, v4\nv_exp_f32 v4, v4\nv_mul_f32 v3, v4, v5')
    allreduce8('v_add_f32', [3])
combine_stats()
A(f'''
s_lshl_b32 s68, s71, 4
s_add_u32 s68, s68, {ST}
v_mov_b32 v4, s30
v_mov_b32 v5, s31
''')
publish([(1, 'buffer_store_dwordx4 v[2:5], v1, @, s68 offen')])
if opt['near']:
    if opt['share']:
        A(f'''
s_cmp_lg_u32 s46, 1
s_cbranch_scc1 L_noshare
v_and_b32 v8, {7 if opt['npw'] <= 8 else 31}, v0
v_lshlrev_b32 v8, 4, v8
buffer_load_dwordx4 v[4:7], v8, s[32:35], s67 offen{LF}
s_waitcnt vmcnt(0)
v_cmp_eq_u64 vcc, s[30:31], v[6:7]
v_cndmask_b32 v4, -1, v4, vcc
v_cndmask_b32 v5, -1, v5, vcc
''')
        allreduce16('v_min_u32', [4, 5])
        swapreduce(S16, 'v_min_u32', [4, 5], [6, 7])
        A('''
v_readfirstlane_b32 s62, v4
v_readfirstlane_b32 s63, v5
s_min_u32 s60, s60, s62
s_min_u32 s61, s61, s63
L_noshare:
''')
    A('s_cmp_lt_u32 s61, s60\ns_cselect_b32 s47, 8192, 0')
    if opt['fixnear'] >= 0: A(f"s_mov_b32 s47, {8192*opt['fixnear']}")
    if STAMPS: A('s_mov_b32 s90, s60\ns_mov_b32 s91, s61')
A(f'v_mov_b32 v8, 0\nv_mov_b32 v4, s47\nds_write_b32 v8, v4 offset:{NEAR}')
A(f's_lshl_b32 s74, s6, 7\ns_add_u32 s74, s74, {ST}')
def body():
    sleep(opt['stsleep'])
    A(f'buffer_load_dwordx4 v[4:7], v1, s[16:19], s74 offen{LF}')
    A('s_waitcnt vmcnt(0)')
    tagcheck([6])
spin2(body, 0, local_only=True)
mark(3)
combine_stats()
A(f'''
v_rcp_f32 v3, v3
v_mov_b32 v4, 1
v_mov_b32 v5, 1
v_mov_b32 v1, 0
ds_write_b128 v1, v[2:5] offset:{GS}
''')
flush([(1, 3), (2, 4), (3, 5), (5, 7)])
if opt['abl'] & 16: A('s_endpgm')
if opt['nA'] or (opt['nB'] and opt['hintB'] == 1):
    lds_wait_ge(CNT + 4, 8, 1)
    A(f'''
s_lshl_b32 s68, s4, 9
s_lshl4_add_u32 s68, s79, s68
s_add_u32 s68, s68, {DN1}
v_mov_b32 v6, s30
v_mov_b32 v7, s31
s_mov_b64 exec, 1
buffer_store_dwordx4 v[4:7], v1, s[32:35], s68 offen
s_mov_b64 exec, -1
''')

A('L_role:')
get_role(opt['rsleep'])
A('s_cmp_lt_u32 s5, 20\ns_cbranch_scc0 ' + ('L_tiles' if opt['tearly'] else 'L_end'))
BW = 64
XM = 52
def tr_addr(dst, tmp):
    A(f'''
v_lshrrev_b32 v{dst}, 4, v0
v_lshlrev_b32 v{dst}, 10, v{dst}
v_bfe_u32 v{tmp}, v0, 2, 2
v_lshl_add_u32 v{dst}, v{tmp}, 7, v{dst}
v_and_b32 v{tmp}, 3, v0
v_lshl_add_u32 v{dst}, v{tmp}, 3, v{dst}
''')
srd(12, 44, 6144 * 640 * 2)
tr_addr(24, 25)
A(f'''
s_cmp_ge_u32 s5, 10
s_cselect_b32 s76, 1, 0
s_mul_i32 s77, s76, 10
s_sub_u32 s77, s5, s77
s_lshl1_add_u32 s78, s4, s76
s_lshl2_add_u32 s78, s78, s73
v_lshrrev_b32 v2, 3, v0
v_mul_u32_u24 v26, 1280, v2
v_and_b32 v3, 7, v0
v_lshl_add_u32 v26, v3, 4, v26
s_mul_i32 s60, s78, {96*1280}
s_lshl_b32 s69, s77, 7
s_add_u32 s60, s60, s69
s_mul_i32 s61, s73, 12288
v_add_u32 v24, s61, v24
s_add_u32 s61, s61, {WL}
v_lshlrev_b32 v60, 4, v0
s_mul_i32 s74, s78, 3072
s_add_u32 s74, s74, {OP}
v_lshlrev_b32 v62, 2, v0
s_lshl_b32 s68, s73, 8
v_add_u32 v61, s68, v62
s_mul_i32 s75, s4, 5120
s_lshl_b32 s69, s5, 8
s_add_u32 s75, s75, s69
s_and_b32 s69, s75, 0xffffe000
s_add_u32 s75, s75, s69
s_add_u32 s75, s75, {YP}
s_xor_b32 s{62 + (opt['ord'] & 1)}, s47, 8192
s_add_u32 s{62 + (opt['ord'] & 1)}, s{62 + (opt['ord'] & 1)}, s75
s_add_u32 s{63 - (opt['ord'] & 1)}, s47, s75
s_mov_b32 s66, {'0xaaaaaaaa' if opt['opl'] else '0xff00ff00'}
s_mov_b32 s67, {'0xaaaaaaaa' if opt['opl'] else '0xff00ff00'}
v_mov_b32 v50, s30
v_mov_b32 v51, s31
v_mov_b32 v28, 0
v_mov_b32 v29, 1
v_cndmask_b32 v{XM}, 0, v50, s[66:67]
v_cndmask_b32 v{XM+1}, 0, v51, s[66:67]
v_cndmask_b32 v{XM+2}, v50, 0, s[66:67]
v_cndmask_b32 v{XM+3}, v51, 0, s[66:67]
''')
AO = 8
RF = ' sc1' if opt['fnt'] else LF
def op_loads(srdn, fl=LF, AO=8):
    for t in range(3):
        A(f'buffer_load_dwordx4 v[{AO+4*t}:{AO+4*t+3}], v60, s[{srdn}:{srdn+3}], s74 offen offset:{1024*t}{fl}')
def wo_one(n):
    A('s_mov_b32 m0, s61')
    if not opt['abl'] & 64: A('buffer_load_dwordx4 v26, s[12:15], s60 offen nt lds')
    if n < 11:
        A(f's_add_u32 s60, s60, {8*1280}')
        A('s_add_u32 s61, s61, 1024')
if opt['prer'] == 2: op_loads(32)
for n in range(opt['wpre']):
    if n >= opt['wpw']: A(f"s_waitcnt vmcnt({opt['wpw']-1})")
    wo_one(n)
lds_wait_ge(CNT + 4, 8, 1)
hint_wait(DN1, opt['nA'])
mark(3)
if opt['prer'] == 1: op_loads(32)
DW = opt['DWO'] if not opt['nb1'] else 12
def wo_issue(DW, nb1):
    for n in range(opt['wpre'], 12):
        if n >= DW: A(f's_waitcnt vmcnt({DW-1})')
        if nb1 and n == nb1: lds_wait_ge(INFO + 4, 1, 1)
        wo_one(n)
if opt['mA']:
    A(f"s_and_b32 s68, s28, 0xff\ns_cmp_ge_u32 s68, {opt['GA']}\ns_cbranch_scc1 L_wofast")
    wo_issue(opt['gA'], 0)
    A('s_branch L_wodone\nL_wofast:')
wo_issue(DW, opt['nb1'])
A('L_wodone:')
if opt['oppipe']:
    A(f's_cmp_eq_u32 s46, 1\ns_cselect_b32 s16, s32, s24\ns_cselect_b32 s17, s33, s25\ns_mov_b32 s18, {WSN}\ns_mov_b32 s19, 0x20000\ns_mov_b32 s70, {SPIN}')
    assert opt['ope'] >= 0
E = 0
for t in range(3):
    if t == 2 and opt['ope'] >= 0:
        A(f"s_waitcnt vmcnt({opt['ope']})")
        if opt['opdiag']: mark(1)
        op_loads(32, RF); E = 3
    if opt['hist']:
        for m in range(11 - 4 * t, 7 - 4 * t, -1):
            if m < DW: A(f's_waitcnt vmcnt({m + E})'); hstamp(21 - m)
    A(f's_waitcnt vmcnt({8 - 4 * t + E})')
    for u in range(4):
        r = BW + 4 * (4 * t + u)
        A(f'ds_read_b64_tr_b16 v[{r}:{r+1}], v24 offset:{WL + 4096*t + 32*u}')
        A(f'ds_read_b64_tr_b16 v[{r+2}:{r+3}], v24 offset:{WL + 4096*t + 32*u + 512}')
mark(4)
if not E:
    lds_wait_ge(CNT, 8, 1)
    if opt['opdiag']: mark(1)
    op_loads(32, RF if opt['prer'] else LF)
else: A('s_waitcnt lgkmcnt(8)' if not STAMPS else 's_waitcnt lgkmcnt(0)')
def op_use(AO, later):
    for t in range(3):
        A(f's_waitcnt vmcnt({2-t+later})' + (' lgkmcnt(0)' if t == 2 else ''))
        q = AO + 4 * t
        for e in range(4): A(f'v_xor_b32 v{q+e}, v{q+e}, v{XM+e}')
        for u in range(4):
            r = BW + 4 * (4 * t + u)
            c = '0' if t == 0 else f'v[{32+4*u}:{35+4*u}]'
            A(f'v_mfma_f32_16x16x32_bf16 v[{32+4*u}:{35+4*u}], v[{q}:{q+3}], v[{r}:{r+3}], {c}')
        if t == 0:
            A(f'v_or_b32 v2, v{q}, v{q+1}\nv_or_b32 v3, v{q+2}, v{q+3}')
        else:
            A(f'v_or3_b32 v2, v2, v{q}, v{q+1}\nv_or3_b32 v3, v3, v{q+2}, v{q+3}')
    A('v_cndmask_b32 v2, v3, v2, s[66:67]')
    A('v_cmp_ne_u32 vcc, 0, v2')
if not opt['oppipe']:
    def body():
        op_loads(16, RF)
        A('L_opw0:')
        op_use(8, 0)
    spin2(body, 0, local_only=True, enter='L_opw0')
elif not opt['opchk']:
    A('L_opp:')
    op_loads(16, RF, 124)
    op_use(8, 3)
    A('s_nop 0\ns_cbranch_vccz L_opd')
    sleep(opt['opsl'])
    op_loads(32, RF, 8)
    op_use(124, 3)
    A('s_nop 0\ns_cbranch_vccz L_opd')
    sleep(opt['opsl'])
    A('s_sub_u32 s70, s70, 1\ns_cbranch_scc0 L_opp')
    trap(201)
    A('L_opd:')
else:
    def op_check(AO):
        for t in range(3):
            A(f's_waitcnt vmcnt({5-t})')
            q = AO + 4 * t
            for e in range(4): A(f'v_xor_b32 v{q+e}, v{q+e}, v{XM+e}')
            if t == 0: A(f'v_or_b32 v2, v{q}, v{q+1}\nv_or_b32 v3, v{q+2}, v{q+3}')
            else: A(f'v_or3_b32 v2, v2, v{q}, v{q+1}\nv_or3_b32 v3, v3, v{q+2}, v{q+3}')
        A('v_cndmask_b32 v2, v3, v2, s[66:67]\nv_cmp_ne_u32 vcc, 0, v2')
    def op_mfma(AO):
        A('s_waitcnt lgkmcnt(0)')
        for t in range(3):
            for u in range(4):
                r = BW + 4 * (4 * t + u); q = AO + 4 * t
                c = '0' if t == 0 else f'v[{32+4*u}:{35+4*u}]'
                A(f'v_mfma_f32_16x16x32_bf16 v[{32+4*u}:{35+4*u}], v[{q}:{q+3}], v[{r}:{r+3}], {c}')
    A('L_opp:')
    op_loads(16, RF, 124)
    op_check(8)
    A('s_nop 0\ns_cbranch_vccz L_opd0')
    op_loads(32, RF, 8)
    op_check(124)
    A('s_nop 0\ns_cbranch_vccz L_opd1\ns_sub_u32 s70, s70, 1\ns_cbranch_scc0 L_opp\nL_opd1:')
    op_mfma(124)
    A('s_branch L_opd\nL_opd0:')
    op_mfma(8)
    A('L_opd:')
mark(5)
for u in range(4):
    A(f'v_add_f32 v{4+u}, v{32+4*u}, v{33+4*u}\nv_add_f32 v{20+u}, v{34+4*u}, v{35+4*u}')
for u in range(4): A(f'v_add_f32 v{4+u}, v{4+u}, v{20+u}')
A(f'''
{S32} v4, v6
{S32} v5, v7
v_add_f32 v4, v4, v6
v_add_f32 v5, v5, v7
{S16} v4, v5
v_add_f32 v4, v4, v5
ds_write_b32 v61, v4 offset:{RL}
''')
if opt['spec'] & 2:
    A(f'''
s_mov_b64 exec, 1
ds_add_rtn_u32 v27, v28, v29 offset:{CNT + 12}
s_mov_b64 exec, -1
ds_read2st64_b32 v[4:5], v62 offset0:{RL // 256} offset1:{RL // 256 + 1}
ds_read2st64_b32 v[6:7], v62 offset0:{RL // 256 + 2} offset1:{RL // 256 + 3}
s_waitcnt lgkmcnt(2)
v_readfirstlane_b32 s68, v27
s_cmp_lg_u32 s68, 3
s_cbranch_scc1 {'L_opdiag' if opt['opdiag'] else 'L_end'}
s_waitcnt lgkmcnt(0)
''')
else:
    A(f'''
s_cmp_lg_u32 s3, 8
s_waitcnt lgkmcnt(0)
s_barrier
s_cbranch_scc1 {'L_opdiag' if opt['opdiag'] else 'L_end'}
ds_read_b32 v5, v62 offset:{RL+256}
ds_read_b32 v6, v62 offset:{RL+512}
ds_read_b32 v7, v62 offset:{RL+768}
s_waitcnt lgkmcnt(0)
''')
A(f'''
v_add_f32 v4, v4, v5
v_add_f32 v6, v6, v7
v_add_f32 v48, v4, v6
v_mov_b32_dpp v49, v48 quad_perm:[1,0,3,2] {DPPM}
v_cvt_pk_bf16_f32 v48, v48, v49
v_mov_b32_dpp v49, v48 quad_perm:[2,3,0,1] {DPPM}
''')
setexec(0x1111111111111111)
if opt['near']: A('buffer_store_dwordx4 v[48:51], v62, s[24:27], s62 offen sc1')
A('buffer_store_dwordx4 v[48:51], v62, s[24:27], s63 offen sc1')
mark(6)
A('s_barrier')
if opt['wbl']:
    A(f"s_cmp_lg_u32 s5, {opt['wbl']}\ns_cbranch_scc1 L_nowb\nbuffer_wbl2 sc1\nL_nowb:")
if STAMPS:
    A('s_mov_b32 s94, s5\ns_mov_b32 s95, 0')
flush([(3, 11), (4, 12), (5, 13), (6, 14), (7, 15)])
if opt['opdiag']:
    A(f'''
L_opdiag:
s_lshl_b32 s98, s2, 8
s_lshl_b32 s97, s73, 5
s_add_u32 s98, s98, s97
s_add_u32 s98, s98, {HB}
s_sub_u32 s97, {SPIN}, s70
s_waitcnt lgkmcnt(0)
v_mov_b32 v4, s86
v_mov_b32 v5, s88
v_mov_b32 v6, s90
v_mov_b32 v7, s97
v_mov_b32 v8, s82
v_mov_b32 v9, s5
v_mov_b32 v1, 0
s_mov_b64 exec, 1
buffer_store_dwordx4 v[4:7], v1, s[24:27], s98 offen
buffer_store_dwordx2 v[8:9], v1, s[24:27], s98 offen offset:16
''')
A('s_endpgm')

if opt['tearly']:
    A('L_tiles:')
    srd(12, 48, 640 * 1536 * 2); srd(16, 50, 640 * 1536 * 2)
    A(f'''
s_sub_u32 s75, s5, 20
s_lshr_b32 s78, s75, 2
s_and_b32 s75, s75, 3
s_mul_i32 s72, s75, {160*3072}
s_mul_i32 s68, s73, {8*3072}
s_add_u32 s72, s72, s68
s_mul_i32 s68, s4, 3
s_add_u32 s78, s78, s68
s_lshl_b32 s68, s78, 7
s_add_u32 s72, s72, s68
s_lshl_b32 s61, s73, 10
s_add_u32 s61, s61, {WL}
v_lshrrev_b32 v2, 3, v0
v_and_b32 v3, 7, v0
v_mul_u32_u24 v62, 3072, v2
v_lshl_add_u32 v62, v3, 4, v62
''')
    hint_wait(DN1 if opt['hintB'] == 1 else DN2, opt['nB'])
    if opt['tB'] == 0: lds_wait_ge(CNT + 4, 8, 1)
    elif opt['tB'] == 9: lds_wait_ge(INFO + 4, 1, 1)
    else: lds_wait_ge(CNT, opt['tB'], 1)
    mark(3)
    def tile_issue(DW, nb1):
        n = 0
        for t in range(5):
            for m in range(2):
                if n >= DW: A(f"s_waitcnt vmcnt({DW-1})")
                if nb1 and n == nb1: lds_wait_ge(INFO + 4, 1, 1)
                A(f's_add_u32 m0, s61, {8192*t + 4096*m}')
                if not opt['abl'] & 128: A(f'buffer_load_dwordx4 v62, s[{12+4*m}:{15+4*m}], s72 offen nt lds')
                n += 1
            if t < 4: A(f's_add_u32 s72, s72, {32*3072}')
    if opt['mB']:
        A(f"s_lshr_b32 s68, s28, 8\ns_cmp_ge_u32 s68, {opt['GB']}\ns_cbranch_scc1 L_tfast")
        lds_wait_ge(INFO + 4, 1, 1)
        tile_issue(opt['gB'], 0)
        A('s_branch L_tdone\nL_tfast:')
    tile_issue(opt['DWB'], opt['nb1B'])
    A('L_tdone:')
    if opt['hist']:
        for m in reversed(range(opt['DWB'])):
            A(f's_waitcnt vmcnt({m})'); hstamp(39 - m)
    A('s_waitcnt vmcnt(0)')
    mark(4)
    A('s_barrier')
    if STAMPS:
        A('s_cmp_lg_u32 s3, 8\ns_cbranch_scc1 L_end')
        flush([(3, 18), (4, 19)])
    A('s_endpgm')

assert opt['tearly']
B1R = 64
AR = 24
HRDY = CNT + 12
def yp_loads(fl='', b=104):
    A(f'buffer_load_dwordx4 v[{b}:{b+3}], v53, s[24:27], s60 offen sc1' + fl)
    A(f'buffer_load_dwordx4 v[{b+4}:{b+7}], v59, s[24:27], s60 offen sc1' + fl)
A('L_f1:')
tr_addr(58, 5)
A(f"""
s_sub_u32 s75, s5, 20
s_lshr_b32 s78, s75, 2
s_and_b32 s75, s75, 3
s_mul_i32 s74, s75, 5
s_add_u32 s74, s74, s3
s_mul_i32 s68, s4, 3
s_add_u32 s78, s78, s68
s_lshl_b32 s68, s3, 5
v_add_u32 v58, s68, v58
v_lshrrev_b32 v3, 4, v0
v_and_b32 v2, 7, v0
v_lshl_add_u32 v50, v2, 2, v3
v_lshlrev_b32 v50, 1, v50
s_lshl_b32 s68, s74, 6
v_add_u32 v61, s68, v50
s_lshl_b32 s68, s3, 6
v_add_u32 v51, s68, v50
v_lshlrev_b32 v52, 4, v3
v_lshlrev_b32 v54, 3, v0
v_lshrrev_b32 v53, 3, v0
v_mul_u32_u24 v53, 2560, v53
v_lshl_add_u32 v53, v2, 4, v53
s_lshl_b32 s68, s74, 7
v_add_u32 v53, s68, v53
v_add_u32 v59, {8*2560}, v53
s_add_u32 s60, s47, {YP}
v_lshlrev_b32 v55, 4, v0
v_mov_b32 v57, 0
s_lshl2_add_u32 s76, s78, s3
s_lshl2_add_u32 s76, s76, s75
s_lshl_b32 s76, s76, 8
s_add_u32 s76, s76, {PA}
s_lshl3_add_u32 s68, s78, s75
s_lshl_b32 s68, s68, 4
s_add_u32 s68, s68, {PS}
s_lshl2_add_u32 s69, s4, s75
s_mul_i32 s69, s69, 640
s_add_u32 s69, s69, {PH}
v_add_u32 v63, s69, v55
v_mov_b32 v4, s68
s_mov_b32 s8, 0
s_mov_b32 s9, 0x100
v_cndmask_b32 v63, v63, v4, s[8:9]
s_cmp_lt_u32 s5, 24
s_cselect_b32 s62, -1, 0
s_cselect_b32 s63, 0xff, 0
s_or_b32 s63, s63, 0x100
v_mov_b32 v14, s30
v_mov_b32 v15, s31
v_mov_b32 v44, 0x3f803f80
v_mov_b32 v45, 0x3f803f80
v_mov_b32 v46, 0x3f803f80
v_mov_b32 v47, 0x3f803f80
v_mov_b32 v8, 0
v_mov_b32 v9, 0
v_mov_b32 v10, 0
v_mov_b32 v11, 0
v_mov_b32 v112, 0x3f80
v_mov_b32 v113, 0x3f800000
v_mov_b32 v16, 0
v_mov_b32 v20, 0
""")
place(53, 4); place(59, 4)
A('global_load_ushort v56, v61, s[36:37]')
A('s_setprio 3\ns_barrier')
yp_loads()
mark(4)
A('s_cmp_eq_u32 s3, 4\ns_cbranch_scc1 L_f1nob')
for t in range(5):
    for m in range(2):
        r = B1R + 4 * (2 * t + m)
        A(f'ds_read_b64_tr_b16 v[{r}:{r+1}], v58 offset:{WL + 8192*t + 4096*m}')
        A(f'ds_read_b64_tr_b16 v[{r+2}:{r+3}], v58 offset:{WL + 8192*t + 4096*m + 512}')
A('s_waitcnt lgkmcnt(0)')
for t in range(5):
    for m in range(2):
        r = B1R + 4 * (2 * t + m); d = (116, 124)[m]
        A(f"v_mfma_f32_16x16x32_bf16 v[{d}:{d+3}], v[44:47], v[{r}:{r+3}], {'0' if t == 0 else 'v[%d:%d]' % (d, d+3)}")
A('L_f1nob:')
A('s_waitcnt vmcnt(2)\nv_lshlrev_b32 v56, 16, v56')
A(f's_mov_b32 s70, {SPIN}')
A('s_branch L_ypw0')
A('L_yppoll:')
yp_loads()
A('L_ypw0:')
A('s_waitcnt vmcnt(0)')
tagcheck([106, 110])
A('s_nop 0\ns_cbranch_vccz L_ypok')
sleep(opt['ysl'])
A('s_sub_u32 s70, s70, 1\ns_cbranch_scc0 L_yppoll')
trap(202)
A('L_ypok:')
mark(5)
for n in (104, 108):
    A(f'v_dot2c_f32_bf16 v8, v{n}, v112\nv_dot2c_f32_bf16 v10, v{n+1}, v112\nv_dot2c_f32_bf16 v9, v{n}, v113\nv_dot2c_f32_bf16 v11, v{n+1}, v113')
A(f"""
{S32} v8, v10
{S32} v9, v11
v_add_f32 v8, v8, v10
v_add_f32 v9, v9, v11
{S16} v8, v9
v_add_f32 v8, v8, v9
v_add_f32_dpp v8, v8, v8 row_ror:8 {DPPM}
v_cvt_pk_bf16_f32 v8, v57, v8
v_add_f32 v8, v8, v56
v_cvt_pk_bf16_f32 v8, v8, v8
ds_write_b16 v51, v8 offset:{HL}
s_cmp_eq_u32 s3, 4
s_waitcnt lgkmcnt(0)
s_barrier
""")
if opt['stv']: A('s_cbranch_scc1 L_f1st')
for t in range(5): A(f'ds_read_b128 v[{AR+4*t}:{AR+4*t+3}], v52 offset:{HL + 64*t}')
if not opt['stv']: A('s_cbranch_scc1 L_f1st')
for t in range(5):
    A(f's_waitcnt lgkmcnt({4-t})')
    for m in range(2):
        r = B1R + 4 * (2 * t + m); d = 16 + 4 * m
        A(f"v_mfma_f32_16x16x32_bf16 v[{d}:{d+3}], v[{AR+4*t}:{AR+4*t+3}], v[{r}:{r+3}], {'0' if t == 0 else 'v[%d:%d]' % (d, d+3)}")
A('v_cvt_pk_bf16_f32 v12, v16, v116\nv_cvt_pk_bf16_f32 v13, v20, v124')
publish([(0xffff, 'buffer_store_dwordx4 v[12:15], v55, @, s76 offen')])
mark(6)
flush([(6, 27), (5, 11)], True)
A('s_endpgm')
A('L_f1st:')
if opt['stv']:
    A(f"""s_mov_b32 exec_hi, 0xff
ds_read_b64 v[12:13], v54 offset:{HL}
s_waitcnt lgkmcnt(0)
v_dot2c_f32_bf16 v16, v12, v44
v_dot2c_f32_bf16 v20, v12, v12
v_dot2c_f32_bf16 v16, v13, v44
v_dot2c_f32_bf16 v20, v13, v13
s_mov_b32 exec_hi, -1
{S32} v16, v20
v_add_f32 v16, v16, v20""")
    allreduce16('v_add_f32', [16])
    swapreduce(S16, 'v_add_f32', [16], [20])
    A(f'v_mov_b32 v20, v16\n{S32} v16, v20')
else:
    A(f'ds_read_b64 v[12:13], v54 offset:{HL}')
    for t in range(5):
        A(f's_waitcnt lgkmcnt({5-t})')
        a_ = f'v[{AR+4*t}:{AR+4*t+3}]'
        A(f"v_mfma_f32_16x16x32_bf16 v[16:19], {a_}, v[44:47], {'0' if t == 0 else 'v[16:19]'}")
        A(f"v_mfma_f32_16x16x32_bf16 v[20:23], {a_}, {a_}, {'0' if t == 0 else 'v[20:23]'}")
A('s_waitcnt lgkmcnt(0)\nv_cndmask_b32 v12, v12, v16, s[8:9]\nv_cndmask_b32 v13, v13, v20, s[8:9]')
publish([('s[62:63]', 'buffer_store_dwordx4 v[12:15], v63, @, 0 offen')])
mark(6)
flush([(6, 27), (5, 11)], True)
flush([(4, 17)])
A('s_endpgm')

A('L_ffn:')
A("""
v_mov_b32 v57, 0
s_mul_i32 s72, s4, 12
s_add_u32 s72, s72, s5
s_cmp_lt_u32 s3, 5
s_cbranch_scc1 L_f2
s_cmp_eq_u32 s3, 5
s_cbranch_scc1 L_hid
s_cmp_ge_u32 s5, 10
s_cbranch_scc1 L_end
""")
A(f"""
s_mul_i32 s72, s4, 10
s_add_u32 s72, s72, s5
v_lshrrev_b32 v2, 1, v0
v_mul_u32_u24 v2, 2560, v2
v_and_b32 v3, 1, v0
v_lshl_add_u32 v96, v3, 4, v2
s_lshl_b32 s68, s72, 5
v_add_u32 v96, s68, v96
v_add_u32 v100, {32*2560}, v96
v_add_u32 v101, {64*2560}, v96
s_add_u32 s10, s47, {FP}
v_lshrrev_b32 v4, 4, v0
v_lshl_add_u32 v97, v3, 2, v4
v_lshlrev_b32 v97, 1, v97
v_lshlrev_b32 v99, 4, v3
v_and_b32 v98, 16, v0
s_mul_i32 s13, s4, 2560
s_lshl_b32 s68, s72, 5
s_add_u32 s13, s13, s68
s_add_u32 s13, s13, {PH}
s_lshl_b32 s14, s72, 4
s_mov_b32 s69, 0xffff0000
""")
place(96, 4); place(100, 4); place(101, 4)
FS = 16
srd(64, 54, 1280)
A('v_cmp_lt_u32 s[62:63], 31, v0')
A('s_setprio 3\ns_barrier' + ('' if opt['spec'] & 2 else '\ns_barrier'))
if opt['hwarm']: A('buffer_load_dwordx4 v[12:15], v99, s[32:35], s13 offen nt')
A('v_mov_b32 v8, 0\nv_mov_b32 v9, 0\nv_mov_b32 v10, 0\nv_mov_b32 v11, 0\nv_mov_b32 v112, 0x3f80\nv_mov_b32 v113, 0x3f800000')
A('s_barrier')
if opt['fack']: A('s_barrier')
sleep(opt['fsleep'])
def body():
    A(f'buffer_load_dwordx4 v[4:7], v99, s[16:19], s13 offen{RF}')
    for n, a in enumerate((96, 100, 101)):
        r = FS + 4 * n
        A(f'buffer_load_dwordx4 v[{r}:{r+3}], v{a}, s[24:27], s10 offen sc1')
    A('s_waitcnt vmcnt(0)')
    tagcheck([6, FS + 2, FS + 6, FS + 10])
spin2(body, 0, local_only=True)
mark(5)
for n in range(3):
    r = FS + 4 * n
    A(f'v_dot2c_f32_bf16 v8, v{r}, v112\nv_dot2c_f32_bf16 v10, v{r+1}, v112\nv_dot2c_f32_bf16 v9, v{r}, v113\nv_dot2c_f32_bf16 v11, v{r+1}, v113')
A(f"""
v_cndmask_b32 v58, v4, v5, s[62:63]
v_lshrrev_b32 v58, v98, v58
{S32} v8, v10
{S32} v9, v11
v_add_f32 v8, v8, v10
v_add_f32 v9, v9, v11
v_lshlrev_b32 v58, 16, v58
{S16} v8, v9
v_add_f32 v8, v8, v9
v_add_f32_dpp v8, v8, v8 row_ror:8 {DPPM}
v_add_f32_dpp v8, v8, v8 row_ror:4 {DPPM}
v_add_f32_dpp v8, v8, v8 quad_perm:[2,3,0,1] {DPPM}
v_cvt_pk_bf16_f32 v8, v57, v8
v_add_f32 v8, v8, v58
v_cvt_pk_bf16_f32 v8, v8, v8
""")
setexec(0x0003000300030003)
A(f"""
buffer_store_short v8, v97, s[64:67], s14 offen
s_cmp_lg_u32 s72, 0
s_cbranch_scc1 L_fin_exit
s_mov_b64 exec, 1
v_mov_b32 v4, s30
v_mov_b32 v5, s31
s_mov_b32 s68, {EP}
buffer_store_dwordx2 v[4:5], v57, s[24:27], s68 offen
L_fin_exit:
""")
if opt['dbg']:
    A(f'''
s_cmp_lg_u32 s72, 0
s_cbranch_scc1 L_end
s_memrealtime s[82:83]
s_waitcnt lgkmcnt(0)
s_sub_u32 s84, s82, s80
s_sub_u32 s84, s84, 1500
s_mul_i32 s84, s84, {opt['dbg']}
s_min_u32 s84, s84, 20000
L_dbgspin:
s_memrealtime s[86:87]
s_waitcnt lgkmcnt(0)
s_sub_u32 s86, s86, s82
s_cmp_lt_u32 s86, s84
s_cbranch_scc1 L_dbgspin
''')
if STAMPS:
    A('s_waitcnt vmcnt(0)')
    mark(6)
    A(f's_sub_u32 s94, {SPIN}, s70\ns_mov_b32 s95, 0')
    flush([(5, 25), (6, 26), (7, 8)])
A('s_endpgm')

def pa_loads(srdn, fl, b):
    A(f'buffer_load_dwordx4 v[{b+4}:{b+7}], v61, s[{srdn}:{srdn+3}], s65 offen{fl}')
    A(f'buffer_load_dwordx4 v[{b}:{b+3}], v60, s[{srdn}:{srdn+3}], s64 offen{fl}')
def pa_use(b):
    mark(5)
    A(f"""
v_add_f32_dpp v4, v{b+4}, v{b+4} quad_perm:[1,0,3,2] {DPPM}
v_add_f32_dpp v5, v{b+5}, v{b+5} quad_perm:[1,0,3,2] {DPPM}
v_add_f32_dpp v4, v4, v4 quad_perm:[2,3,0,1] {DPPM}
v_add_f32_dpp v5, v5, v5 quad_perm:[2,3,0,1] {DPPM}
v_mul_f32 v6, {f32(-1.0/640)}, v4
v_mul_f32 v5, {f32(1.0/640)}, v5
v_cvt_pk_bf16_f32 v4, 1.0, v6
v_fma_f32 v5, -v6, v6, v5
v_dot2c_f32_bf16 v8, v{b}, v4
v_dot2c_f32_bf16 v9, v{b+1}, v4
""")
def hid_setup():
    A(f"""
v_lshlrev_b32 v60, 4, v0
v_and_b32 v61, 48, v60
s_lshr_b32 s68, s72, 2
s_lshl_b32 s65, s68, 7
s_add_u32 s65, s65, {PS}
s_lshl_b32 s64, s72, 10
s_add_u32 s64, s64, {PA}
v_mov_b32 v8, 0
v_mov_b32 v9, 0
s_cmp_eq_u32 s46, 1
s_cselect_b32 s16, s32, s24
s_cselect_b32 s17, s33, s25
s_mov_b32 s18, {WSN}
s_mov_b32 s19, 0x20000
s_mov_b32 s70, {SPIN}
""")
def hid_compute():
    A('L_pap:')
    pa_loads(16, RF, 24)
    A('s_waitcnt vmcnt(2)')
    tagcheck([18, 22])
    A('s_nop 0\ns_cbranch_vccz L_pad0')
    sleep(opt['psl'])
    pa_loads(32, RF, 16)
    A('s_waitcnt vmcnt(2)')
    tagcheck([26, 30])
    A('s_nop 0\ns_cbranch_vccz L_pad1')
    sleep(opt['psl'])
    A('s_sub_u32 s70, s70, 1\ns_cbranch_scc0 L_pap')
    trap(203)
    A('L_pad1:')
    pa_use(24)
    A('s_branch L_paj\nL_pad0:')
    pa_use(16)
    A('L_paj:')
    A(f"""
v_max_f32 v5, 0, v5
v_cvt_pk_bf16_f32 v5, v57, v5
v_add_f32 v5, {f32(1e-5)}, v5
{S32} v8, v9
v_cvt_pk_bf16_f32 v5, v57, v5
v_add_f32 v8, v8, v9
v_sqrt_f32 v5, v5
v_mov_b32 v10, v8
v_cvt_pk_bf16_f32 v5, v57, v5
v_rcp_f32 v5, v5
{S16} v8, v10
v_add_f32 v8, v8, v10
v_mul_f32 v8, v8, v5
v_cvt_pk_bf16_f32 v8, v57, v8
v_mul_f32 v12, {f32(-LOG2E)}, v8
v_mov_b32 v9, v8
v_exp_f32 v12, v12
{S32} v8, v9
v_add_f32 v12, 1.0, v12
v_rcp_f32 v12, v12
v_mul_f32 v8, v8, v12
v_cvt_pk_bf16_f32 v8, v57, v8
v_mul_f32 v8, v8, v9
""")
BAR1 = 's_setprio 3\ns_barrier' + ('' if opt['spec'] & 2 else '\ns_barrier')
A('L_hid:')
if opt['hred']: A('s_endpgm')
else:
    A('v_and_b32 v62, 15, v0\nv_lshlrev_b32 v62, 1, v62')
    hid_setup()
    A(BAR1)
    pa_loads(32, LF, 16)
    hid_compute()
    A(f"""
v_cvt_pk_bf16_f32 v8, v8, v8
s_mov_b64 exec, 0xffff
ds_write_b16 v62, v8 offset:{HID}
s_waitcnt lgkmcnt(0)
s_barrier
""")
    flush([(5, 24)])
    A('s_endpgm')

A('L_f2:')
W2R = 64
srd(8, 52, 1536 * 640 * 2)
A(f"""
s_lshl_b32 s68, s3, 8
v_lshlrev_b32 v58, 2, v0
v_add_u32 v58, s68, v58
v_lshlrev_b32 v116, 1, v58
s_mul_i32 s68, s72, 2560
v_add_u32 v116, s68, v116
s_xor_b32 s78, s47, 8192
s_add_u32 s78, s78, {FP}
s_add_u32 s77, s47, {FP}
s_mov_b32 s60, 0x05040100
s_mov_b32 s61, 0x07060302
s_mul_i32 s62, s72, 20480
v_mov_b32 v40, 0
v_mov_b32 v41, 0
v_mov_b32 v46, s30
v_mov_b32 v47, s31
""")
place(116, 4)
if opt['hred']: hid_setup()
A(BAR1)
for k in range(16):
    if not opt['abl'] & 256: A(f'buffer_load_dword v{W2R+k}, v58, s[8:11], s62 offen offset:{1280*(k%3)} nt')
    if k % 3 == 2: A('s_add_u32 s62, s62, 3840')
HX = 0
if opt['hred']: pa_loads(32, LF, 16); HX = 2
if opt['hist']:
    for m in (12, 8, 4, 0):
        A(f's_waitcnt vmcnt({m + HX})'); hstamp(51 - m // 4)
A(f's_waitcnt vmcnt({HX})')
mark(4)
for kp in range(8):
    A(f'v_perm_b32 v{80+kp}, v{W2R+2*kp+1}, v{W2R+2*kp}, s60')
    A(f'v_perm_b32 v{88+kp}, v{W2R+2*kp+1}, v{W2R+2*kp}, s61')
if opt['hred']:
    hid_compute()
    A(f'v_mov_b32_dpp v9, v8 quad_perm:[1,0,3,2] {DPPM}\nv_cvt_pk_bf16_f32 v8, v8, v9')
    for kp in range(8): A(f'v_readlane_b32 s{8+kp}, v8, {2*kp}')
    for kp in range(8):
        A(f'v_dot2c_f32_bf16 v40, s{8+kp}, v{80+kp}')
        A(f'v_dot2c_f32_bf16 v41, s{8+kp}, v{88+kp}')
else:
    A(f"""s_barrier
ds_read_b128 v[8:11], v57 offset:{HID}
ds_read_b128 v[12:15], v57 offset:{HID+16}
s_waitcnt lgkmcnt(1)""")
    for kp in range(8):
        if kp == 4: A('s_waitcnt lgkmcnt(0)')
        A(f'v_dot2c_f32_bf16 v40, v{8+kp}, v{80+kp}')
        A(f'v_dot2c_f32_bf16 v41, v{8+kp}, v{88+kp}')
A(f"""
v_cvt_pk_bf16_f32 v44, v40, v41
v_mov_b32_dpp v45, v44 quad_perm:[1,0,3,2] {DPPM}
""")
setexec(0x5555555555555555)
if opt['near']: A('buffer_store_dwordx4 v[44:47], v116, s[24:27], s78 offen sc1')
A('buffer_store_dwordx4 v[44:47], v116, s[24:27], s77 offen sc1')
mark(6)
if opt['hred'] == 2: A('s_barrier')
if STAMPS:
    flush([(6, 27)], True)
    A('s_cmp_lg_u32 s3, 0\ns_cbranch_scc1 L_end')
    flush([(4, 22)] + ([(5, 24)] if opt['hred'] else []))
A('L_end:')
A('s_endpgm')
for blk in outline: A(blk)
if opt['hist']:
    A.lines = [('s_branch L_hexit' if l.strip() == 's_endpgm' else l) for l in A.lines]
    i = A.lines.index('s_cbranch_scc1 L_end'); A.lines[i] = 's_cbranch_scc1 L_realend'
    A(f'''
L_hexit:
s_mov_b64 exec, -1
s_memrealtime s[96:97]
s_getreg_b32 s64, hwreg(HW_REG_XCC_ID)
s_waitcnt lgkmcnt(0)
{''.join('v_writelane_b32 v159, s%d, %d' % (80 + 2 * i, 54 + i) + chr(10) for i in range(6)) if opt['sdiag'] else ''}
v_writelane_b32 v159, s96, 61
v_writelane_b32 v159, s94, 62
v_writelane_b32 v159, s64, 63
s_mul_i32 s64, s2, 12
s_add_u32 s64, s64, s3
s_lshl_b32 s64, s64, 8
s_add_u32 s64, s64, {HB}
v_lshlrev_b32 v1, 2, v0
s_nop 4
buffer_store_dword v159, v1, s[24:27], s64 offen
L_realend:
s_endpgm
''')
A('L_codeend:')

A.raw('.section .rodata,"a"')
A.raw('.p2align 6')
A.raw(f'.amdhsa_kernel {NAME}_kernel')
A.raw('  .amdhsa_next_free_vgpr 168')
A.raw('  .amdhsa_next_free_sgpr 100')
A.raw('  .amdhsa_accum_offset 168')
A.raw('  .amdhsa_group_segment_fixed_size 0')
A.raw('  .amdhsa_kernarg_size 96')
A.raw('  .amdhsa_user_sgpr_count 2')
A.raw('  .amdhsa_user_sgpr_kernarg_segment_ptr 1')
A.raw('  .amdhsa_system_sgpr_workgroup_id_x 1')
A.raw('.end_amdhsa_kernel')
txt = A.finalize()
FLV = {0: ' nt', 1: '', 2: ' sc1', 3: ' sc0 sc1', 4: ' sc1 nt', 5: ' sc0 sc1 nt', 6: ' sc0', 7: ' sc0 nt'}
if opt['wdef'] or opt['kvfl'] or opt['wqfl']:
    out = []
    for l in txt.split('\n'):
        if opt['wdef'] & 1 and 'v2, s[8:11], s68 offen nt' in l: l = l.replace(' nt', '')
        if opt['wdef'] & 2 and 'v26, s[12:15], s60 offen nt lds' in l: l = l.replace(' nt', '')
        if opt['wdef'] & 4 and ('buffer_load_dwordx4 v62,' in l or 'v58, s[8:11], s62' in l): l = l.replace(' nt', '')
        if opt['wdef'] & 8 and 'v1, s[12:15]' in l: l = l.replace(' nt', '')
        if opt['wdef'] & 16 and 'v1, s[8:11]' in l: l = l.replace(' nt', '')
        if opt['kvfl'] and ('v1, s[8:11]' in l or 'v1, s[12:15]' in l): l = l.replace(' nt', FLV[opt['kvfl']])
        if opt['wqfl'] and 'v2, s[8:11], s68 offen nt' in l: l = l.replace(' nt', FLV[opt['wqfl']])
        out.append(l)
    txt = '\n'.join(out)
open(sys.argv[1], 'w').write(txt)
```

```python
import sys, struct, os
from asmlib import Asm

NAME = "sequential_preLN__sliding_block_cached__glu_gated_swiglu__decode"
opt = dict(D=3, stamps=0, hist=0, spin=200007, Vpre=3, qsleep=20, qdelay=40, stsleep=16, idtries=12, idsleep=16,
           t1=3, t2=0, DWO=8, nA=0, nB=0, hintB=2, fsleep=0, forceslow=0, trap=0, dyn=5, near=1, dbg=0, hsleep=0,
           cpf=3, nprobe=4, fixnear=-1, share=1, tearly=1, DWB=10, opearly=0, tB=0, prew=0, npw=4, abl=0, lnt=1, prer=0, ynt=0, hwarm=1, fnt=1, pubwait=0, opdiag=0, nb1=8, ope=2, tlb=0, sdiag=0, deep=0, shal=0, shper=4, nb1B=4, mA=0, gA=4, mB=0, gB=3, rsleep=4, GA=8, GB=8, hbar=1, papipe=1, fprew=0, psl=0, oppipe=1, yppipe=0, wbl=0, red=1, ysl=0, ord=0, hred=1, spec=3, ovl=1, fack=0, sched=4, shp=1, idpre=0, pal=0, opsl=0, ydel=0, wpre=0, wpw=2, opl=1, stv=1, opchk=0, wdef=0, kvfl=0, wqfl=0, rowl=1, bywave=0, swz=2, dbgx=-1, dbgs=0)
for a in sys.argv[2:]:
    k, v = a.split('=')
    assert k in opt, k
    opt[k] = int(v)
D = opt['D']; STAMPS = opt['stamps']; SPIN = opt['spin']

LF = ' sc1 nt' if opt['lnt'] else ' sc1'
def f32(x): return '0x%08x' % struct.unpack('<I', struct.pack('<f', x))[0]
LOG2E = 1.4426950408889634

YP = 0x0
PR = 0x20000
FP = 0x80000
EP = 0xFF000
ST = 0x101000
ID = 0x102000
DN1 = 0x103000
DN2 = 0x104000
TK = 0x108000
PV = 0x105000
OP = 0x110000
QP = 0x140000
if opt['ovl']: QP = OP
SP = 0x200000
PA = 0x220000
PS = 0x2A0000
PH = 0x2A8000
HB = 0x300000
WSN = 0x400000
FAST = 0x400000
QL = 0
QF = 384
SL = 512
CNT = 640
INFO = 656
GS = 672
HID = 896
OL = 1024
RL = 7168
HL = 8192
WL = 8704
BK = 1056 if opt['swz'] == 2 else 1024
LDS = WL + 48 * BK

A = Asm()
A.raw(open(os.path.join(os.path.dirname(os.path.abspath(__file__)), '..', NAME + '.s.ref')).read().split('; Override launch')[0].rstrip())
A.raw(f"; @launch grid=(256,1,1) block=(768,1,1) lds={LDS}")
A.raw('''; Generated by gen/gen12.py (hand-written generator).  One persistent launch, 256 workgroups x 12 waves, 1 per CU.
;  waves 0..7 : stream this workgroup's 512 keys of K then V (nt loads, depth-limited), QK / PV with v_dot2c bf16,
;  one XCD, a write-through copy as well, so any placement is correct.  Chip-wide hand-offs are written through twice
;  s_sleep is used only as back-off inside / ahead of polling loops.''')
A.raw('.amdgcn_target "amdgcn-amd-amdhsa--gfx950"')
A.raw('.text')
A.raw(f'.globl {NAME}_kernel')
A.raw('.p2align 8')
A.raw(f'.type {NAME}_kernel,@function')
A.raw(f'{NAME}_kernel:')

def stamp(idx, plus_wave=False):
    if not STAMPS: return
    A('s_memrealtime s[96:97]')
    A('s_lshl_b32 s98, s2, 8')
    A(f's_add_u32 s98, s98, {SP + idx*8}')
    if plus_wave: A('s_lshl3_add_u32 s98, s3, s98')
    A('s_mov_b64 s[94:95], exec')
    A('s_mov_b64 exec, 1')
    A('s_waitcnt lgkmcnt(0)')
    A('v_mov_b32 v120, s96\nv_mov_b32 v121, s97\nv_mov_b32 v122, 0')
    A('buffer_store_dwordx2 v[120:121], v122, s[24:27], s98 offen')
    A('s_mov_b64 exec, s[94:95]')
def mark(i):
    if STAMPS: A(f's_memrealtime s[{80+2*i}:{81+2*i}]')
def flush(pairs, plus_wave=False):
    if not STAMPS: return
    A('s_lshl_b32 s98, s2, 8')
    A(f's_add_u32 s98, s98, {SP}')
    if plus_wave: A('s_lshl3_add_u32 s98, s3, s98')
    A('s_mov_b64 exec, 1\ns_waitcnt lgkmcnt(0)\nv_mov_b32 v122, 0')
    for i, slot in pairs:
        A(f'v_mov_b32 v120, s{80+2*i}\nv_mov_b32 v121, s{81+2*i}')
        A(f'buffer_store_dwordx2 v[120:121], v122, s[24:27], s98 offen offset:{8*slot}')
        A('s_nop 1')
    A('s_mov_b64 exec, -1')
def hstamp(ks):
    if not opt['hist'] or opt['sdiag']: return
    if isinstance(ks, int): ks = [ks]
    ks = list(ks)
    if not ks: return
    A('s_memrealtime s[96:97]\ns_waitcnt lgkmcnt(0)')
    for k in ks: A(f'v_writelane_b32 v159, s96, {k}')

def sd(i):
    if opt['sdiag']: A(f's_memrealtime s[{80+2*i}:{81+2*i}]')
def srd(d, ptr, nbytes):
    A(f's_mov_b32 s{d}, s{ptr}')
    A(f's_mov_b32 s{d+1}, s{ptr+1}')
    A(f's_mov_b32 s{d+2}, {nbytes}')
    A(f's_mov_b32 s{d+3}, 0x20000')
def ws_srds():
    srd(24, 58, WSN)
    A(f's_add_u32 s32, s58, {FAST}')
    A('s_addc_u32 s33, s59, 0')
    A(f's_mov_b32 s34, {WSN}')
    A('s_mov_b32 s35, 0x20000')
    A('s_lshl3_add_u32 s71, s6, s7')
    A('s_lshr_b32 s79, s2, 3')

ALL = (1 << 64) - 1
def setexec(mask):
    if mask == ALL: A('s_mov_b64 exec, -1'); return
    A(f's_mov_b32 exec_lo, 0x{mask & 0xffffffff:x}')
    A(f's_mov_b32 exec_hi, 0x{mask >> 32:x}')

DPPM = 'row_mask:0xf bank_mask:0xf'
def allreduce8(op, regs):
    for pat in ('quad_perm:[1,0,3,2]', 'quad_perm:[2,3,0,1]', 'row_half_mirror'):
        for r in regs: A(f'{op}_dpp v{r}, v{r}, v{r} {pat} {DPPM}')
def allreduce16(op, regs):
    allreduce8(op, regs)
    for r in regs: A(f'{op}_dpp v{r}, v{r}, v{r} row_mirror {DPPM}')
def swapreduce(sw, op, regs, tmps):
    for r, t in zip(regs, tmps): A(f'v_mov_b32 v{t}, v{r}')
    for r, t in zip(regs, tmps): A(f'{sw} v{r}, v{t}')
    for r, t in zip(regs, tmps): A(f'{op} v{r}, v{r}, v{t}')
S16 = 'v_permlane16_swap_b32'; S32 = 'v_permlane32_swap_b32'
def allreduce_rows(op, regs, tmps):
    swapreduce(S16, op, regs, tmps); swapreduce(S32, op, regs, tmps)
def allreduce64(op, regs, tmps):
    allreduce16(op, regs); allreduce_rows(op, regs, tmps)
def bf16r(d, s):
    A(f'v_cvt_pk_bf16_f32 v{d}, v{s}, v{s}')
    A(f'v_lshlrev_b32 v{d}, 16, v{d}')
def mktag():
    A('''
s_waitcnt lgkmcnt(0)
s_mul_i32 s30, s28, 0x2c9277b5
s_add_u32 s30, s30, 0xac564b05
s_or_b32 s30, s30, 1
s_mul_i32 s31, s29, 0x0019660d
s_add_u32 s31, s31, 0x3c6ef35f
''')
def place(v, t):
    A(f'v_and_b32 v{t}, 0xffffe000, v{v}\nv_add_u32 v{v}, v{v}, v{t}')
lbl = [0]
def newlabel(p):
    lbl[0] += 1
    return f'L_{p}_{lbl[0]}'

def tagcheck(pairs):
    A(f'v_cmp_ne_u64 vcc, s[30:31], v[{pairs[0]}:{pairs[0]+1}]')
    tm = [(20, 21), (22, 23)]
    pend = []
    for i, p in enumerate(pairs[1:]):
        t = tm[i % 2]
        if len(pend) == 2:
            q = pend.pop(0); A(f's_or_b64 vcc, vcc, s[{q[0]}:{q[1]}]')
        A(f'v_cmp_ne_u64 s[{t[0]}:{t[1]}], s[30:31], v[{p}:{p+1}]')
        pend.append(t)
    for q in pend: A(f's_or_b64 vcc, vcc, s[{q[0]}:{q[1]}]')

def sleep(n):
    while n > 0:
        A(f's_sleep {min(n, 127)}'); n -= 127
def trap(n):
    if not opt['trap']: return
    A(f's_lshl_b32 s99, s2, 8\ns_or_b32 s99, s99, s3\ns_lshl_b32 s99, s99, 8\ns_or_b32 s99, s99, {n & 255}')
    A(f'v_mov_b32 v163, {16 * (n % 16)}\nv_mov_b32 v164, s99\nv_mov_b32 v165, vcc_lo\nv_mov_b32 v166, vcc_hi\nv_mov_b32 v167, s5')
    A('global_store_dwordx4 v163, v[164:167], s[56:57]')
def spin(body, slp=0, retry=None, enter=None):
    top = newlabel('spin'); done = newlabel('sdone')
    A(f's_mov_b32 s70, {SPIN}')
    if enter: A(f's_branch {enter}')
    A(f'{top}:')
    body()
    A('s_nop 0')
    A(f's_cbranch_vccz {done}')
    sleep(slp)
    if retry: retry()
    A('s_sub_u32 s70, s70, 1')
    A(f's_cbranch_scc0 {top}')
    trap(lbl[0])
    A(f'{done}:')
def spin2(body, slp=0, retry=None, local_only=False, enter=None):
    A(f's_mov_b32 s16, s32\ns_mov_b32 s17, s33\ns_mov_b32 s18, {WSN}\ns_mov_b32 s19, 0x20000')
    def rt():
        if retry: retry()
        A('s_and_b32 s99, s70, 7')
        if local_only:
            A('s_cmp_eq_u32 s46, 1')
            A('s_cselect_b32 s99, 1, s99')
            A('s_cmp_lg_u32 s99, 0')
        A('s_cselect_b32 s16, s32, s24')
        A('s_cselect_b32 s17, s33, s25')
    spin(body, slp, rt, enter)

def lds_wait_ge(off, n, slp, dst=4, adr=1):
    A(f'v_mov_b32 v{adr}, 0')
    def body():
        A(f'ds_read_b32 v{dst}, v{adr} offset:{off}')
        A('s_waitcnt lgkmcnt(0)')
        A(f'v_cmp_gt_u32 vcc, {n}, v{dst}')
    spin(body, slp)
def get_mode(dst=4, adr=1):
    lds_wait_ge(INFO, 1, 2, dst, adr)
    A(f'v_readfirstlane_b32 s46, v{dst}')
def get_role(slp):
    A('v_mov_b32 v1, 0')
    def body():
        A(f'ds_read_b64 v[4:5], v1 offset:{INFO + 8}')
        A('s_waitcnt lgkmcnt(0)')
        A('v_cmp_eq_u32 vcc, 0, v5')
    spin(body, slp)
    A('v_readfirstlane_b32 s5, v5\nv_readfirstlane_b32 s47, v4\ns_lshr_b32 s28, s5, 8\ns_and_b32 s5, s5, 0xff\ns_sub_u32 s5, s5, 1')
ROLE = INFO + 12; NEAR = INFO + 8

outline = []
def publish(stores):
    def emit(srdn, fl, AA):
        cur = ALL
        for m, line in stores:
            m = ALL if m is None else m
            if m != cur:
                if m == ALL: AA('s_mov_b64 exec, -1')
                elif isinstance(m, str): AA(f's_mov_b64 exec, {m}')
                else: AA(f's_mov_b32 exec_lo, 0x{m & 0xffffffff:x}\ns_mov_b32 exec_hi, 0x{m >> 32:x}')
                cur = m
            AA(line.replace('@', f's[{srdn}:{srdn+3}]') + fl)
        if cur != ALL: AA('s_mov_b64 exec, -1')
    if not opt['forceslow']: emit(32, '', A)
    slow = newlabel('slow'); back = newlabel('back')
    A('s_cmp_lg_u32 s46, 1')
    A(f's_cbranch_scc1 {slow}')
    A(f'{back}:')
    blk = [f'{slow}:']
    emit(24, ' sc1', lambda t: blk.append(t))
    blk.append('s_nop 1')
    blk.append(f's_branch {back}')
    outline.append('\n'.join(blk))
def hint_wait(base, n):
    if not n: return
    lp = newlabel('gpoll'); ld = newlabel('gdone')
    A(f"""
v_and_b32 v1, 31, v0
v_lshlrev_b32 v1, 4, v1
s_lshl_b32 s68, s4, 9
s_add_u32 s68, s68, {base}
s_mov_b32 s70, 40
s_cmp_lg_u32 s46, 1
s_cbranch_scc1 {ld}
{lp}:
buffer_load_dwordx4 v[4:7], v1, s[32:35], s68 offen{LF}
s_waitcnt vmcnt(0)
v_cmp_eq_u64 vcc, s[30:31], v[6:7]
s_nop 0
s_bcnt1_i32_b32 s69, vcc_lo
s_cmp_ge_u32 s69, {n}
s_cbranch_scc1 {ld}
s_sleep 2
s_sub_u32 s70, s70, 1
s_cbranch_scc0 {lp}
{ld}:
""")

A("""
s_cmp_ge_u32 s2, 256
s_cbranch_scc1 L_end
s_load_dwordx2 s[8:9], s[0:1], 8
s_load_dwordx16 s[36:51], s[0:1], 0
s_load_dwordx8 s[52:59], s[0:1], 64
""")
mark(0)
if opt['dbg'] or opt['dbgx'] >= 0: A('s_memrealtime s[80:81]')
if opt['hist']: A('s_memrealtime s[94:95]\nv_mov_b32 v159, 0')
A("""
v_lshrrev_b32 v1, 6, v0
v_and_b32 v0, 63, v0
v_readfirstlane_b32 s3, v1
s_and_b32 s4, s2, 7
s_lshr_b32 s79, s2, 6
s_lshl2_add_u32 s6, s4, s79
s_bfe_u32 s7, s2, 0x30003
""")
if opt['cpf'] >= 3:
    A(f'''
s_cmp_lg_u32 s3, 0
s_cbranch_scc1 L_nocpf
s_getpc_b64 s[20:21]
L_pc0:
''')
    if opt['cpf'] == 3:
        A(f'''
s_mul_i32 s68, s7, {2560 if (STAMPS or opt['hist']) else 2048}
v_min_u32 v8, {19 if (STAMPS or opt['hist']) else 15}, v0
v_lshl_add_u32 v8, v8, 7, s68
v_min_u32 v8, L_codeend-L_pc0-4, v8
global_load_dword v10, v8, s[20:21]
''')
    else:
        A(f'''
v_lshlrev_b32 v8, 7, v0
v_add_u32 v9, 8192, v8
v_min_u32 v9, L_codeend-L_pc0-4, v9
global_load_dword v10, v8, s[20:21]
global_load_dword v11, v9, s[20:21]
''')
    A('L_nocpf:')
A("""
v_lshrrev_b32 v2, 3, v0
v_and_b32 v3, 7, v0
v_lshlrev_b32 v3, 4, v3
s_mov_b32 s11, 0x20000
s_cmp_gt_u32 s3, 7
s_cbranch_scc1 L_helper
""")
G = 8; GST = 3072 * 64
GOFF = [60, 61, 62, 63, 64, 65, 66, 67]
A("""
s_lshl3_add_u32 s68, s7, s3
s_mul_i32 s60, s6, 4096
s_add_u32 s60, s60, s68
s_addk_i32 s60, 3584
s_mul_i32 s60, s60, 3072
v_mul_u32_u24 v2, 384, v2
v_add_u32 v1, v2, v3
s_mov_b32 s10, 402653184
""")
if opt['tlb'] & 1: A('s_mul_i32 s69, s3, 983040')
A('s_waitcnt lgkmcnt(0)')
sd(1)
QR = 4; KR = 16
SC = 168 - G
VR = KR + 12 * G
nV1 = min((SC - VR) // 12, G) - (1 if opt['hist'] else 0)
ACC = KR + 12 * (G - 2)
T = ACC
st = dict(n=0); hs = dict(done=0)
def hupto(n):
    hstamp(range(hs['done'], n)); hs['done'] = max(hs['done'], n)
def vreg(g): return VR + 12 * g if g < nV1 else KR + 12 * (g - nV1)
ADP = opt['deep'] or opt['shal']
DC = D + 1 if opt['deep'] else D
def issue_load(kind, g, j, depth):
    if depth and st['n'] >= depth:
        if opt['shal'] and st['n'] > 4 and st['n'] % opt['shper'] == 0:
            l1 = newlabel('sh'); A(f's_bitcmp0_b32 s77, 1\ns_cbranch_scc1 {l1}\ns_waitcnt vmcnt({depth-2})\n{l1}:')
        if opt['deep'] and st['n'] > 3:
            l1 = newlabel('dp'); A(f's_bitcmp1_b32 s77, 0\ns_cbranch_scc1 {l1}\ns_waitcnt vmcnt({depth-1})\n{l1}:\ns_waitcnt vmcnt({depth})')
        else: A(f's_waitcnt vmcnt({depth-1})')
    r = (KR + 12 * g + 4 * j) if kind == 'K' else vreg(g) + 4 * j
    s = 8 if kind == 'K' else 12
    A(f'buffer_load_dwordx4 v[{r}:{r+3}], v1, s[{s}:{s+3}], s{GOFF[g]} offen offset:{128*j} nt')
    if depth and st['n'] >= depth: hupto(st['n'] - DC + 1)
    st['n'] += 1
def touches():
    if opt['tlb'] & 1: A('s_load_dword s20, s[42:43], s69\ns_load_dword s21, s[36:37], 0')
    if opt['tlb'] & 2: A('s_load_dword s22, s[40:41], s60')
def prealloc():
    A('v_mov_b32 v4, 0\nv_mov_b32 v5, 0\nv_mov_b32 v6, 0\nv_mov_b32 v7, 0')
    if opt['pal'] & 1:
        A(f'''
s_bfe_u32 s68, s2, 0x40003
s_cmp_lg_u32 s3, 1
s_cselect_b32 s68, 15, s68
s_cmp_ge_u32 s68, 10
s_cbranch_scc1 L_pal1
s_lshr_b32 s69, s2, 7
s_lshl1_add_u32 s69, s4, s69
s_mul_i32 s69, s69, 10
s_add_u32 s68, s68, s69
s_lshl_b32 s68, s68, 8
s_and_b32 s69, s68, 0xffffe000
s_add_u32 s68, s68, s69
v_and_b32 v8, 15, v0
v_lshlrev_b32 v8, 4, v8
v_lshrrev_b32 v9, 4, v0
v_lshl_add_u32 v8, v9, 13, v8
v_add_u32 v8, s68, v8
s_mov_b32 exec_hi, 0
global_store_dwordx4 v8, v[4:7], s[58:59] sc1
s_mov_b32 exec_hi, -1
L_pal1:
''')
    if opt['pal'] & 2:
        A(f'''
s_sub_u32 s68, s3, 2
s_cmp_gt_u32 s68, 1
s_cbranch_scc1 L_pal2
s_cmp_ge_u32 s2, 240
s_cbranch_scc1 L_pal2
s_lshl_b32 s68, s68, 13
s_lshl_b32 s69, s2, 10
s_add_u32 s68, s68, s69
s_and_b32 s69, s69, 0xffffe000
s_add_u32 s68, s68, s69
s_add_u32 s68, s68, {FP}
v_lshl_add_u32 v8, v0, 4, s68
global_store_dwordx4 v8, v[4:7], s[58:59] sc1
L_pal2:
''')
if opt['tlb'] & 4: touches()
if opt['pal'] & 3: prealloc()
for j in range(3): issue_load('K', 0, j, D)
if not opt['tlb'] & 4: touches()
sd(2)
A('s_barrier')
A('s_branch L_stream')

A('L_helper:')
sd(1)
A(f'''
v_lshlrev_b32 v1, 3, v0
v_mov_b32 v4, 0
v_mov_b32 v5, 0
ds_write_b64 v1, v[4:5] offset:{QF}
s_sub_u32 s73, s3, 8
s_cmp_eq_u32 s3, 11
s_cbranch_scc1 L_misc
''')
A('''
s_mul_i32 s68, s7, 80
v_add_u32 v7, s68, v2
v_lshlrev_b32 v7, 1, v7
v_mul_u32_u24 v2, 12288, v2
v_add_u32 v2, v2, v3
s_mul_i32 s68, s68, 12288
s_mul_i32 s69, s6, 384
s_add_u32 s68, s68, s69
s_lshl_b32 s69, s73, 7
s_add_u32 s68, s68, s69
v_lshlrev_b32 v1, 2, v0
s_setprio 3
s_waitcnt lgkmcnt(0)
s_barrier
''')
sd(2)
XS = 64; XU = 70; XR = 8; WQ = 24; QA = 80
A(f's_mov_b32 s8, s42\ns_mov_b32 s9, s43\ns_mov_b32 s10, {640 * 6144 * 2}')
for i in range(5): A(f'global_load_dword v{XS+i}, v1, s[36:37] offset:{256*i}')
for r in range(10): A(f'global_load_ushort v{XR+r}, v7, s[36:37] offset:{16*r}')
sd(3)
for r in range(10):
    A(f'buffer_load_dwordx4 v[{WQ+4*r}:{WQ+4*r+3}], v2, s[8:11], s68 offen nt')
    if r < 9: A('s_add_u32 s68, s68, 98304')
A(f's_load_dwordx2 s[28:29], s[58:59], {EP}')
sd(4)
A('s_branch L_q2')
A('L_misc:')
if opt['cpf'] in (1, 2):
    A(f'''
s_getpc_b64 s[20:21]
L_pc0:
''')
    if opt['cpf'] == 1:
        A(f'''
s_lshr_b32 s68, s2, 3
s_lshl_b32 s68, s68, 9
v_lshlrev_b32 v8, 7, v0
v_and_b32 v8, 0x1ff, v8
v_add_u32 v8, s68, v8
v_min_u32 v8, L_codeend-L_pc0-4, v8
global_load_dword v10, v8, s[20:21]
''')
    else:
        A(f'''
v_lshlrev_b32 v8, 7, v0
v_add_u32 v9, 8192, v8
v_min_u32 v9, L_codeend-L_pc0-4, v9
global_load_dword v10, v8, s[20:21]
global_load_dword v11, v9, s[20:21]
''')
A(f'''
s_setprio 3
s_waitcnt lgkmcnt(0)
s_barrier
s_load_dwordx2 s[28:29], s[58:59], {EP}
s_branch L_misc2
''')

A('L_stream:')
sd(3)
for g in range(1, G):
    A(f's_add_u32 s{GOFF[g]}, s{GOFF[g-1]}, {GST}')
    for j in range(3):
        issue_load('K', g, j, D)
        if g == 1 and j == 0: sd(4)
        if g == 2 and j == 0: sd(5)
        if g == 1 and j == 0:
            A(f's_load_dwordx2 s[28:29], s[58:59], {EP}')
            ws_srds(); srd(12, 40, 402653184)
            if ADP:
                A(f'''s_getreg_b32 s76, hwreg(HW_REG_XCC_ID)
{'s_mov_b32 s76, s3' if opt['bywave'] else 's_and_b32 s76, s76, 7'}
s_lshr_b32 s77, {opt['deep']}, s76
s_and_b32 s77, s77, 1
s_lshr_b32 s76, {opt['shal']}, s76
s_and_b32 s76, s76, 1
s_lshl1_add_u32 s77, s76, s77''')
mark(1)
nv = 0; NV = 3 * G
if opt['abl'] & 512:
    while nv < NV:
        issue_load('V', nv // 3, nv % 3, D); nv += 1
    A('s_waitcnt vmcnt(0)')
    if opt['abl'] & 2048: A('s_lshl_b32 s68, s2, 7\ns_mov_b64 exec, 1\nbuffer_store_dword v1, off, s[32:35], s68')
    A('s_endpgm')
    nv = 0; st['n'] = 3 * G
for n in range(min(opt['Vpre'], 3 * nV1)):
    issue_load('V', nv // 3, nv % 3, D); nv += 1
mktag()
A('v_and_b32 v2, 3, v0\nv_min_u32 v2, 2, v2\nv_lshlrev_b32 v2, 3, v2')
def body():
    A(f'ds_read_b32 v{QR}, v2 offset:{QF}')
    A('s_waitcnt lgkmcnt(0)')
    A(f'v_cmp_eq_u32 vcc, 0, v{QR}')
spin(body, 1)
A(f'''
ds_read_b128 v[{QR}:{QR+3}], v3 offset:{QL}
ds_read_b128 v[{QR+4}:{QR+7}], v3 offset:{QL+128}
ds_read_b128 v[{QR+8}:{QR+11}], v3 offset:{QL+256}
''')
for g in range(G): A(f'v_mov_b32 v{SC+g}, 0')
A(f's_waitcnt vmcnt({nv}) lgkmcnt(0)')
hupto(3 * G)
for gs in (range(4), range(4, G)):
    for i in range(12):
        for g in gs:
            A(f'v_dot2c_f32_bf16 v{SC+g}, v{KR+12*g+i}, v{QR+i}')
def triple():
    global nv
    for n in range(3):
        issue_load('V', nv // 3, nv % 3, D); nv += 1
if opt['sched'] == 2: triple()
allreduce8('v_add_f32', [SC + g for g in range(G)])
if opt['sched'] in (1, 3): triple()
A(f's_mov_b32 s68, {f32(192 ** -0.5)}')
A('v_mov_b32 v2, 0')
for g in range(G): A(f'v_cvt_pk_bf16_f32 v{SC+g}, v2, v{SC+g}')
for g in range(G): A(f'v_mul_f32 v{SC+g}, s68, v{SC+g}')
for g in range(G): A(f'v_cvt_pk_bf16_f32 v{SC+g}, v2, v{SC+g}')
A(f'v_max_f32 v4, v{SC}, v{SC+1}')
for g in range(2, G, 2): A(f'v_max3_f32 v4, v4, v{SC+g}, v{SC+g+1}')
A(f'v_max_f32_dpp v4, v4, v4 row_ror:8 {DPPM}')
allreduce_rows('v_max_f32', [4], [T])
A(f's_mov_b32 s68, {f32(LOG2E)}')
for g in range(G): A(f'v_sub_f32 v{SC+g}, v{SC+g}, v4')
for g in range(G): A(f'v_mul_f32 v{SC+g}, s68, v{SC+g}')
for g in range(G): A(f'v_exp_f32 v{SC+g}, v{SC+g}')
A(f'v_add_f32 v5, v{SC}, v{SC+1}')
for g in range(2, G): A(f'v_add_f32 v5, v5, v{SC+g}')
A(f'v_add_f32_dpp v5, v5, v5 row_ror:8 {DPPM}')
allreduce_rows('v_add_f32', [5], [T])
A(f'''
s_lshl_b32 s69, s3, 4
v_mov_b32 v{T}, s69
v_mov_b32 v6, 1
v_mov_b32 v7, 1
ds_write_b128 v{T}, v[4:7] offset:{SL}
''')
mark(2)
if opt['sched'] in (1, 2): triple()
for g in range(G): A(f'v_cvt_pk_bf16_f32 v{SC+g}, v{SC+g}, v2')
for i in range(24): A(f'v_mov_b32 v{ACC+i}, 0')
A('''
v_and_b32 v8, 7, v0
v_lshlrev_b32 v8, 5, v8
v_lshrrev_b32 v9, 4, v0
v_lshl_add_u32 v8, v9, 3, v8
s_mul_i32 s69, s3, 768
v_add_u32 v8, s69, v8
v_mov_b32 v11, 1
''')
def pv(idx):
    g, j = divmod(idx, 3)
    r = vreg(g) + 4 * j
    if j == 0: A(f'v_lshlrev_b32 v10, 16, v{SC+g}')
    for e in range(4):
        A(f'v_dot2c_f32_bf16 v{ACC+8*j+2*e}, v{r+e}, v{SC+g}')
        A(f'v_dot2c_f32_bf16 v{ACC+8*j+2*e+1}, v{r+e}, v10')
done_idx = -1; pv_next = 0
if opt['sched'] in (1, 2):
    for n in range(3): pv(pv_next); pv_next += 1
assert nv < NV - opt['t1'] and opt['t1'] >= opt['t2']
RW = 64
PS_ = [8, 9, 10, 11, 60, 61, 62, 63, 64, 65, 66, 76, 77, 78, 20, 21]
if opt['rowl']:
    assert D == 3 and not ADP and not opt['hist'] and nV1 == 4
    A('v_min_u32 v3, 47, v0\nv_lshlrev_b32 v3, 3, v3')
while nv < NV:
    if opt['rowl'] and nv >= NV - 3:
        k = nv - (NV - 3)
        A(f's_waitcnt vmcnt({2 + 2 * k})')
        for r in range(3 * k, min(3 * k + 3, 8)):
            A(f'buffer_load_dwordx2 v[{RW+2*r}:{RW+2*r+1}], v3, s[12:15], s{GOFF[G-1]} offen offset:{384*r} nt')
    else:
        issue_load('V', nv // 3, nv % 3, D)
    done_idx = nv - DC
    nv += 1
    for key, off in (('t1', 8), ('t2', 4)):
        if nv == NV - opt[key]:
            A(f's_mov_b64 exec, 1\nds_add_u32 v2, v11 offset:{CNT+off}\ns_mov_b64 exec, -1')
    cnt = 0
    if opt['sched'] and nv % 3: continue
    while pv_next <= done_idx and cnt < (6 if opt['sched'] else 2):
        pv(pv_next); pv_next += 1; cnt += 1
def scale_factor():
    def body():
        A(f'ds_read_b128 v[12:15], v2 offset:{GS}')
        A(f'ds_read_b32 v7, v2 offset:{INFO}')
        A('s_waitcnt lgkmcnt(0)')
        A('v_cmp_eq_u32 vcc, 0, v15')
    spin(body, 1)
    A('v_sub_f32 v9, v4, v12\nv_mul_f32 v9, s68, v9\nv_exp_f32 v9, v9\nv_readfirstlane_b32 s46, v7\nv_mul_f32 v9, v9, v13')
    A(f'''
v_min_u32 v12, 47, v0
{'v_lshlrev_b32 v13, 7, v12' if not opt['opl'] else 'v_lshrrev_b32 v13, 1, v12' + chr(10) + 'v_and_b32 v14, 1, v12' + chr(10) + 'v_lshl_add_u32 v13, v13, 4, v14' + chr(10) + 'v_lshlrev_b32 v13, 4, v13'}
v_lshlrev_b32 v12, 4, v12
s_mul_i32 s74, s6, 6144
s_lshl_b32 s75, s7, {4 + opt['opl']}
s_add_u32 s74, s74, s75
s_add_u32 s74, s74, {OP}
s_lshl_b32 s75, s4, 9
s_lshl4_add_u32 s75, s79, s75
s_add_u32 s75, s75, {DN2}
s_mov_b32 s22, 0xaaaaaaaa
s_mov_b32 s23, 0xaaaaaaaa
v_mov_b32 v14, s30
v_mov_b32 v15, s31
''')
def reduce_js(js, scale=True):
    B_ = [ACC + 8 * j for j in js]
    for b in B_:
        for e in range(4): A(f'{S32} v{b+e}, v{b+e+4}')
    for b in B_:
        if opt['red'] & 1:
            for e in (0, 2): A(f'v_pk_add_f32 v[{b+e}:{b+e+1}], v[{b+e}:{b+e+1}], v[{b+e+4}:{b+e+5}]')
        else:
            for e in range(4): A(f'v_add_f32 v{b+e}, v{b+e}, v{b+e+4}')
    for b in B_:
        for e in range(2): A(f'{S16} v{b+e}, v{b+e+2}')
    for b in B_:
        if opt['red'] & 1: A(f'v_pk_add_f32 v[{b}:{b+1}], v[{b}:{b+1}], v[{b+2}:{b+3}]')
        else:
            for e in range(2): A(f'v_add_f32 v{b+e}, v{b+e}, v{b+e+2}')
    for b in B_:
        for e in range(2): A(f'v_add_f32_dpp v{b+e}, v{b+e}, v{b+e} row_ror:8 {DPPM}')
    for j, b in zip(js, B_):
        if scale:
            for e in range(2): A(f'v_mul_f32 v{b+e}, v9, v{b+e}')
        A(f'ds_write_b64 v8, v[{b}:{b+1}] offset:{OL+256*j}')
PLAN = {0: {0: [0], 1: [1], 2: [2]}, 1: {1: [0, 1], 2: [2]}, 2: {2: [0, 1, 2]}, 3: {0: [0], 2: [1, 2]}}[opt['red'] >> 1]
fd = False
if opt['rowl']:
    while pv_next < NV - 3:
        pv(pv_next); pv_next += 1
    reduce_js([0, 1, 2], False)
    A(f's_mul_i32 s69, s3, 768\nv_lshlrev_b32 v8, 1, v3\nv_add_u32 v8, s69, v8')
    A(f'ds_read_b128 v[{ACC+4}:{ACC+7}], v8 offset:{OL}')
    for r in range(8): A(f'v_readlane_b32 s{PS_[2*r]}, v{SC+G-1}, {8*r}')
    for r in range(8): A(f's_lshl_b32 s{PS_[2*r+1]}, s{PS_[2*r]}, 16')
    scale_factor()
    for r in range(8):
        A(f's_waitcnt vmcnt({7-r})')
        for e in range(2):
            A(f'v_dot2c_f32_bf16 v{ACC+4+2*e}, s{PS_[2*r]}, v{RW+2*r+e}')
            A(f'v_dot2c_f32_bf16 v{ACC+5+2*e}, s{PS_[2*r+1]}, v{RW+2*r+e}')
    for e in range(4): A(f'v_mul_f32 v{ACC+4+e}, v9, v{ACC+4+e}')
    A(f'ds_write_b128 v8, v[{ACC+4}:{ACC+7}] offset:{OL}')
    pv_next = NV
while pv_next < NV:
    if pv_next >= NV - 3 and not fd:
        scale_factor(); fd = True
    if pv_next > done_idx:
        A(f's_waitcnt vmcnt({NV - 1 - pv_next})')
        hupto(3 * G + pv_next + 1)
        done_idx = pv_next
    pv(pv_next); pv_next += 1
    if pv_next == NV and opt['abl'] & 4096: A('s_endpgm')
    if pv_next > NV - 3 and (pv_next - 1) % 3 in PLAN and not opt['abl'] & 4096: reduce_js(PLAN[(pv_next - 1) % 3])
if opt['spec'] & 1:
    A(f's_mov_b64 exec, 1\nds_add_rtn_u32 v10, v2, v11 offset:{CNT}\ns_mov_b64 exec, -1')
    for w in range(8): A(f'ds_read_b128 v[{16+4*w}:{19+4*w}], v12 offset:{OL+768*w}')
    A('s_waitcnt lgkmcnt(8)\nv_readfirstlane_b32 s68, v10\ns_cmp_lg_u32 s68, 7\ns_cbranch_scc1 L_nopub')
else:
    A(f'''
s_mov_b64 exec, 1
ds_add_rtn_u32 v10, v2, v11 offset:{CNT}
s_waitcnt lgkmcnt(0)
v_readfirstlane_b32 s68, v10
s_mov_b64 exec, -1
s_cmp_lg_u32 s68, 7
s_cbranch_scc1 L_nopub
''')
    for w in range(8): A(f'ds_read_b128 v[{16+4*w}:{19+4*w}], v12 offset:{OL+768*w}')
def add4(d, a_, b_):
    if opt['red'] & 1:
        for e in (0, 2): A(f'v_pk_add_f32 v[{d+e}:{d+e+1}], v[{a_+e}:{a_+e+1}], v[{b_+e}:{b_+e+1}]')
    else:
        for e in range(4): A(f'v_add_f32 v{d+e}, v{a_+e}, v{b_+e}')
for w in range(0, 8, 2):
    A(f's_waitcnt lgkmcnt({6-w})')
    add4(16 + 4 * w, 16 + 4 * w, 20 + 4 * w)
    if w == 2 or w == 6: add4(8 + 4 * w, 8 + 4 * w, 16 + 4 * w)
add4(4, 16, 32)
A('''
v_cvt_pk_bf16_f32 v8, v4, v5
v_cvt_pk_bf16_f32 v9, v6, v7
v_cndmask_b32 v4, v8, v14, s[22:23]
v_cndmask_b32 v5, v9, v15, s[22:23]
v_cndmask_b32 v6, v14, v8, s[22:23]
v_cndmask_b32 v7, v15, v9, s[22:23]
''')
if opt['abl'] & 8192: A('s_endpgm')
publish([((1 << 48) - 1, 'buffer_store_dwordx4 v[4:7], v13, @, s74 offen')])
mark(3)
if opt['dbgx'] >= 0:
    A('''s_memrealtime s[82:83]
s_waitcnt lgkmcnt(0)
s_lshl_b32 s84, s4, 3
s_cmp_lg_u32 s79, 0
s_cbranch_scc1 L_dbx0
s_atomic_umax s80, s[56:57], s84
L_dbx0:
s_add_u32 s84, s84, 4''')
    if opt['dbgs']: A('s_atomic_umax s82, s[56:57], s84')
A('s_mov_b64 exec, 1')
if opt['nB'] and opt['hintB'] == 2: A('buffer_store_dwordx4 v[4:7], v12, s[32:35], s75 offen')
if opt['pubwait']: A('s_waitcnt vmcnt(0)')
if opt['pubwait'] and opt['opdiag']: mark(1)
A(f'ds_write_b32 v2, v11 offset:{INFO + 4}')
A('s_mov_b64 exec, -1')
flush([(1, 9), (2, 10), (3, 16)])
A('L_nopub:')
if STAMPS:
    A('s_cmp_lg_u32 s3, 0\ns_cbranch_scc1 L_nost0')
    flush([(0, 0)])
    A('L_nost0:')
if opt['abl'] & 16: A('s_endpgm')
A('s_cmp_eq_u32 s3, 7\ns_cbranch_scc1 L_end')
get_role(1)
A('''
s_cmp_lt_u32 s5, 12
s_cbranch_scc1 L_ffn
s_cmp_lt_u32 s5, 20
s_cbranch_scc1 L_end
s_cmp_lt_u32 s3, 5
s_cbranch_scc1 L_f1
s_endpgm
''')

A('L_q2:')
A('s_mov_b32 s69, 0xffff0000')
ws_srds()
mktag()
QX = 0
if opt['dyn'] in (4, 5):
    A(f'''
s_mul_i32 s64, s4, 768
s_add_u32 s64, s64, {TK}
s_add_u32 s65, s79, s73
s_cmp_eq_u32 s65, 0
s_cselect_b32 s64, s64, {WSN}
v_mov_b32 v92, 0
v_mov_b32 v93, 0
v_mov_b32 v94, s30
v_mov_b32 v95, s31
s_mov_b64 exec, 1
buffer_store_dwordx4 v[92:95], off, s[24:27], s64 sc1
s_mov_b64 exec, -1
''')
    QX += 1
if opt['dyn'] == 3:
    A(f'''
s_mul_i32 s64, s6, 768
s_add_u32 s64, s64, {TK}
s_add_u32 s65, s7, s73
s_cmp_eq_u32 s65, 0
s_cselect_b32 s64, s64, {WSN}
v_mov_b32 v91, 0
s_mov_b64 exec, 1
buffer_store_dword v91, off, s[24:27], s64 sc1
s_mov_b64 exec, -1
''')
    QX += 1
A(f's_waitcnt vmcnt({20+QX})')
sd(5)
for i in range(5):
    A(f'v_lshlrev_b32 v{XU+2*i}, 16, v{XS+i}')
    A(f'v_and_b32 v{XU+1+2*i}, s69, v{XS+i}')
A(f'''
v_add_f32 v4, v{XU}, v{XU+1}
v_add_f32 v5, v{XU+2}, v{XU+3}
v_add_f32 v6, v{XU+4}, v{XU+5}
v_add_f32 v7, v{XU+6}, v{XU+7}
v_add_f32 v4, v4, v5
v_add_f32 v6, v6, v7
v_add_f32 v5, v{XU+8}, v{XU+9}
v_add_f32 v4, v4, v6
v_add_f32 v4, v4, v5
''')
allreduce64('v_add_f32', [4], [5])
A(f'v_mul_f32 v4, {f32(1.0/640)}, v4')
for i in range(10): A(f'v_sub_f32 v{XU+i}, v{XU+i}, v4')
A(f'v_mul_f32 v5, v{XU}, v{XU}')
for i in range(1, 10): A(f'v_fmac_f32 v5, v{XU+i}, v{XU+i}')
allreduce64('v_add_f32', [5], [6])
A(f'v_mul_f32 v5, {f32(1.0/640)}, v5')
bf16r(4, 4); bf16r(5, 5)
A(f'v_add_f32 v5, {f32(1e-5)}, v5')
bf16r(5, 5)
A('v_sqrt_f32 v5, v5')
bf16r(5, 5)
A('v_rcp_f32 v5, v5')
A('v_mov_b32 v6, 0')
A(f's_waitcnt vmcnt({10+QX})')
for r in range(10): A(f'v_lshlrev_b32 v{XR+r}, 16, v{XR+r}')
for r in range(10): A(f'v_sub_f32 v{XR+r}, v{XR+r}, v4')
for r in range(10): A(f'v_cvt_pk_bf16_f32 v{XR+r}, v6, v{XR+r}')
for r in range(10): A(f'v_mul_f32 v{XR+r}, v{XR+r}, v5')
for r in range(10):
    A(f'v_cvt_pk_bf16_f32 v{XU+r}, v6, v{XR+r}')
    A(f'v_cvt_pk_bf16_f32 v{XR+r}, v{XR+r}, v6')
for e in range(8): A(f'v_mov_b32 v{QA+e}, 0')
A(f'''
v_and_b32 v90, 7, v0
v_lshrrev_b32 v6, 5, v0
v_lshl_add_u32 v90, v90, 1, v6
v_lshlrev_b32 v90, 4, v90
s_mul_i32 s60, s6, 3
s_add_u32 s60, s60, s73
s_lshl_b32 s60, s60, 11
s_add_u32 s60, s60, {QP}
s_lshl_b32 s64, s7, 8
s_add_u32 s64, s64, s60
''')
for r in range(10):
    A(f's_waitcnt vmcnt({9-r+QX if r < 9 else 0})')
    hstamp(r)
    for e in range(4):
        A(f'v_dot2c_f32_bf16 v{QA+2*e}, v{WQ+4*r+e}, v{XR+r}')
        A(f'v_dot2c_f32_bf16 v{QA+2*e+1}, v{WQ+4*r+e}, v{XU+r}')
mark(1)
if opt['abl'] & 1536 == 512: A('s_endpgm')
for e in range(4): A(f'{S32} v{QA+e}, v{QA+e+4}')
for e in range(4): A(f'v_add_f32 v{QA+e}, v{QA+e}, v{QA+e+4}')
swapreduce(S16, 'v_add_f32', [QA + e for e in range(4)], [QA + 4 + e for e in range(4)])
for e in range(4): A(f'v_add_f32_dpp v{QA+e}, v{QA+e}, v{QA+e} row_ror:8 {DPPM}')
for e in range(3):
    A(f's_mov_b32 s68, 0x070605{e+1:02x}\nv_perm_b32 v{QA+e}, v{QA+e}, v{QA+3}, s68')
A(f'v_mov_b32 v{QA+3}, s30')
QM = 0x000000ff000000ff
if not opt['forceslow'] and not opt['abl'] & 2:
    setexec(QM)
    A(f'buffer_store_dwordx4 v[{QA}:{QA+3}], v90, s[32:35], s64 offen')
    setexec(ALL)
A('''
v_lshlrev_b32 v2, 4, v0
v_and_b32 v3, 15, v0
v_lshl_add_u32 v3, v3, 1, v6
v_lshlrev_b32 v3, 2, v3
s_lshl_b32 s69, s73, 7
v_add_u32 v3, s69, v3
v_mov_b32 v1, 0
s_mov_b32 s65, 0
s_mov_b32 s61, 0x0c04000c
s_mov_b32 s62, 0x0402010c
''')
def q_lazy():
    skip = newlabel('qlazy')
    A(f'''
ds_read_b32 v4, v1 offset:{INFO}
s_waitcnt lgkmcnt(0)
v_readfirstlane_b32 s46, v4
s_sub_u32 s68, s46, s65
s_cmp_lg_u32 s68, 2
s_cbranch_scc1 {skip}
''')
    setexec(QM)
    A(f'buffer_store_dwordx4 v[{QA}:{QA+3}], v90, s[24:27], s64 offen sc1')
    setexec(ALL)
    A(f's_mov_b32 s65, 1\n{skip}:')
def body():
    for n in range(2):
        A(f'buffer_load_dwordx4 v[{8+4*n}:{11+4*n}], v2, s[16:19], s60 offen offset:{1024*n}{LF}')
    A('s_waitcnt vmcnt(0)')
    A('v_cmp_ne_u32 vcc, s30, v11\nv_cmp_ne_u32 s[20:21], s30, v15\ns_or_b64 vcc, vcc, s[20:21]')
sleep(opt['qdelay'])
if not opt['abl'] & 34: spin2(body, opt['qsleep'], retry=q_lazy)
mark(2)
for n in (8, 12):
    A(f'v_perm_b32 v{n+3}, v{n+1}, v{n}, s61\nv_perm_b32 v{n+3}, v{n+2}, v{n+3}, s62')
for e in range(4): A(f'v_add_f32 v{8+e}, v{8+e}, v{12+e}')
A(f'{S32} v8, v10\n{S32} v9, v11\nv_add_f32 v8, v8, v10\nv_add_f32 v9, v9, v11')
swapreduce(S16, 'v_add_f32', [8, 9], [10, 11])
A(f'''
v_cvt_pk_bf16_f32 v8, v8, v9
ds_write_b32 v3, v8 offset:{QL}
''')
get_mode()
q_lazy()
A(f'''
s_lshl_b32 s69, s73, 3
v_mov_b32 v4, s69
v_mov_b32 v6, 1
s_waitcnt vmcnt(0) lgkmcnt(0)
ds_write_b32 v4, v6 offset:{QF}
''')
if opt['abl'] & 16: A('s_endpgm')
A('s_cmp_lg_u32 s3, 8\ns_cbranch_scc1 L_role')
if opt['dyn'] == 1:
    lds_wait_ge(CNT + 8, 8, 2)
    A('''
s_lshl_b32 s68, s4, 3
s_lshl_b64 s[20:21], 1, s68
v_mov_b32 v6, s20
v_mov_b32 v7, s21
s_mov_b64 exec, 1
global_atomic_add_x2 v[4:5], v1, v[6:7], s[56:57] sc0 sc1
s_waitcnt vmcnt(0)
v_readfirstlane_b32 s20, v4
v_readfirstlane_b32 s21, v5
s_lshr_b64 s[22:23], s[20:21], s68
s_and_b32 s22, s22, 31
s_and_b32 s23, s20, 0xff
''')
    for i in range(1, 8):
        A(f's_bfe_u32 s69, s{20 + i // 4}, {(8 << 16) | (8 * (i % 4))}\ns_min_u32 s23, s23, s69')
    A('s_lshl_b32 s23, s23, 8\ns_add_u32 s22, s22, s23\ns_add_u32 s22, s22, 1\nv_mov_b32 v5, s22')
elif opt['dyn'] == 2:
    lds_wait_ge(CNT + 8, 8, 2)
    A('''
s_lshl_b32 s68, s4, 5
v_mov_b32 v6, s68
v_mov_b32 v5, 1
s_mov_b64 exec, 1
global_atomic_add v5, v6, v5, s[56:57] sc0 sc1
s_waitcnt vmcnt(0)
v_and_b32 v5, 31, v5
v_add_u32 v5, 1, v5
''')
elif opt['dyn'] == 4:
    A(f's_mul_i32 s66, s4, 768\ns_add_u32 s66, s66, {TK}')
    def body():
        A('buffer_load_dwordx4 v[4:7], off, s[24:27], s66 sc1')
        A('s_waitcnt vmcnt(0)')
        tagcheck([6])
    spin(body, 20)
    lds_wait_ge(CNT + 8, 8, 2)
    A(f'''
v_mov_b32 v5, 1
s_mov_b64 exec, 1
buffer_atomic_add v5, off, s[24:27], s66 sc0 sc1
s_waitcnt vmcnt(0)
v_and_b32 v5, 31, v5
v_add_u32 v5, 1, v5
''')
elif opt['dyn'] == 5:
    A(f'''
s_mul_i32 s66, s4, 768
s_add_u32 s66, s66, {TK}
s_mov_b32 s70, {SPIN}
s_load_dwordx4 s[20:23], s[58:59], s66
s_branch L_tkw0
L_tkchk:
s_load_dwordx4 s[20:23], s[58:59], s66 glc
L_tkw0:
s_waitcnt lgkmcnt(0)
s_cmp_eq_u64 s[22:23], s[30:31]
s_cbranch_scc1 L_tkok
s_sleep 20
s_sub_u32 s70, s70, 1
s_cbranch_scc0 L_tkchk
''')
    trap(204)
    A('L_tkok:')
    lds_wait_ge(CNT + 8, 8, 1)
    A(f'''
s_mov_b32 s20, 1
s_atomic_add s20, s[58:59], s66 glc
''')
    if opt['mA'] or opt['mB']:
        A(f'''
s_load_dword s21, s[56:57], 0
s_waitcnt lgkmcnt(0)
s_cmp_eq_u32 s20, {opt['mA'] - 1}
s_cselect_b32 s22, 1, 0
s_cmp_eq_u32 s20, {opt['mB'] - 1}
s_cselect_b32 s23, 0x100, 0
s_or_b32 s22, s22, s23
s_cbranch_scc0 L_nog
s_atomic_add s22, s[56:57], 0
L_nog:
s_lshl_b32 s21, s21, 8
''')
    else: A('s_mov_b32 s21, 0')
    A(f'''
s_mov_b64 exec, 1
s_waitcnt lgkmcnt(0)
s_and_b32 s20, s20, 31
s_add_u32 s20, s20, 1
s_add_u32 s20, s20, s21
v_mov_b32 v5, s20
''')
elif opt['dyn'] == 3:
    lds_wait_ge(CNT + 8, 8, 2)
    A(f'''
s_mul_i32 s68, s6, 768
s_add_u32 s68, s68, {TK}
v_mov_b32 v5, 1
s_mov_b64 exec, 1
buffer_atomic_add v5, off, s[24:27], s68 sc0 sc1
s_and_b32 s68, s6, 3
s_add_u32 s68, s68, 1
s_waitcnt vmcnt(0)
v_and_b32 v5, 7, v5
v_lshl_add_u32 v5, v5, 2, s68
''')
else:
    A('s_add_u32 s68, s79, 1\nv_mov_b32 v5, s68\ns_mov_b64 exec, 1')
A(f'''
ds_write_b32 v1, v5 offset:{ROLE}
s_mov_b64 exec, -1
''')
mark(4)
flush([(1, 1), (2, 2), (4, 6)])
A('s_branch L_role')

A('L_misc2:')
if opt['abl'] & 1536 == 512: A('s_endpgm')
A('s_getreg_b32 s64, hwreg(HW_REG_XCC_ID)')
ws_srds()
NP = opt['nprobe']
if opt['near']:
    A(f'''
v_and_b32 v1, 31, v0
v_lshlrev_b32 v1, 4, v1
v_lshrrev_b32 v2, 5, v0
v_lshl_add_u32 v1, v2, 13, v1
s_lshl_b32 s66, s{79 if opt['shp'] else 2}, {11 if opt['shp'] else 9}
s_and_b32 s68, s66, 0xffffe000
s_add_u32 s66, s66, s68
s_add_u32 s66, s66, {PR}
v_mov_b32 v6, 0
v_mov_b32 v7, 0
''')
    A(f"s_cmp_ge_u32 s79, {opt['npw']}\ns_cbranch_scc1 L_nopr0")
    if opt['shp']: A('s_cmp_lg_u32 s4, 0\ns_cbranch_scc1 L_nopr0')
    setexec(((1 << (8 * NP)) - 1) * 0x100000001)
    A('buffer_store_dwordx4 v[4:7], v1, s[24:27], s66 offen sc1')
    setexec(ALL)
    A('L_nopr0:')
mktag()
sleep(opt['idpre'])
A(f'''
{'s_mov_b32 s46, 1' + chr(10) + 's_branch L_idset' if opt['abl'] & 1 else ''}
s_and_b32 s64, s64, 15
v_mov_b32 v4, s30
v_mov_b32 v5, s31
v_mov_b32 v6, s64
v_mov_b32 v7, s64
s_lshl_b32 s68, s4, 9
s_add_u32 s68, s68, {ID}
s_lshl_b32 s69, s79, 4
v_mov_b32 v1, s69
s_mov_b64 exec, 1
buffer_store_dwordx4 v[4:7], v1, s[32:35], s68 offen
s_mov_b64 exec, -1
v_and_b32 v1, 31, v0
v_lshlrev_b32 v1, 4, v1
s_mov_b32 s70, {opt['idtries']}
s_mov_b32 s46, 2
L_idpoll:
s_sleep {opt['idsleep']}
buffer_load_dwordx4 v[8:11], v1, s[32:35], s68 offen{LF}
s_waitcnt vmcnt(0)
v_cmp_ne_u64 vcc, s[30:31], v[8:9]
s_nop 0
s_cbranch_vccz L_iddone
s_sub_u32 s70, s70, 1
s_cbranch_scc0 L_idpoll
s_branch L_idset
L_iddone:
v_cmp_ne_u32 vcc, s64, v10
s_nop 0
s_cbranch_vccnz L_idset
s_mov_b32 s46, {2 if opt['forceslow'] else 1}
L_idset:
v_mov_b32 v1, 0
v_mov_b32 v4, s46
ds_write_b32 v1, v4 offset:{INFO}
''')
mark(1)
if opt['near']:
    A(f's_mov_b32 s60, -1\ns_mov_b32 s61, -1\ns_lshl_b32 s67, s4, 9\ns_add_u32 s67, s67, {PV}')
    A(f"s_cmp_ge_u32 s79, {opt['npw']}\ns_cbranch_scc1 L_nopr1\ns_waitcnt lgkmcnt(0)")
    for i in range(NP):
        for c in range(2):
            A(f'''
s_add_u32 s69, s66, {128*i + 8192*c}
s_memtime s[62:63]
s_waitcnt lgkmcnt(0)
s_load_dword s65, s[58:59], s69
s_waitcnt lgkmcnt(0)
s_memtime s[20:21]
s_waitcnt lgkmcnt(0)
s_sub_u32 s62, s20, s62
s_min_u32 s{60+c}, s{60+c}, s62
''')
    if opt['share']:
        A(f'''
s_lshl_b32 s69, s79, 4
v_mov_b32 v1, s69
v_mov_b32 v4, s60
v_mov_b32 v5, s61
v_mov_b32 v6, s30
v_mov_b32 v7, s31
s_mov_b64 exec, 1
buffer_store_dwordx4 v[4:7], v1, s[32:35], s67 offen
s_mov_b64 exec, -1
''')
    A('L_nopr1:')
else:
    A('s_mov_b32 s47, 0')
mark(2)
if opt['abl'] & 1024: A('s_endpgm')
A('v_and_b32 v1, 7, v0\nv_lshlrev_b32 v1, 4, v1')
def body():
    A(f'ds_read_b128 v[4:7], v1 offset:{SL}')
    A('s_waitcnt lgkmcnt(0)')
    A('v_cmp_eq_u32 vcc, 0, v7')
spin(body, 4)
def combine_stats():
    A(f's_mov_b32 s68, {f32(LOG2E)}')
    A('v_mov_b32 v2, v4')
    allreduce8('v_max_f32', [2])
    A('v_sub_f32 v4, v4, v2\nv_mul_f32 v4, s68, v4\nv_exp_f32 v4, v4\nv_mul_f32 v3, v4, v5')
    allreduce8('v_add_f32', [3])
combine_stats()
A(f'''
s_lshl_b32 s68, s71, 4
s_add_u32 s68, s68, {ST}
v_mov_b32 v4, s30
v_mov_b32 v5, s31
''')
publish([(1, 'buffer_store_dwordx4 v[2:5], v1, @, s68 offen')])
if opt['near']:
    if opt['share']:
        A(f'''
s_cmp_lg_u32 s46, 1
s_cbranch_scc1 L_noshare
v_and_b32 v8, {7 if opt['npw'] <= 8 else 31}, v0
v_lshlrev_b32 v8, 4, v8
buffer_load_dwordx4 v[4:7], v8, s[32:35], s67 offen{LF}
s_waitcnt vmcnt(0)
v_cmp_eq_u64 vcc, s[30:31], v[6:7]
v_cndmask_b32 v4, -1, v4, vcc
v_cndmask_b32 v5, -1, v5, vcc
''')
        allreduce16('v_min_u32', [4, 5])
        swapreduce(S16, 'v_min_u32', [4, 5], [6, 7])
        A('''
v_readfirstlane_b32 s62, v4
v_readfirstlane_b32 s63, v5
s_min_u32 s60, s60, s62
s_min_u32 s61, s61, s63
L_noshare:
''')
    A('s_cmp_lt_u32 s61, s60\ns_cselect_b32 s47, 8192, 0')
    if opt['fixnear'] >= 0: A(f"s_mov_b32 s47, {8192*opt['fixnear']}")
    if STAMPS: A('s_mov_b32 s90, s60\ns_mov_b32 s91, s61')
A(f'v_mov_b32 v8, 0\nv_mov_b32 v4, s47\nds_write_b32 v8, v4 offset:{NEAR}')
A(f's_lshl_b32 s74, s6, 7\ns_add_u32 s74, s74, {ST}')
def body():
    sleep(opt['stsleep'])
    A(f'buffer_load_dwordx4 v[4:7], v1, s[16:19], s74 offen{LF}')
    A('s_waitcnt vmcnt(0)')
    tagcheck([6])
spin2(body, 0, local_only=True)
mark(3)
combine_stats()
A(f'''
v_rcp_f32 v3, v3
v_mov_b32 v4, 1
v_mov_b32 v5, 1
v_mov_b32 v1, 0
ds_write_b128 v1, v[2:5] offset:{GS}
''')
flush([(1, 3), (2, 4), (3, 5), (5, 7)])
if opt['abl'] & 16: A('s_endpgm')
if opt['nA'] or (opt['nB'] and opt['hintB'] == 1):
    lds_wait_ge(CNT + 4, 8, 1)
    A(f'''
s_lshl_b32 s68, s4, 9
s_lshl4_add_u32 s68, s79, s68
s_add_u32 s68, s68, {DN1}
v_mov_b32 v6, s30
v_mov_b32 v7, s31
s_mov_b64 exec, 1
buffer_store_dwordx4 v[4:7], v1, s[32:35], s68 offen
s_mov_b64 exec, -1
''')

A('L_role:')
get_role(opt['rsleep'])
A('s_cmp_lt_u32 s5, 20\ns_cbranch_scc0 ' + ('L_tiles' if opt['tearly'] else 'L_end'))
BW = 64
XM = 52
def tr_addr(dst, tmp):
    A(f'''
v_lshrrev_b32 v{dst}, 4, v0
v_mul_u32_u24 v{dst}, {BK}, v{dst}
v_bfe_u32 v{tmp}, v0, 2, 2
v_lshl_add_u32 v{dst}, v{tmp}, 7, v{dst}
v_and_b32 v{tmp}, 3, v0
v_lshl_add_u32 v{dst}, v{tmp}, 3, v{dst}
''')
srd(12, 44, 6144 * 640 * 2)
tr_addr(24, 25)
A(f'''
s_cmp_ge_u32 s5, 10
s_cselect_b32 s76, 1, 0
s_mul_i32 s77, s76, 10
s_sub_u32 s77, s5, s77
s_lshl1_add_u32 s78, s4, s76
s_lshl2_add_u32 s78, s78, s73
v_lshrrev_b32 v2, 3, v0
v_mul_u32_u24 v26, 1280, v2
v_and_b32 v3, 7, v0
{'v_and_b32 v4, 2, v2' if opt['swz'] else ''}
{'v_lshlrev_b32 v4, 1, v4' if opt['swz'] == 2 else ''}
{'v_xor_b32 v3, v3, v4' if opt['swz'] else ''}
v_lshl_add_u32 v26, v3, 4, v26
v_xor_b32 v56, {64 if opt['swz'] == 1 else 0}, v26
s_mul_i32 s60, s78, {96*1280}
s_lshl_b32 s69, s77, 7
s_add_u32 s60, s60, s69
s_mul_i32 s61, s73, {12 * BK}
v_add_u32 v24, s61, v24
{('v_mov_b32 v4, 0', 'v_bfe_u32 v4, v0, 3, 2', 'v_bfe_u32 v4, v0, 3, 1' + chr(10) + 'v_lshlrev_b32 v4, 1, v4')[opt['swz']]}
v_xor_b32 v5, 1, v4
v_lshl_add_u32 v25, v5, 5, v24
v_xor_b32 v5, 2, v4
v_lshl_add_u32 v30, v5, 5, v24
v_xor_b32 v5, 3, v4
v_lshl_add_u32 v31, v5, 5, v24
v_lshl_add_u32 v24, v4, 5, v24
s_add_u32 s61, s61, {WL}
v_lshlrev_b32 v60, 4, v0
s_mul_i32 s74, s78, 3072
s_add_u32 s74, s74, {OP}
v_lshlrev_b32 v62, 2, v0
s_lshl_b32 s68, s73, 8
v_add_u32 v61, s68, v62
s_mul_i32 s75, s4, 5120
s_lshl_b32 s69, s5, 8
s_add_u32 s75, s75, s69
s_and_b32 s69, s75, 0xffffe000
s_add_u32 s75, s75, s69
s_add_u32 s75, s75, {YP}
s_xor_b32 s{62 + (opt['ord'] & 1)}, s47, 8192
s_add_u32 s{62 + (opt['ord'] & 1)}, s{62 + (opt['ord'] & 1)}, s75
s_add_u32 s{63 - (opt['ord'] & 1)}, s47, s75
s_mov_b32 s66, {'0xaaaaaaaa' if opt['opl'] else '0xff00ff00'}
s_mov_b32 s67, {'0xaaaaaaaa' if opt['opl'] else '0xff00ff00'}
v_mov_b32 v50, s30
v_mov_b32 v51, s31
v_mov_b32 v28, 0
v_mov_b32 v29, 1
v_cndmask_b32 v{XM}, 0, v50, s[66:67]
v_cndmask_b32 v{XM+1}, 0, v51, s[66:67]
v_cndmask_b32 v{XM+2}, v50, 0, s[66:67]
v_cndmask_b32 v{XM+3}, v51, 0, s[66:67]
''')
AO = 8
RF = ' sc1' if opt['fnt'] else LF
def op_loads(srdn, fl=LF, AO=8):
    for t in range(3):
        A(f'buffer_load_dwordx4 v[{AO+4*t}:{AO+4*t+3}], v60, s[{srdn}:{srdn+3}], s74 offen offset:{1024*t}{fl}')
def wo_one(n):
    A('s_mov_b32 m0, s61')
    if not opt['abl'] & 64: A(f'buffer_load_dwordx4 v{(26, 56)[n & 1]}, s[12:15], s60 offen nt lds')
    if n < 11:
        A(f's_add_u32 s60, s60, {8*1280}')
        A(f's_add_u32 s61, s61, {BK}')
if opt['prer'] == 2: op_loads(32)
for n in range(opt['wpre']):
    if n >= opt['wpw']: A(f"s_waitcnt vmcnt({opt['wpw']-1})")
    wo_one(n)
lds_wait_ge(CNT + 4, 8, 1)
hint_wait(DN1, opt['nA'])
mark(3)
if opt['prer'] == 1: op_loads(32)
DW = opt['DWO'] if not opt['nb1'] else 12
def wo_issue(DW, nb1):
    for n in range(opt['wpre'], 12):
        if n >= DW: A(f's_waitcnt vmcnt({DW-1})')
        if nb1 and n == nb1: lds_wait_ge(INFO + 4, 1, 1)
        wo_one(n)
if opt['mA']:
    A(f"s_and_b32 s68, s28, 0xff\ns_cmp_ge_u32 s68, {opt['GA']}\ns_cbranch_scc1 L_wofast")
    wo_issue(opt['gA'], 0)
    A('s_branch L_wodone\nL_wofast:')
wo_issue(DW, opt['nb1'])
A('L_wodone:')
if opt['oppipe']:
    A(f's_cmp_eq_u32 s46, 1\ns_cselect_b32 s16, s32, s24\ns_cselect_b32 s17, s33, s25\ns_mov_b32 s18, {WSN}\ns_mov_b32 s19, 0x20000\ns_mov_b32 s70, {SPIN}')
    assert opt['ope'] >= 0
E = 0
for t in range(3):
    if t == 2 and opt['ope'] >= 0:
        A(f"s_waitcnt vmcnt({opt['ope']})")
        if opt['opdiag']: mark(1)
        op_loads(32, RF); E = 3
    if opt['hist']:
        for m in range(11 - 4 * t, 7 - 4 * t, -1):
            if m < DW: A(f's_waitcnt vmcnt({m + E})'); hstamp(21 - m)
    A(f's_waitcnt vmcnt({8 - 4 * t + E})')
    for u in range(4):
        r = BW + 4 * (4 * t + u)
        A(f'ds_read_b64_tr_b16 v[{r}:{r+1}], v{(24, 25, 30, 31)[u]} offset:{WL + 4*BK*t}')
        A(f'ds_read_b64_tr_b16 v[{r+2}:{r+3}], v{(24, 25, 30, 31)[u]} offset:{WL + 4*BK*t + 512}')
mark(4)
if not E:
    lds_wait_ge(CNT, 8, 1)
    if opt['opdiag']: mark(1)
    op_loads(32, RF if opt['prer'] else LF)
else: A('s_waitcnt lgkmcnt(8)' if not STAMPS else 's_waitcnt lgkmcnt(0)')
def op_use(AO, later):
    for t in range(3):
        A(f's_waitcnt vmcnt({2-t+later})' + (' lgkmcnt(0)' if t == 2 else ''))
        q = AO + 4 * t
        for e in range(4): A(f'v_xor_b32 v{q+e}, v{q+e}, v{XM+e}')
        for u in range(4):
            r = BW + 4 * (4 * t + u)
            c = '0' if t == 0 else f'v[{32+4*u}:{35+4*u}]'
            A(f'v_mfma_f32_16x16x32_bf16 v[{32+4*u}:{35+4*u}], v[{q}:{q+3}], v[{r}:{r+3}], {c}')
        if t == 0:
            A(f'v_or_b32 v2, v{q}, v{q+1}\nv_or_b32 v3, v{q+2}, v{q+3}')
        else:
            A(f'v_or3_b32 v2, v2, v{q}, v{q+1}\nv_or3_b32 v3, v3, v{q+2}, v{q+3}')
    A('v_cndmask_b32 v2, v3, v2, s[66:67]')
    A('v_cmp_ne_u32 vcc, 0, v2')
if not opt['oppipe']:
    def body():
        op_loads(16, RF)
        A('L_opw0:')
        op_use(8, 0)
    spin2(body, 0, local_only=True, enter='L_opw0')
elif not opt['opchk']:
    A('L_opp:')
    op_loads(16, RF, 124)
    op_use(8, 3)
    A('s_nop 0\ns_cbranch_vccz L_opd')
    sleep(opt['opsl'])
    op_loads(32, RF, 8)
    op_use(124, 3)
    A('s_nop 0\ns_cbranch_vccz L_opd')
    sleep(opt['opsl'])
    A('s_sub_u32 s70, s70, 1\ns_cbranch_scc0 L_opp')
    trap(201)
    A('L_opd:')
else:
    def op_check(AO):
        for t in range(3):
            A(f's_waitcnt vmcnt({5-t})')
            q = AO + 4 * t
            for e in range(4): A(f'v_xor_b32 v{q+e}, v{q+e}, v{XM+e}')
            if t == 0: A(f'v_or_b32 v2, v{q}, v{q+1}\nv_or_b32 v3, v{q+2}, v{q+3}')
            else: A(f'v_or3_b32 v2, v2, v{q}, v{q+1}\nv_or3_b32 v3, v3, v{q+2}, v{q+3}')
        A('v_cndmask_b32 v2, v3, v2, s[66:67]\nv_cmp_ne_u32 vcc, 0, v2')
    def op_mfma(AO):
        A('s_waitcnt lgkmcnt(0)')
        for t in range(3):
            for u in range(4):
                r = BW + 4 * (4 * t + u); q = AO + 4 * t
                c = '0' if t == 0 else f'v[{32+4*u}:{35+4*u}]'
                A(f'v_mfma_f32_16x16x32_bf16 v[{32+4*u}:{35+4*u}], v[{q}:{q+3}], v[{r}:{r+3}], {c}')
    A('L_opp:')
    op_loads(16, RF, 124)
    op_check(8)
    A('s_nop 0\ns_cbranch_vccz L_opd0')
    op_loads(32, RF, 8)
    op_check(124)
    A('s_nop 0\ns_cbranch_vccz L_opd1\ns_sub_u32 s70, s70, 1\ns_cbranch_scc0 L_opp\nL_opd1:')
    op_mfma(124)
    A('s_branch L_opd\nL_opd0:')
    op_mfma(8)
    A('L_opd:')
mark(5)
for u in range(4):
    A(f'v_add_f32 v{4+u}, v{32+4*u}, v{33+4*u}\nv_add_f32 v{20+u}, v{34+4*u}, v{35+4*u}')
for u in range(4): A(f'v_add_f32 v{4+u}, v{4+u}, v{20+u}')
A(f'''
{S32} v4, v6
{S32} v5, v7
v_add_f32 v4, v4, v6
v_add_f32 v5, v5, v7
{S16} v4, v5
v_add_f32 v4, v4, v5
ds_write_b32 v61, v4 offset:{RL}
''')
if opt['spec'] & 2:
    A(f'''
s_mov_b64 exec, 1
ds_add_rtn_u32 v27, v28, v29 offset:{CNT + 12}
s_mov_b64 exec, -1
ds_read2st64_b32 v[4:5], v62 offset0:{RL // 256} offset1:{RL // 256 + 1}
ds_read2st64_b32 v[6:7], v62 offset0:{RL // 256 + 2} offset1:{RL // 256 + 3}
s_waitcnt lgkmcnt(2)
v_readfirstlane_b32 s68, v27
s_cmp_lg_u32 s68, 3
s_cbranch_scc1 {'L_opdiag' if opt['opdiag'] else 'L_end'}
s_waitcnt lgkmcnt(0)
''')
else:
    A(f'''
s_cmp_lg_u32 s3, 8
s_waitcnt lgkmcnt(0)
s_barrier
s_cbranch_scc1 {'L_opdiag' if opt['opdiag'] else 'L_end'}
ds_read_b32 v5, v62 offset:{RL+256}
ds_read_b32 v6, v62 offset:{RL+512}
ds_read_b32 v7, v62 offset:{RL+768}
s_waitcnt lgkmcnt(0)
''')
A(f'''
v_add_f32 v4, v4, v5
v_add_f32 v6, v6, v7
v_add_f32 v48, v4, v6
v_mov_b32_dpp v49, v48 quad_perm:[1,0,3,2] {DPPM}
v_cvt_pk_bf16_f32 v48, v48, v49
v_mov_b32_dpp v49, v48 quad_perm:[2,3,0,1] {DPPM}
''')
setexec(0x1111111111111111)
if opt['near']: A('buffer_store_dwordx4 v[48:51], v62, s[24:27], s62 offen sc1')
A('buffer_store_dwordx4 v[48:51], v62, s[24:27], s63 offen sc1')
mark(6)
A('s_barrier')
if opt['wbl']:
    A(f"s_cmp_lg_u32 s5, {opt['wbl']}\ns_cbranch_scc1 L_nowb\nbuffer_wbl2 sc1\nL_nowb:")
if STAMPS:
    A('s_mov_b32 s94, s5\ns_mov_b32 s95, 0')
flush([(3, 11), (4, 12), (5, 13), (6, 14), (7, 15)])
if opt['opdiag']:
    A(f'''
L_opdiag:
s_lshl_b32 s98, s2, 8
s_lshl_b32 s97, s73, 5
s_add_u32 s98, s98, s97
s_add_u32 s98, s98, {HB}
s_sub_u32 s97, {SPIN}, s70
s_waitcnt lgkmcnt(0)
v_mov_b32 v4, s86
v_mov_b32 v5, s88
v_mov_b32 v6, s90
v_mov_b32 v7, s97
v_mov_b32 v8, s82
v_mov_b32 v9, s5
v_mov_b32 v1, 0
s_mov_b64 exec, 1
buffer_store_dwordx4 v[4:7], v1, s[24:27], s98 offen
buffer_store_dwordx2 v[8:9], v1, s[24:27], s98 offen offset:16
''')
A('s_endpgm')

if opt['tearly']:
    A('L_tiles:')
    srd(12, 48, 640 * 1536 * 2); srd(16, 50, 640 * 1536 * 2)
    A(f'''
s_sub_u32 s75, s5, 20
s_lshr_b32 s78, s75, 2
s_and_b32 s75, s75, 3
s_mul_i32 s72, s75, {160*3072}
s_mul_i32 s68, s73, {8*3072}
s_add_u32 s72, s72, s68
s_mul_i32 s68, s4, 3
s_add_u32 s78, s78, s68
s_lshl_b32 s68, s78, 7
s_add_u32 s72, s72, s68
s_mul_i32 s61, s73, {BK}
s_add_u32 s61, s61, {WL}
v_lshrrev_b32 v2, 3, v0
v_and_b32 v3, 7, v0
{'v_and_b32 v4, 2, v2' + chr(10) + 'v_xor_b32 v3, v3, v4' + chr(10) + 's_and_b32 s68, s73, 1' + chr(10) + 's_lshl_b32 s68, s68, 2' + chr(10) + 'v_xor_b32 v3, s68, v3' if opt['swz'] == 1 else ''}
{'v_and_b32 v4, 2, v2' + chr(10) + 'v_lshlrev_b32 v4, 1, v4' + chr(10) + 'v_xor_b32 v3, v3, v4' if opt['swz'] == 2 else ''}
v_mul_u32_u24 v62, 3072, v2
v_lshl_add_u32 v62, v3, 4, v62
''')
    hint_wait(DN1 if opt['hintB'] == 1 else DN2, opt['nB'])
    if opt['tB'] == 0: lds_wait_ge(CNT + 4, 8, 1)
    elif opt['tB'] == 9: lds_wait_ge(INFO + 4, 1, 1)
    else: lds_wait_ge(CNT, opt['tB'], 1)
    mark(3)
    def tile_issue(DW, nb1):
        n = 0
        for t in range(5):
            for m in range(2):
                if n >= DW: A(f"s_waitcnt vmcnt({DW-1})")
                if nb1 and n == nb1: lds_wait_ge(INFO + 4, 1, 1)
                A(f's_add_u32 m0, s61, {8*BK*t + 4*BK*m}')
                if not opt['abl'] & 128: A(f'buffer_load_dwordx4 v62, s[{12+4*m}:{15+4*m}], s72 offen nt lds')
                n += 1
            if t < 4: A(f's_add_u32 s72, s72, {32*3072}')
    if opt['mB']:
        A(f"s_lshr_b32 s68, s28, 8\ns_cmp_ge_u32 s68, {opt['GB']}\ns_cbranch_scc1 L_tfast")
        lds_wait_ge(INFO + 4, 1, 1)
        tile_issue(opt['gB'], 0)
        A('s_branch L_tdone\nL_tfast:')
    tile_issue(opt['DWB'], opt['nb1B'])
    A('L_tdone:')
    if opt['hist']:
        for m in reversed(range(opt['DWB'])):
            A(f's_waitcnt vmcnt({m})'); hstamp(39 - m)
    A('s_waitcnt vmcnt(0)')
    mark(4)
    A('s_barrier')
    if STAMPS:
        A('s_cmp_lg_u32 s3, 8\ns_cbranch_scc1 L_end')
        flush([(3, 18), (4, 19)])
    A('s_endpgm')

assert opt['tearly']
B1R = 64
AR = 24
HRDY = CNT + 12
def yp_loads(fl='', b=104):
    A(f'buffer_load_dwordx4 v[{b}:{b+3}], v53, s[24:27], s60 offen sc1' + fl)
    A(f'buffer_load_dwordx4 v[{b+4}:{b+7}], v59, s[24:27], s60 offen sc1' + fl)
A('L_f1:')
tr_addr(58, 5)
A(f"""
s_sub_u32 s75, s5, 20
s_lshr_b32 s78, s75, 2
s_and_b32 s75, s75, 3
s_mul_i32 s74, s75, 5
s_add_u32 s74, s74, s3
s_mul_i32 s68, s4, 3
s_add_u32 s78, s78, s68
{('v_mov_b32 v4, 0', 'v_bfe_u32 v4, v0, 3, 2', 'v_bfe_u32 v4, v0, 3, 1' + chr(10) + 'v_lshlrev_b32 v4, 1, v4')[opt['swz']]}
v_xor_b32 v4, s3, v4
v_lshl_add_u32 v58, v4, 5, v58
v_lshrrev_b32 v3, 4, v0
v_and_b32 v2, 7, v0
v_lshl_add_u32 v50, v2, 2, v3
v_lshlrev_b32 v50, 1, v50
s_lshl_b32 s68, s74, 6
v_add_u32 v61, s68, v50
s_lshl_b32 s68, s3, 6
v_add_u32 v51, s68, v50
v_lshlrev_b32 v52, 4, v3
v_lshlrev_b32 v54, 3, v0
v_lshrrev_b32 v53, 3, v0
v_mul_u32_u24 v53, 2560, v53
v_lshl_add_u32 v53, v2, 4, v53
s_lshl_b32 s68, s74, 7
v_add_u32 v53, s68, v53
v_add_u32 v59, {8*2560}, v53
s_add_u32 s60, s47, {YP}
v_lshlrev_b32 v55, 4, v0
v_mov_b32 v57, 0
s_lshl2_add_u32 s76, s78, s3
s_lshl2_add_u32 s76, s76, s75
s_lshl_b32 s76, s76, 8
s_add_u32 s76, s76, {PA}
s_lshl3_add_u32 s68, s78, s75
s_lshl_b32 s68, s68, 4
s_add_u32 s68, s68, {PS}
s_lshl2_add_u32 s69, s4, s75
s_mul_i32 s69, s69, 640
s_add_u32 s69, s69, {PH}
v_add_u32 v63, s69, v55
v_mov_b32 v4, s68
s_mov_b32 s8, 0
s_mov_b32 s9, 0x100
v_cndmask_b32 v63, v63, v4, s[8:9]
s_cmp_lt_u32 s5, 24
s_cselect_b32 s62, -1, 0
s_cselect_b32 s63, 0xff, 0
s_or_b32 s63, s63, 0x100
v_mov_b32 v14, s30
v_mov_b32 v15, s31
v_mov_b32 v44, 0x3f803f80
v_mov_b32 v45, 0x3f803f80
v_mov_b32 v46, 0x3f803f80
v_mov_b32 v47, 0x3f803f80
v_mov_b32 v8, 0
v_mov_b32 v9, 0
v_mov_b32 v10, 0
v_mov_b32 v11, 0
v_mov_b32 v112, 0x3f80
v_mov_b32 v113, 0x3f800000
v_mov_b32 v16, 0
v_mov_b32 v20, 0
""")
place(53, 4); place(59, 4)
A('global_load_ushort v56, v61, s[36:37]')
A('s_setprio 3\ns_barrier')
yp_loads()
mark(4)
A('s_cmp_eq_u32 s3, 4\ns_cbranch_scc1 L_f1nob')
for t in range(5):
    for m in range(2):
        r = B1R + 4 * (2 * t + m)
        A(f'ds_read_b64_tr_b16 v[{r}:{r+1}], v58 offset:{WL + 8*BK*t + 4*BK*m}')
        A(f'ds_read_b64_tr_b16 v[{r+2}:{r+3}], v58 offset:{WL + 8*BK*t + 4*BK*m + 512}')
A('s_waitcnt lgkmcnt(0)')
for t in range(5):
    for m in range(2):
        r = B1R + 4 * (2 * t + m); d = (116, 124)[m]
        A(f"v_mfma_f32_16x16x32_bf16 v[{d}:{d+3}], v[44:47], v[{r}:{r+3}], {'0' if t == 0 else 'v[%d:%d]' % (d, d+3)}")
A('L_f1nob:')
A('s_waitcnt vmcnt(2)\nv_lshlrev_b32 v56, 16, v56')
A(f's_mov_b32 s70, {SPIN}')
A('s_branch L_ypw0')
A('L_yppoll:')
yp_loads()
A('L_ypw0:')
A('s_waitcnt vmcnt(0)')
tagcheck([106, 110])
A('s_nop 0\ns_cbranch_vccz L_ypok')
sleep(opt['ysl'])
A('s_sub_u32 s70, s70, 1\ns_cbranch_scc0 L_yppoll')
trap(202)
A('L_ypok:')
mark(5)
for n in (104, 108):
    A(f'v_dot2c_f32_bf16 v8, v{n}, v112\nv_dot2c_f32_bf16 v10, v{n+1}, v112\nv_dot2c_f32_bf16 v9, v{n}, v113\nv_dot2c_f32_bf16 v11, v{n+1}, v113')
A(f"""
{S32} v8, v10
{S32} v9, v11
v_add_f32 v8, v8, v10
v_add_f32 v9, v9, v11
{S16} v8, v9
v_add_f32 v8, v8, v9
v_add_f32_dpp v8, v8, v8 row_ror:8 {DPPM}
v_cvt_pk_bf16_f32 v8, v57, v8
v_add_f32 v8, v8, v56
v_cvt_pk_bf16_f32 v8, v8, v8
ds_write_b16 v51, v8 offset:{HL}
s_cmp_eq_u32 s3, 4
s_waitcnt lgkmcnt(0)
s_barrier
""")
if opt['stv']: A('s_cbranch_scc1 L_f1st')
for t in range(5): A(f'ds_read_b128 v[{AR+4*t}:{AR+4*t+3}], v52 offset:{HL + 64*t}')
if not opt['stv']: A('s_cbranch_scc1 L_f1st')
for t in range(5):
    A(f's_waitcnt lgkmcnt({4-t})')
    for m in range(2):
        r = B1R + 4 * (2 * t + m); d = 16 + 4 * m
        A(f"v_mfma_f32_16x16x32_bf16 v[{d}:{d+3}], v[{AR+4*t}:{AR+4*t+3}], v[{r}:{r+3}], {'0' if t == 0 else 'v[%d:%d]' % (d, d+3)}")
A('v_cvt_pk_bf16_f32 v12, v16, v116\nv_cvt_pk_bf16_f32 v13, v20, v124')
publish([(0xffff, 'buffer_store_dwordx4 v[12:15], v55, @, s76 offen')])
mark(6)
flush([(6, 27), (5, 11)], True)
A('s_endpgm')
A('L_f1st:')
if opt['stv']:
    A(f"""s_mov_b32 exec_hi, 0xff
ds_read_b64 v[12:13], v54 offset:{HL}
s_waitcnt lgkmcnt(0)
v_dot2c_f32_bf16 v16, v12, v44
v_dot2c_f32_bf16 v20, v12, v12
v_dot2c_f32_bf16 v16, v13, v44
v_dot2c_f32_bf16 v20, v13, v13
s_mov_b32 exec_hi, -1
{S32} v16, v20
v_add_f32 v16, v16, v20""")
    allreduce16('v_add_f32', [16])
    swapreduce(S16, 'v_add_f32', [16], [20])
    A(f'v_mov_b32 v20, v16\n{S32} v16, v20')
else:
    A(f'ds_read_b64 v[12:13], v54 offset:{HL}')
    for t in range(5):
        A(f's_waitcnt lgkmcnt({5-t})')
        a_ = f'v[{AR+4*t}:{AR+4*t+3}]'
        A(f"v_mfma_f32_16x16x32_bf16 v[16:19], {a_}, v[44:47], {'0' if t == 0 else 'v[16:19]'}")
        A(f"v_mfma_f32_16x16x32_bf16 v[20:23], {a_}, {a_}, {'0' if t == 0 else 'v[20:23]'}")
A('s_waitcnt lgkmcnt(0)\nv_cndmask_b32 v12, v12, v16, s[8:9]\nv_cndmask_b32 v13, v13, v20, s[8:9]')
publish([('s[62:63]', 'buffer_store_dwordx4 v[12:15], v63, @, 0 offen')])
mark(6)
flush([(6, 27), (5, 11)], True)
flush([(4, 17)])
A('s_endpgm')

A('L_ffn:')
A("""
v_mov_b32 v57, 0
s_mul_i32 s72, s4, 12
s_add_u32 s72, s72, s5
s_cmp_lt_u32 s3, 5
s_cbranch_scc1 L_f2
s_cmp_eq_u32 s3, 5
s_cbranch_scc1 L_hid
s_cmp_ge_u32 s5, 10
s_cbranch_scc1 L_end
""")
A(f"""
s_mul_i32 s72, s4, 10
s_add_u32 s72, s72, s5
v_lshrrev_b32 v2, 1, v0
v_mul_u32_u24 v2, 2560, v2
v_and_b32 v3, 1, v0
v_lshl_add_u32 v96, v3, 4, v2
s_lshl_b32 s68, s72, 5
v_add_u32 v96, s68, v96
v_add_u32 v100, {32*2560}, v96
v_add_u32 v101, {64*2560}, v96
s_add_u32 s10, s47, {FP}
v_lshrrev_b32 v4, 4, v0
v_lshl_add_u32 v97, v3, 2, v4
v_lshlrev_b32 v97, 1, v97
v_lshlrev_b32 v99, 4, v3
v_and_b32 v98, 16, v0
s_mul_i32 s13, s4, 2560
s_lshl_b32 s68, s72, 5
s_add_u32 s13, s13, s68
s_add_u32 s13, s13, {PH}
s_lshl_b32 s14, s72, 4
s_mov_b32 s69, 0xffff0000
""")
place(96, 4); place(100, 4); place(101, 4)
FS = 16
srd(64, 54, 1280)
A('v_cmp_lt_u32 s[62:63], 31, v0')
A('s_setprio 3\ns_barrier' + ('' if opt['spec'] & 2 else '\ns_barrier'))
if opt['hwarm']: A('buffer_load_dwordx4 v[12:15], v99, s[32:35], s13 offen nt')
A('v_mov_b32 v8, 0\nv_mov_b32 v9, 0\nv_mov_b32 v10, 0\nv_mov_b32 v11, 0\nv_mov_b32 v112, 0x3f80\nv_mov_b32 v113, 0x3f800000')
A('s_barrier')
if opt['fack']: A('s_barrier')
sleep(opt['fsleep'])
def body():
    A(f'buffer_load_dwordx4 v[4:7], v99, s[16:19], s13 offen{RF}')
    for n, a in enumerate((96, 100, 101)):
        r = FS + 4 * n
        A(f'buffer_load_dwordx4 v[{r}:{r+3}], v{a}, s[24:27], s10 offen sc1')
    A('s_waitcnt vmcnt(0)')
    tagcheck([6, FS + 2, FS + 6, FS + 10])
spin2(body, 0, local_only=True)
mark(5)
for n in range(3):
    r = FS + 4 * n
    A(f'v_dot2c_f32_bf16 v8, v{r}, v112\nv_dot2c_f32_bf16 v10, v{r+1}, v112\nv_dot2c_f32_bf16 v9, v{r}, v113\nv_dot2c_f32_bf16 v11, v{r+1}, v113')
A(f"""
v_cndmask_b32 v58, v4, v5, s[62:63]
v_lshrrev_b32 v58, v98, v58
{S32} v8, v10
{S32} v9, v11
v_add_f32 v8, v8, v10
v_add_f32 v9, v9, v11
v_lshlrev_b32 v58, 16, v58
{S16} v8, v9
v_add_f32 v8, v8, v9
v_add_f32_dpp v8, v8, v8 row_ror:8 {DPPM}
v_add_f32_dpp v8, v8, v8 row_ror:4 {DPPM}
v_add_f32_dpp v8, v8, v8 quad_perm:[2,3,0,1] {DPPM}
v_cvt_pk_bf16_f32 v8, v57, v8
v_add_f32 v8, v8, v58
v_cvt_pk_bf16_f32 v8, v8, v8
""")
setexec(0x0003000300030003)
A(f"""
buffer_store_short v8, v97, s[64:67], s14 offen
s_cmp_lg_u32 s72, 0
s_cbranch_scc1 L_fin_exit
s_mov_b64 exec, 1
v_mov_b32 v4, s30
v_mov_b32 v5, s31
s_mov_b32 s68, {EP}
buffer_store_dwordx2 v[4:5], v57, s[24:27], s68 offen
L_fin_exit:
""")
if opt['dbgx'] >= 0:
    o = 4 * opt['dbgs']
    A(f'''
s_cmp_lg_u32 s72, 0
s_cbranch_scc1 L_end
s_load_dword s84, s[56:57], {8 * opt['dbgx'] + o} glc
s_load_dword s85, s[56:57], {o} glc
s_memrealtime s[82:83]
s_waitcnt lgkmcnt(0)
s_sub_u32 s84, s84, s85
s_add_u32 s84, s84, 300
s_mul_i32 s84, s84, 4
s_min_u32 s84, s84, 5000
L_dbgspin:
s_memrealtime s[86:87]
s_waitcnt lgkmcnt(0)
s_sub_u32 s86, s86, s82
s_cmp_lt_u32 s86, s84
s_cbranch_scc1 L_dbgspin
''')
if opt['dbg']:
    A(f'''
s_cmp_lg_u32 s72, 0
s_cbranch_scc1 L_end
s_memrealtime s[82:83]
s_waitcnt lgkmcnt(0)
s_sub_u32 s84, s82, s80
s_sub_u32 s84, s84, 1500
s_mul_i32 s84, s84, {opt['dbg']}
s_min_u32 s84, s84, 20000
L_dbgspin:
s_memrealtime s[86:87]
s_waitcnt lgkmcnt(0)
s_sub_u32 s86, s86, s82
s_cmp_lt_u32 s86, s84
s_cbranch_scc1 L_dbgspin
''')
if STAMPS:
    A('s_waitcnt vmcnt(0)')
    mark(6)
    A(f's_sub_u32 s94, {SPIN}, s70\ns_mov_b32 s95, 0')
    flush([(5, 25), (6, 26), (7, 8)])
A('s_endpgm')

def pa_loads(srdn, fl, b):
    A(f'buffer_load_dwordx4 v[{b+4}:{b+7}], v61, s[{srdn}:{srdn+3}], s65 offen{fl}')
    A(f'buffer_load_dwordx4 v[{b}:{b+3}], v60, s[{srdn}:{srdn+3}], s64 offen{fl}')
def pa_use(b):
    mark(5)
    A(f"""
v_add_f32_dpp v4, v{b+4}, v{b+4} quad_perm:[1,0,3,2] {DPPM}
v_add_f32_dpp v5, v{b+5}, v{b+5} quad_perm:[1,0,3,2] {DPPM}
v_add_f32_dpp v4, v4, v4 quad_perm:[2,3,0,1] {DPPM}
v_add_f32_dpp v5, v5, v5 quad_perm:[2,3,0,1] {DPPM}
v_mul_f32 v6, {f32(-1.0/640)}, v4
v_mul_f32 v5, {f32(1.0/640)}, v5
v_cvt_pk_bf16_f32 v4, 1.0, v6
v_fma_f32 v5, -v6, v6, v5
v_dot2c_f32_bf16 v8, v{b}, v4
v_dot2c_f32_bf16 v9, v{b+1}, v4
""")
def hid_setup():
    A(f"""
v_lshlrev_b32 v60, 4, v0
v_and_b32 v61, 48, v60
s_lshr_b32 s68, s72, 2
s_lshl_b32 s65, s68, 7
s_add_u32 s65, s65, {PS}
s_lshl_b32 s64, s72, 10
s_add_u32 s64, s64, {PA}
v_mov_b32 v8, 0
v_mov_b32 v9, 0
s_cmp_eq_u32 s46, 1
s_cselect_b32 s16, s32, s24
s_cselect_b32 s17, s33, s25
s_mov_b32 s18, {WSN}
s_mov_b32 s19, 0x20000
s_mov_b32 s70, {SPIN}
""")
def hid_compute():
    A('L_pap:')
    pa_loads(16, RF, 24)
    A('s_waitcnt vmcnt(2)')
    tagcheck([18, 22])
    A('s_nop 0\ns_cbranch_vccz L_pad0')
    sleep(opt['psl'])
    pa_loads(32, RF, 16)
    A('s_waitcnt vmcnt(2)')
    tagcheck([26, 30])
    A('s_nop 0\ns_cbranch_vccz L_pad1')
    sleep(opt['psl'])
    A('s_sub_u32 s70, s70, 1\ns_cbranch_scc0 L_pap')
    trap(203)
    A('L_pad1:')
    pa_use(24)
    A('s_branch L_paj\nL_pad0:')
    pa_use(16)
    A('L_paj:')
    A(f"""
v_max_f32 v5, 0, v5
v_cvt_pk_bf16_f32 v5, v57, v5
v_add_f32 v5, {f32(1e-5)}, v5
{S32} v8, v9
v_cvt_pk_bf16_f32 v5, v57, v5
v_add_f32 v8, v8, v9
v_sqrt_f32 v5, v5
v_mov_b32 v10, v8
v_cvt_pk_bf16_f32 v5, v57, v5
v_rcp_f32 v5, v5
{S16} v8, v10
v_add_f32 v8, v8, v10
v_mul_f32 v8, v8, v5
v_cvt_pk_bf16_f32 v8, v57, v8
v_mul_f32 v12, {f32(-LOG2E)}, v8
v_mov_b32 v9, v8
v_exp_f32 v12, v12
{S32} v8, v9
v_add_f32 v12, 1.0, v12
v_rcp_f32 v12, v12
v_mul_f32 v8, v8, v12
v_cvt_pk_bf16_f32 v8, v57, v8
v_mul_f32 v8, v8, v9
""")
BAR1 = 's_setprio 3\ns_barrier' + ('' if opt['spec'] & 2 else '\ns_barrier')
A('L_hid:')
if opt['hred']: A('s_endpgm')
else:
    A('v_and_b32 v62, 15, v0\nv_lshlrev_b32 v62, 1, v62')
    hid_setup()
    A(BAR1)
    pa_loads(32, LF, 16)
    hid_compute()
    A(f"""
v_cvt_pk_bf16_f32 v8, v8, v8
s_mov_b64 exec, 0xffff
ds_write_b16 v62, v8 offset:{HID}
s_waitcnt lgkmcnt(0)
s_barrier
""")
    flush([(5, 24)])
    A('s_endpgm')

A('L_f2:')
W2R = 64
srd(8, 52, 1536 * 640 * 2)
A(f"""
s_lshl_b32 s68, s3, 8
v_lshlrev_b32 v58, 2, v0
v_add_u32 v58, s68, v58
v_lshlrev_b32 v116, 1, v58
s_mul_i32 s68, s72, 2560
v_add_u32 v116, s68, v116
s_xor_b32 s78, s47, 8192
s_add_u32 s78, s78, {FP}
s_add_u32 s77, s47, {FP}
s_mov_b32 s60, 0x05040100
s_mov_b32 s61, 0x07060302
s_mul_i32 s62, s72, 20480
v_mov_b32 v40, 0
v_mov_b32 v41, 0
v_mov_b32 v46, s30
v_mov_b32 v47, s31
""")
place(116, 4)
if opt['hred']: hid_setup()
A(BAR1)
for k in range(16):
    if not opt['abl'] & 256: A(f'buffer_load_dword v{W2R+k}, v58, s[8:11], s62 offen offset:{1280*(k%3)} nt')
    if k % 3 == 2: A('s_add_u32 s62, s62, 3840')
HX = 0
if opt['hred']: pa_loads(32, LF, 16); HX = 2
if opt['hist']:
    for m in (12, 8, 4, 0):
        A(f's_waitcnt vmcnt({m + HX})'); hstamp(51 - m // 4)
A(f's_waitcnt vmcnt({HX})')
mark(4)
for kp in range(8):
    A(f'v_perm_b32 v{80+kp}, v{W2R+2*kp+1}, v{W2R+2*kp}, s60')
    A(f'v_perm_b32 v{88+kp}, v{W2R+2*kp+1}, v{W2R+2*kp}, s61')
if opt['hred']:
    hid_compute()
    A(f'v_mov_b32_dpp v9, v8 quad_perm:[1,0,3,2] {DPPM}\nv_cvt_pk_bf16_f32 v8, v8, v9')
    for kp in range(8): A(f'v_readlane_b32 s{8+kp}, v8, {2*kp}')
    for kp in range(8):
        A(f'v_dot2c_f32_bf16 v40, s{8+kp}, v{80+kp}')
        A(f'v_dot2c_f32_bf16 v41, s{8+kp}, v{88+kp}')
else:
    A(f"""s_barrier
ds_read_b128 v[8:11], v57 offset:{HID}
ds_read_b128 v[12:15], v57 offset:{HID+16}
s_waitcnt lgkmcnt(1)""")
    for kp in range(8):
        if kp == 4: A('s_waitcnt lgkmcnt(0)')
        A(f'v_dot2c_f32_bf16 v40, v{8+kp}, v{80+kp}')
        A(f'v_dot2c_f32_bf16 v41, v{8+kp}, v{88+kp}')
A(f"""
v_cvt_pk_bf16_f32 v44, v40, v41
v_mov_b32_dpp v45, v44 quad_perm:[1,0,3,2] {DPPM}
""")
setexec(0x5555555555555555)
if opt['near']: A('buffer_store_dwordx4 v[44:47], v116, s[24:27], s78 offen sc1')
A('buffer_store_dwordx4 v[44:47], v116, s[24:27], s77 offen sc1')
mark(6)
if opt['hred'] == 2: A('s_barrier')
if STAMPS:
    flush([(6, 27)], True)
    A('s_cmp_lg_u32 s3, 0\ns_cbranch_scc1 L_end')
    flush([(4, 22)] + ([(5, 24)] if opt['hred'] else []))
A('L_end:')
A('s_endpgm')
for blk in outline: A(blk)
if opt['hist']:
    A.lines = [('s_branch L_hexit' if l.strip() == 's_endpgm' else l) for l in A.lines]
    i = A.lines.index('s_cbranch_scc1 L_end'); A.lines[i] = 's_cbranch_scc1 L_realend'
    A(f'''
L_hexit:
s_mov_b64 exec, -1
s_memrealtime s[96:97]
s_getreg_b32 s64, hwreg(HW_REG_XCC_ID)
s_waitcnt lgkmcnt(0)
{''.join('v_writelane_b32 v159, s%d, %d' % (80 + 2 * i, 54 + i) + chr(10) for i in range(6)) if opt['sdiag'] else ''}
v_writelane_b32 v159, s96, 61
v_writelane_b32 v159, s94, 62
v_writelane_b32 v159, s64, 63
s_mul_i32 s64, s2, 12
s_add_u32 s64, s64, s3
s_lshl_b32 s64, s64, 8
s_add_u32 s64, s64, {HB}
v_lshlrev_b32 v1, 2, v0
s_nop 4
buffer_store_dword v159, v1, s[24:27], s64 offen
L_realend:
s_endpgm
''')
A('L_codeend:')

A.raw('.section .rodata,"a"')
A.raw('.p2align 6')
A.raw(f'.amdhsa_kernel {NAME}_kernel')
A.raw('  .amdhsa_next_free_vgpr 168')
A.raw('  .amdhsa_next_free_sgpr 100')
A.raw('  .amdhsa_accum_offset 168')
A.raw('  .amdhsa_group_segment_fixed_size 0')
A.raw('  .amdhsa_kernarg_size 96')
A.raw('  .amdhsa_user_sgpr_count 2')
A.raw('  .amdhsa_user_sgpr_kernarg_segment_ptr 1')
A.raw('  .amdhsa_system_sgpr_workgroup_id_x 1')
A.raw('.end_amdhsa_kernel')
txt = A.finalize()
FLV = {0: ' nt', 1: '', 2: ' sc1', 3: ' sc0 sc1', 4: ' sc1 nt', 5: ' sc0 sc1 nt', 6: ' sc0', 7: ' sc0 nt'}
if opt['wdef'] or opt['kvfl'] or opt['wqfl']:
    out = []
    for l in txt.split('\n'):
        if opt['wdef'] & 1 and 'v2, s[8:11], s68 offen nt' in l: l = l.replace(' nt', '')
        if opt['wdef'] & 2 and ', s[12:15], s60 offen nt lds' in l: l = l.replace(' nt', '')
        if opt['wdef'] & 4 and ('buffer_load_dwordx4 v62,' in l or 'v58, s[8:11], s62' in l): l = l.replace(' nt', '')
        if opt['wdef'] & 8 and 'v1, s[12:15]' in l: l = l.replace(' nt', '')
        if opt['wdef'] & 16 and 'v1, s[8:11]' in l: l = l.replace(' nt', '')
        if opt['kvfl'] and ('v1, s[8:11]' in l or 'v1, s[12:15]' in l): l = l.replace(' nt', FLV[opt['kvfl']])
        if opt['wqfl'] and 'v2, s[8:11], s68 offen nt' in l: l = l.replace(' nt', FLV[opt['wqfl']])
        out.append(l)
    txt = '\n'.join(out)
open(sys.argv[1], 'w').write(txt)
```

```python
import sys, struct, os
from asmlib import Asm

NAME = "sequential_preLN__sliding_block_cached__glu_gated_swiglu__decode"
opt = dict(D=3, stamps=0, hist=0, spin=200007, Vpre=3, qsleep=20, qdelay=40, stsleep=16, idtries=12, idsleep=16,
           t1=3, t2=0, DWO=8, nA=0, nB=0, hintB=2, fsleep=0, forceslow=0, trap=0, dyn=5, near=1, dbg=0, hsleep=0,
           cpf=3, nprobe=4, fixnear=-1, share=1, tearly=1, DWB=10, opearly=0, tB=0, prew=0, npw=4, abl=0, lnt=1, prer=0, ynt=0, hwarm=1, fnt=1, pubwait=0, opdiag=0, nb1=8, ope=2, tlb=0, sdiag=0, deep=0, shal=0, shper=4, nb1B=4, mA=0, gA=4, mB=0, gB=3, rsleep=4, GA=8, GB=8, hbar=1, papipe=1, fprew=0, psl=0, oppipe=1, yppipe=0, wbl=0, red=1, ysl=0, ord=0, hred=1, spec=3, ovl=1, fack=0, sched=4, shp=1, idpre=0, pal=0, opsl=0, ydel=0, wpre=0, wpw=2, opl=1, stv=1, opchk=0, wdef=0, kvfl=0, wqfl=0, rowl=1, bywave=0, swz=2, dbgx=-1, dbgs=0)
for a in sys.argv[2:]:
    k, v = a.split('=')
    assert k in opt, k
    opt[k] = int(v)
D = opt['D']; STAMPS = opt['stamps']; SPIN = opt['spin']

LF = ' sc1 nt' if opt['lnt'] else ' sc1'
def f32(x): return '0x%08x' % struct.unpack('<I', struct.pack('<f', x))[0]
LOG2E = 1.4426950408889634

YP = 0x0
PR = 0x20000
FP = 0x80000
EP = 0xFF000
ST = 0x101000
ID = 0x102000
DN1 = 0x103000
DN2 = 0x104000
TK = 0x108000
PV = 0x105000
OP = 0x110000
QP = 0x140000
if opt['ovl']: QP = OP
SP = 0x200000
PA = 0x220000
PS = 0x2A0000
PH = 0x2A8000
HB = 0x300000
WSN = 0x400000
FAST = 0x400000
QL = 0
QF = 384
SL = 512
CNT = 640
INFO = 656
GS = 672
HID = 896
OL = 1024
RL = 7168
HL = 8192
WL = 8704
BK = 1056 if opt['swz'] == 2 else 1024
LDS = WL + 48 * BK

A = Asm()
A.raw(open(os.path.join(os.path.dirname(os.path.abspath(__file__)), '..', NAME + '.s.ref')).read().split('; Override launch')[0].rstrip())
A.raw(f"; @launch grid=(256,1,1) block=(768,1,1) lds={LDS}")
A.raw('''; Generated by gen/gen12.py (hand-written generator).  One persistent launch, 256 workgroups x 12 waves, 1 per CU.
;  waves 0..7 : stream this workgroup's 512 keys of K then V (nt loads, depth-limited), QK / PV with v_dot2c bf16,
;  one XCD, a write-through copy as well, so any placement is correct.  Chip-wide hand-offs are written through twice
;  s_sleep is used only as back-off inside / ahead of polling loops.''')
A.raw('.amdgcn_target "amdgcn-amd-amdhsa--gfx950"')
A.raw('.text')
A.raw(f'.globl {NAME}_kernel')
A.raw('.p2align 8')
A.raw(f'.type {NAME}_kernel,@function')
A.raw(f'{NAME}_kernel:')

def stamp(idx, plus_wave=False):
    if not STAMPS: return
    A('s_memrealtime s[96:97]')
    A('s_lshl_b32 s98, s2, 8')
    A(f's_add_u32 s98, s98, {SP + idx*8}')
    if plus_wave: A('s_lshl3_add_u32 s98, s3, s98')
    A('s_mov_b64 s[94:95], exec')
    A('s_mov_b64 exec, 1')
    A('s_waitcnt lgkmcnt(0)')
    A('v_mov_b32 v120, s96\nv_mov_b32 v121, s97\nv_mov_b32 v122, 0')
    A('buffer_store_dwordx2 v[120:121], v122, s[24:27], s98 offen')
    A('s_mov_b64 exec, s[94:95]')
def mark(i):
    if STAMPS: A(f's_memrealtime s[{80+2*i}:{81+2*i}]')
def flush(pairs, plus_wave=False):
    if not STAMPS: return
    A('s_lshl_b32 s98, s2, 8')
    A(f's_add_u32 s98, s98, {SP}')
    if plus_wave: A('s_lshl3_add_u32 s98, s3, s98')
    A('s_mov_b64 exec, 1\ns_waitcnt lgkmcnt(0)\nv_mov_b32 v122, 0')
    for i, slot in pairs:
        A(f'v_mov_b32 v120, s{80+2*i}\nv_mov_b32 v121, s{81+2*i}')
        A(f'buffer_store_dwordx2 v[120:121], v122, s[24:27], s98 offen offset:{8*slot}')
        A('s_nop 1')
    A('s_mov_b64 exec, -1')
def hstamp(ks):
    if not opt['hist'] or opt['sdiag']: return
    if isinstance(ks, int): ks = [ks]
    ks = list(ks)
    if not ks: return
    A('s_memrealtime s[96:97]\ns_waitcnt lgkmcnt(0)')
    for k in ks: A(f'v_writelane_b32 v159, s96, {k}')

def sd(i):
    if opt['sdiag']: A(f's_memrealtime s[{80+2*i}:{81+2*i}]')
def srd(d, ptr, nbytes):
    A(f's_mov_b32 s{d}, s{ptr}')
    A(f's_mov_b32 s{d+1}, s{ptr+1}')
    A(f's_mov_b32 s{d+2}, {nbytes}')
    A(f's_mov_b32 s{d+3}, 0x20000')
def ws_srds():
    srd(24, 58, WSN)
    A(f's_add_u32 s32, s58, {FAST}')
    A('s_addc_u32 s33, s59, 0')
    A(f's_mov_b32 s34, {WSN}')
    A('s_mov_b32 s35, 0x20000')
    A('s_lshl3_add_u32 s71, s6, s7')
    A('s_lshr_b32 s79, s2, 3')

ALL = (1 << 64) - 1
def setexec(mask):
    if mask == ALL: A('s_mov_b64 exec, -1'); return
    A(f's_mov_b32 exec_lo, 0x{mask & 0xffffffff:x}')
    A(f's_mov_b32 exec_hi, 0x{mask >> 32:x}')

DPPM = 'row_mask:0xf bank_mask:0xf'
def allreduce8(op, regs):
    for pat in ('quad_perm:[1,0,3,2]', 'quad_perm:[2,3,0,1]', 'row_half_mirror'):
        for r in regs: A(f'{op}_dpp v{r}, v{r}, v{r} {pat} {DPPM}')
def allreduce16(op, regs):
    allreduce8(op, regs)
    for r in regs: A(f'{op}_dpp v{r}, v{r}, v{r} row_mirror {DPPM}')
def swapreduce(sw, op, regs, tmps):
    for r, t in zip(regs, tmps): A(f'v_mov_b32 v{t}, v{r}')
    for r, t in zip(regs, tmps): A(f'{sw} v{r}, v{t}')
    for r, t in zip(regs, tmps): A(f'{op} v{r}, v{r}, v{t}')
S16 = 'v_permlane16_swap_b32'; S32 = 'v_permlane32_swap_b32'
def allreduce_rows(op, regs, tmps):
    swapreduce(S16, op, regs, tmps); swapreduce(S32, op, regs, tmps)
def allreduce64(op, regs, tmps):
    allreduce16(op, regs); allreduce_rows(op, regs, tmps)
def bf16r(d, s):
    A(f'v_cvt_pk_bf16_f32 v{d}, v{s}, v{s}')
    A(f'v_lshlrev_b32 v{d}, 16, v{d}')
def mktag():
    A('''
s_waitcnt lgkmcnt(0)
s_mul_i32 s30, s28, 0x2c9277b5
s_add_u32 s30, s30, 0xac564b05
s_or_b32 s30, s30, 1
s_mul_i32 s31, s29, 0x0019660d
s_add_u32 s31, s31, 0x3c6ef35f
''')
def place(v, t):
    A(f'v_and_b32 v{t}, 0xffffe000, v{v}\nv_add_u32 v{v}, v{v}, v{t}')
lbl = [0]
def newlabel(p):
    lbl[0] += 1
    return f'L_{p}_{lbl[0]}'

def tagcheck(pairs):
    A(f'v_cmp_ne_u64 vcc, s[30:31], v[{pairs[0]}:{pairs[0]+1}]')
    tm = [(20, 21), (22, 23)]
    pend = []
    for i, p in enumerate(pairs[1:]):
        t = tm[i % 2]
        if len(pend) == 2:
            q = pend.pop(0); A(f's_or_b64 vcc, vcc, s[{q[0]}:{q[1]}]')
        A(f'v_cmp_ne_u64 s[{t[0]}:{t[1]}], s[30:31], v[{p}:{p+1}]')
        pend.append(t)
    for q in pend: A(f's_or_b64 vcc, vcc, s[{q[0]}:{q[1]}]')

def sleep(n):
    while n > 0:
        A(f's_sleep {min(n, 127)}'); n -= 127
def trap(n):
    if not opt['trap']: return
    A(f's_lshl_b32 s99, s2, 8\ns_or_b32 s99, s99, s3\ns_lshl_b32 s99, s99, 8\ns_or_b32 s99, s99, {n & 255}')
    A(f'v_mov_b32 v163, {16 * (n % 16)}\nv_mov_b32 v164, s99\nv_mov_b32 v165, vcc_lo\nv_mov_b32 v166, vcc_hi\nv_mov_b32 v167, s5')
    A('global_store_dwordx4 v163, v[164:167], s[56:57]')
def spin(body, slp=0, retry=None, enter=None):
    top = newlabel('spin'); done = newlabel('sdone')
    A(f's_mov_b32 s70, {SPIN}')
    if enter: A(f's_branch {enter}')
    A(f'{top}:')
    body()
    A('s_nop 0')
    A(f's_cbranch_vccz {done}')
    sleep(slp)
    if retry: retry()
    A('s_sub_u32 s70, s70, 1')
    A(f's_cbranch_scc0 {top}')
    trap(lbl[0])
    A(f'{done}:')
def spin2(body, slp=0, retry=None, local_only=False, enter=None):
    A(f's_mov_b32 s16, s32\ns_mov_b32 s17, s33\ns_mov_b32 s18, {WSN}\ns_mov_b32 s19, 0x20000')
    def rt():
        if retry: retry()
        A('s_and_b32 s99, s70, 7')
        if local_only:
            A('s_cmp_eq_u32 s46, 1')
            A('s_cselect_b32 s99, 1, s99')
            A('s_cmp_lg_u32 s99, 0')
        A('s_cselect_b32 s16, s32, s24')
        A('s_cselect_b32 s17, s33, s25')
    spin(body, slp, rt, enter)

def lds_wait_ge(off, n, slp, dst=4, adr=1):
    A(f'v_mov_b32 v{adr}, 0')
    def body():
        A(f'ds_read_b32 v{dst}, v{adr} offset:{off}')
        A('s_waitcnt lgkmcnt(0)')
        A(f'v_cmp_gt_u32 vcc, {n}, v{dst}')
    spin(body, slp)
def get_mode(dst=4, adr=1):
    lds_wait_ge(INFO, 1, 2, dst, adr)
    A(f'v_readfirstlane_b32 s46, v{dst}')
def get_role(slp):
    A('v_mov_b32 v1, 0')
    def body():
        A(f'ds_read_b64 v[4:5], v1 offset:{INFO + 8}')
        A('s_waitcnt lgkmcnt(0)')
        A('v_cmp_eq_u32 vcc, 0, v5')
    spin(body, slp)
    A('v_readfirstlane_b32 s5, v5\nv_readfirstlane_b32 s47, v4\ns_lshr_b32 s28, s5, 8\ns_and_b32 s5, s5, 0xff\ns_sub_u32 s5, s5, 1')
ROLE = INFO + 12; NEAR = INFO + 8

outline = []
def publish(stores):
    def emit(srdn, fl, AA):
        cur = ALL
        for m, line in stores:
            m = ALL if m is None else m
            if m != cur:
                if m == ALL: AA('s_mov_b64 exec, -1')
                elif isinstance(m, str): AA(f's_mov_b64 exec, {m}')
                else: AA(f's_mov_b32 exec_lo, 0x{m & 0xffffffff:x}\ns_mov_b32 exec_hi, 0x{m >> 32:x}')
                cur = m
            AA(line.replace('@', f's[{srdn}:{srdn+3}]') + fl)
        if cur != ALL: AA('s_mov_b64 exec, -1')
    if not opt['forceslow']: emit(32, '', A)
    slow = newlabel('slow'); back = newlabel('back')
    A('s_cmp_lg_u32 s46, 1')
    A(f's_cbranch_scc1 {slow}')
    A(f'{back}:')
    blk = [f'{slow}:']
    emit(24, ' sc1', lambda t: blk.append(t))
    blk.append('s_nop 1')
    blk.append(f's_branch {back}')
    outline.append('\n'.join(blk))
def hint_wait(base, n):
    if not n: return
    lp = newlabel('gpoll'); ld = newlabel('gdone')
    A(f"""
v_and_b32 v1, 31, v0
v_lshlrev_b32 v1, 4, v1
s_lshl_b32 s68, s4, 9
s_add_u32 s68, s68, {base}
s_mov_b32 s70, 40
s_cmp_lg_u32 s46, 1
s_cbranch_scc1 {ld}
{lp}:
buffer_load_dwordx4 v[4:7], v1, s[32:35], s68 offen{LF}
s_waitcnt vmcnt(0)
v_cmp_eq_u64 vcc, s[30:31], v[6:7]
s_nop 0
s_bcnt1_i32_b32 s69, vcc_lo
s_cmp_ge_u32 s69, {n}
s_cbranch_scc1 {ld}
s_sleep 2
s_sub_u32 s70, s70, 1
s_cbranch_scc0 {lp}
{ld}:
""")

A("""
s_cmp_ge_u32 s2, 256
s_cbranch_scc1 L_end
s_load_dwordx2 s[8:9], s[0:1], 8
s_load_dwordx16 s[36:51], s[0:1], 0
s_load_dwordx8 s[52:59], s[0:1], 64
""")
mark(0)
if opt['dbg'] or opt['dbgx'] >= 0: A('s_memrealtime s[80:81]')
if opt['hist']: A('s_memrealtime s[94:95]\nv_mov_b32 v159, 0')
A("""
v_lshrrev_b32 v1, 6, v0
v_and_b32 v0, 63, v0
v_readfirstlane_b32 s3, v1
s_and_b32 s4, s2, 7
s_lshr_b32 s79, s2, 6
s_lshl2_add_u32 s6, s4, s79
s_bfe_u32 s7, s2, 0x30003
""")
if opt['cpf'] >= 3:
    A(f'''
s_cmp_lg_u32 s3, 0
s_cbranch_scc1 L_nocpf
s_getpc_b64 s[20:21]
L_pc0:
''')
    if opt['cpf'] == 3:
        A(f'''
s_mul_i32 s68, s7, {2560 if (STAMPS or opt['hist']) else 2048}
v_min_u32 v8, {19 if (STAMPS or opt['hist']) else 15}, v0
v_lshl_add_u32 v8, v8, 7, s68
v_min_u32 v8, L_codeend-L_pc0-4, v8
global_load_dword v10, v8, s[20:21]
''')
    else:
        A(f'''
v_lshlrev_b32 v8, 7, v0
v_add_u32 v9, 8192, v8
v_min_u32 v9, L_codeend-L_pc0-4, v9
global_load_dword v10, v8, s[20:21]
global_load_dword v11, v9, s[20:21]
''')
    A('L_nocpf:')
A("""
v_lshrrev_b32 v2, 3, v0
v_and_b32 v3, 7, v0
v_lshlrev_b32 v3, 4, v3
s_mov_b32 s11, 0x20000
s_cmp_gt_u32 s3, 7
s_cbranch_scc1 L_helper
""")
G = 8; GST = 3072 * 64
GOFF = [60, 61, 62, 63, 64, 65, 66, 67]
A("""
s_lshl3_add_u32 s68, s7, s3
s_mul_i32 s60, s6, 4096
s_add_u32 s60, s60, s68
s_addk_i32 s60, 3584
s_mul_i32 s60, s60, 3072
v_mul_u32_u24 v2, 384, v2
v_add_u32 v1, v2, v3
s_mov_b32 s10, 402653184
""")
if opt['tlb'] & 1: A('s_mul_i32 s69, s3, 983040')
A('s_waitcnt lgkmcnt(0)')
sd(1)
QR = 4; KR = 16
SC = 168 - G
VR = KR + 12 * G
nV1 = min((SC - VR) // 12, G) - (1 if opt['hist'] else 0)
ACC = KR + 12 * (G - 2)
T = ACC
st = dict(n=0); hs = dict(done=0)
def hupto(n):
    hstamp(range(hs['done'], n)); hs['done'] = max(hs['done'], n)
def vreg(g): return VR + 12 * g if g < nV1 else KR + 12 * (g - nV1)
ADP = opt['deep'] or opt['shal']
DC = D + 1 if opt['deep'] else D
def issue_load(kind, g, j, depth):
    if depth and st['n'] >= depth:
        if opt['shal'] and st['n'] > 4 and st['n'] % opt['shper'] == 0:
            l1 = newlabel('sh'); A(f's_bitcmp0_b32 s77, 1\ns_cbranch_scc1 {l1}\ns_waitcnt vmcnt({depth-2})\n{l1}:')
        if opt['deep'] and st['n'] > 3:
            l1 = newlabel('dp'); A(f's_bitcmp1_b32 s77, 0\ns_cbranch_scc1 {l1}\ns_waitcnt vmcnt({depth-1})\n{l1}:\ns_waitcnt vmcnt({depth})')
        else: A(f's_waitcnt vmcnt({depth-1})')
    r = (KR + 12 * g + 4 * j) if kind == 'K' else vreg(g) + 4 * j
    s = 8 if kind == 'K' else 12
    A(f'buffer_load_dwordx4 v[{r}:{r+3}], v1, s[{s}:{s+3}], s{GOFF[g]} offen offset:{128*j} nt')
    if depth and st['n'] >= depth: hupto(st['n'] - DC + 1)
    st['n'] += 1
def touches():
    if opt['tlb'] & 1: A('s_load_dword s20, s[42:43], s69\ns_load_dword s21, s[36:37], 0')
    if opt['tlb'] & 2: A('s_load_dword s22, s[40:41], s60')
def prealloc():
    A('v_mov_b32 v4, 0\nv_mov_b32 v5, 0\nv_mov_b32 v6, 0\nv_mov_b32 v7, 0')
    if opt['pal'] & 1:
        A(f'''
s_bfe_u32 s68, s2, 0x40003
s_cmp_lg_u32 s3, 1
s_cselect_b32 s68, 15, s68
s_cmp_ge_u32 s68, 10
s_cbranch_scc1 L_pal1
s_lshr_b32 s69, s2, 7
s_lshl1_add_u32 s69, s4, s69
s_mul_i32 s69, s69, 10
s_add_u32 s68, s68, s69
s_lshl_b32 s68, s68, 8
s_and_b32 s69, s68, 0xffffe000
s_add_u32 s68, s68, s69
v_and_b32 v8, 15, v0
v_lshlrev_b32 v8, 4, v8
v_lshrrev_b32 v9, 4, v0
v_lshl_add_u32 v8, v9, 13, v8
v_add_u32 v8, s68, v8
s_mov_b32 exec_hi, 0
global_store_dwordx4 v8, v[4:7], s[58:59] sc1
s_mov_b32 exec_hi, -1
L_pal1:
''')
    if opt['pal'] & 2:
        A(f'''
s_sub_u32 s68, s3, 2
s_cmp_gt_u32 s68, 1
s_cbranch_scc1 L_pal2
s_cmp_ge_u32 s2, 240
s_cbranch_scc1 L_pal2
s_lshl_b32 s68, s68, 13
s_lshl_b32 s69, s2, 10
s_add_u32 s68, s68, s69
s_and_b32 s69, s69, 0xffffe000
s_add_u32 s68, s68, s69
s_add_u32 s68, s68, {FP}
v_lshl_add_u32 v8, v0, 4, s68
global_store_dwordx4 v8, v[4:7], s[58:59] sc1
L_pal2:
''')
if opt['tlb'] & 4: touches()
if opt['pal'] & 3: prealloc()
for j in range(3): issue_load('K', 0, j, D)
if not opt['tlb'] & 4: touches()
sd(2)
A('s_barrier')
A('s_branch L_stream')

A('L_helper:')
sd(1)
A(f'''
v_lshlrev_b32 v1, 3, v0
v_mov_b32 v4, 0
v_mov_b32 v5, 0
ds_write_b64 v1, v[4:5] offset:{QF}
s_sub_u32 s73, s3, 8
s_cmp_eq_u32 s3, 11
s_cbranch_scc1 L_misc
''')
A('''
s_mul_i32 s68, s7, 80
v_add_u32 v7, s68, v2
v_lshlrev_b32 v7, 1, v7
v_mul_u32_u24 v2, 12288, v2
v_add_u32 v2, v2, v3
s_mul_i32 s68, s68, 12288
s_mul_i32 s69, s6, 384
s_add_u32 s68, s68, s69
s_lshl_b32 s69, s73, 7
s_add_u32 s68, s68, s69
v_lshlrev_b32 v1, 2, v0
s_setprio 3
s_waitcnt lgkmcnt(0)
s_barrier
''')
sd(2)
XS = 64; XU = 70; XR = 8; WQ = 24; QA = 80
A(f's_mov_b32 s8, s42\ns_mov_b32 s9, s43\ns_mov_b32 s10, {640 * 6144 * 2}')
for i in range(5): A(f'global_load_dword v{XS+i}, v1, s[36:37] offset:{256*i}')
for r in range(10): A(f'global_load_ushort v{XR+r}, v7, s[36:37] offset:{16*r}')
sd(3)
for r in range(10):
    A(f'buffer_load_dwordx4 v[{WQ+4*r}:{WQ+4*r+3}], v2, s[8:11], s68 offen nt')
    if r < 9: A('s_add_u32 s68, s68, 98304')
A(f's_load_dwordx2 s[28:29], s[58:59], {EP}')
sd(4)
A('s_branch L_q2')
A('L_misc:')
if opt['cpf'] in (1, 2):
    A(f'''
s_getpc_b64 s[20:21]
L_pc0:
''')
    if opt['cpf'] == 1:
        A(f'''
s_lshr_b32 s68, s2, 3
s_lshl_b32 s68, s68, 9
v_lshlrev_b32 v8, 7, v0
v_and_b32 v8, 0x1ff, v8
v_add_u32 v8, s68, v8
v_min_u32 v8, L_codeend-L_pc0-4, v8
global_load_dword v10, v8, s[20:21]
''')
    else:
        A(f'''
v_lshlrev_b32 v8, 7, v0
v_add_u32 v9, 8192, v8
v_min_u32 v9, L_codeend-L_pc0-4, v9
global_load_dword v10, v8, s[20:21]
global_load_dword v11, v9, s[20:21]
''')
A(f'''
s_setprio 3
s_waitcnt lgkmcnt(0)
s_barrier
s_load_dwordx2 s[28:29], s[58:59], {EP}
s_branch L_misc2
''')

A('L_stream:')
sd(3)
for g in range(1, G):
    A(f's_add_u32 s{GOFF[g]}, s{GOFF[g-1]}, {GST}')
    for j in range(3):
        issue_load('K', g, j, D)
        if g == 1 and j == 0: sd(4)
        if g == 2 and j == 0: sd(5)
        if g == 1 and j == 0:
            A(f's_load_dwordx2 s[28:29], s[58:59], {EP}')
            ws_srds(); srd(12, 40, 402653184)
            if ADP:
                A(f'''s_getreg_b32 s76, hwreg(HW_REG_XCC_ID)
{'s_mov_b32 s76, s3' if opt['bywave'] else 's_and_b32 s76, s76, 7'}
s_lshr_b32 s77, {opt['deep']}, s76
s_and_b32 s77, s77, 1
s_lshr_b32 s76, {opt['shal']}, s76
s_and_b32 s76, s76, 1
s_lshl1_add_u32 s77, s76, s77''')
mark(1)
nv = 0; NV = 3 * G
if opt['abl'] & 512:
    while nv < NV:
        issue_load('V', nv // 3, nv % 3, D); nv += 1
    A('s_waitcnt vmcnt(0)')
    if opt['abl'] & 2048: A('s_lshl_b32 s68, s2, 7\ns_mov_b64 exec, 1\nbuffer_store_dword v1, off, s[32:35], s68')
    A('s_endpgm')
    nv = 0; st['n'] = 3 * G
for n in range(min(opt['Vpre'], 3 * nV1)):
    issue_load('V', nv // 3, nv % 3, D); nv += 1
mktag()
A('v_and_b32 v2, 3, v0\nv_min_u32 v2, 2, v2\nv_lshlrev_b32 v2, 3, v2')
def body():
    A(f'ds_read_b32 v{QR}, v2 offset:{QF}')
    A('s_waitcnt lgkmcnt(0)')
    A(f'v_cmp_eq_u32 vcc, 0, v{QR}')
spin(body, 1)
A(f'''
ds_read_b128 v[{QR}:{QR+3}], v3 offset:{QL}
ds_read_b128 v[{QR+4}:{QR+7}], v3 offset:{QL+128}
ds_read_b128 v[{QR+8}:{QR+11}], v3 offset:{QL+256}
''')
for g in range(G): A(f'v_mov_b32 v{SC+g}, 0')
A(f's_waitcnt vmcnt({nv}) lgkmcnt(0)')
hupto(3 * G)
for gs in (range(4), range(4, G)):
    for i in range(12):
        for g in gs:
            A(f'v_dot2c_f32_bf16 v{SC+g}, v{KR+12*g+i}, v{QR+i}')
def triple():
    global nv
    for n in range(3):
        issue_load('V', nv // 3, nv % 3, D); nv += 1
if opt['sched'] == 2: triple()
allreduce8('v_add_f32', [SC + g for g in range(G)])
if opt['sched'] in (1, 3): triple()
A(f's_mov_b32 s68, {f32(192 ** -0.5)}')
A('v_mov_b32 v2, 0')
for g in range(G): A(f'v_cvt_pk_bf16_f32 v{SC+g}, v2, v{SC+g}')
for g in range(G): A(f'v_mul_f32 v{SC+g}, s68, v{SC+g}')
for g in range(G): A(f'v_cvt_pk_bf16_f32 v{SC+g}, v2, v{SC+g}')
A(f'v_max_f32 v4, v{SC}, v{SC+1}')
for g in range(2, G, 2): A(f'v_max3_f32 v4, v4, v{SC+g}, v{SC+g+1}')
A(f'v_max_f32_dpp v4, v4, v4 row_ror:8 {DPPM}')
allreduce_rows('v_max_f32', [4], [T])
A(f's_mov_b32 s68, {f32(LOG2E)}')
for g in range(G): A(f'v_sub_f32 v{SC+g}, v{SC+g}, v4')
for g in range(G): A(f'v_mul_f32 v{SC+g}, s68, v{SC+g}')
for g in range(G): A(f'v_exp_f32 v{SC+g}, v{SC+g}')
A(f'v_add_f32 v5, v{SC}, v{SC+1}')
for g in range(2, G): A(f'v_add_f32 v5, v5, v{SC+g}')
A(f'v_add_f32_dpp v5, v5, v5 row_ror:8 {DPPM}')
allreduce_rows('v_add_f32', [5], [T])
A(f'''
s_lshl_b32 s69, s3, 4
v_mov_b32 v{T}, s69
v_mov_b32 v6, 1
v_mov_b32 v7, 1
ds_write_b128 v{T}, v[4:7] offset:{SL}
''')
mark(2)
if opt['sched'] in (1, 2): triple()
for g in range(G): A(f'v_cvt_pk_bf16_f32 v{SC+g}, v{SC+g}, v2')
for i in range(24): A(f'v_mov_b32 v{ACC+i}, 0')
A('''
v_and_b32 v8, 7, v0
v_lshlrev_b32 v8, 5, v8
v_lshrrev_b32 v9, 4, v0
v_lshl_add_u32 v8, v9, 3, v8
s_mul_i32 s69, s3, 768
v_add_u32 v8, s69, v8
v_mov_b32 v11, 1
''')
def pv(idx):
    g, j = divmod(idx, 3)
    r = vreg(g) + 4 * j
    if j == 0: A(f'v_lshlrev_b32 v10, 16, v{SC+g}')
    for e in range(4):
        A(f'v_dot2c_f32_bf16 v{ACC+8*j+2*e}, v{r+e}, v{SC+g}')
        A(f'v_dot2c_f32_bf16 v{ACC+8*j+2*e+1}, v{r+e}, v10')
done_idx = -1; pv_next = 0
if opt['sched'] in (1, 2):
    for n in range(3): pv(pv_next); pv_next += 1
assert nv < NV - opt['t1'] and opt['t1'] >= opt['t2']
RW = 64
PS_ = [8, 9, 10, 11, 60, 61, 62, 63, 64, 65, 66, 76, 77, 78, 20, 21]
if opt['rowl']:
    assert D == 3 and not ADP and not opt['hist'] and nV1 == 4
    A('v_min_u32 v3, 47, v0\nv_lshlrev_b32 v3, 3, v3')
while nv < NV:
    if opt['rowl'] and nv >= NV - 3:
        k = nv - (NV - 3)
        A(f's_waitcnt vmcnt({2 + 2 * k})')
        for r in range(3 * k, min(3 * k + 3, 8)):
            A(f'buffer_load_dwordx2 v[{RW+2*r}:{RW+2*r+1}], v3, s[12:15], s{GOFF[G-1]} offen offset:{384*r} nt')
    else:
        issue_load('V', nv // 3, nv % 3, D)
    done_idx = nv - DC
    nv += 1
    for key, off in (('t1', 8), ('t2', 4)):
        if nv == NV - opt[key]:
            A(f's_mov_b64 exec, 1\nds_add_u32 v2, v11 offset:{CNT+off}\ns_mov_b64 exec, -1')
    cnt = 0
    if opt['sched'] and nv % 3: continue
    while pv_next <= done_idx and cnt < (6 if opt['sched'] else 2):
        pv(pv_next); pv_next += 1; cnt += 1
def scale_factor():
    def body():
        A(f'ds_read_b128 v[12:15], v2 offset:{GS}')
        A(f'ds_read_b32 v7, v2 offset:{INFO}')
        A('s_waitcnt lgkmcnt(0)')
        A('v_cmp_eq_u32 vcc, 0, v15')
    spin(body, 1)
    A('v_sub_f32 v9, v4, v12\nv_mul_f32 v9, s68, v9\nv_exp_f32 v9, v9\nv_readfirstlane_b32 s46, v7\nv_mul_f32 v9, v9, v13')
    A(f'''
v_min_u32 v12, 47, v0
{'v_lshlrev_b32 v13, 7, v12' if not opt['opl'] else 'v_lshrrev_b32 v13, 1, v12' + chr(10) + 'v_and_b32 v14, 1, v12' + chr(10) + 'v_lshl_add_u32 v13, v13, 4, v14' + chr(10) + 'v_lshlrev_b32 v13, 4, v13'}
v_lshlrev_b32 v12, 4, v12
s_mul_i32 s74, s6, 6144
s_lshl_b32 s75, s7, {4 + opt['opl']}
s_add_u32 s74, s74, s75
s_add_u32 s74, s74, {OP}
s_lshl_b32 s75, s4, 9
s_lshl4_add_u32 s75, s79, s75
s_add_u32 s75, s75, {DN2}
s_mov_b32 s22, 0xaaaaaaaa
s_mov_b32 s23, 0xaaaaaaaa
v_mov_b32 v14, s30
v_mov_b32 v15, s31
''')
def reduce_js(js, scale=True):
    B_ = [ACC + 8 * j for j in js]
    for b in B_:
        for e in range(4): A(f'{S32} v{b+e}, v{b+e+4}')
    for b in B_:
        if opt['red'] & 1:
            for e in (0, 2): A(f'v_pk_add_f32 v[{b+e}:{b+e+1}], v[{b+e}:{b+e+1}], v[{b+e+4}:{b+e+5}]')
        else:
            for e in range(4): A(f'v_add_f32 v{b+e}, v{b+e}, v{b+e+4}')
    for b in B_:
        for e in range(2): A(f'{S16} v{b+e}, v{b+e+2}')
    for b in B_:
        if opt['red'] & 1: A(f'v_pk_add_f32 v[{b}:{b+1}], v[{b}:{b+1}], v[{b+2}:{b+3}]')
        else:
            for e in range(2): A(f'v_add_f32 v{b+e}, v{b+e}, v{b+e+2}')
    for b in B_:
        for e in range(2): A(f'v_add_f32_dpp v{b+e}, v{b+e}, v{b+e} row_ror:8 {DPPM}')
    for j, b in zip(js, B_):
        if scale:
            for e in range(2): A(f'v_mul_f32 v{b+e}, v9, v{b+e}')
        A(f'ds_write_b64 v8, v[{b}:{b+1}] offset:{OL+256*j}')
PLAN = {0: {0: [0], 1: [1], 2: [2]}, 1: {1: [0, 1], 2: [2]}, 2: {2: [0, 1, 2]}, 3: {0: [0], 2: [1, 2]}}[opt['red'] >> 1]
fd = False
if opt['rowl']:
    while pv_next < NV - 3:
        pv(pv_next); pv_next += 1
    reduce_js([0, 1, 2], False)
    A(f's_mul_i32 s69, s3, 768\nv_lshlrev_b32 v8, 1, v3\nv_add_u32 v8, s69, v8')
    A(f'ds_read_b128 v[{ACC+4}:{ACC+7}], v8 offset:{OL}')
    for r in range(8): A(f'v_readlane_b32 s{PS_[2*r]}, v{SC+G-1}, {8*r}')
    for r in range(8): A(f's_lshl_b32 s{PS_[2*r+1]}, s{PS_[2*r]}, 16')
    scale_factor()
    for r in range(8):
        A(f's_waitcnt vmcnt({7-r})')
        for e in range(2):
            A(f'v_dot2c_f32_bf16 v{ACC+4+2*e}, s{PS_[2*r]}, v{RW+2*r+e}')
            A(f'v_dot2c_f32_bf16 v{ACC+5+2*e}, s{PS_[2*r+1]}, v{RW+2*r+e}')
    for e in range(4): A(f'v_mul_f32 v{ACC+4+e}, v9, v{ACC+4+e}')
    A(f'ds_write_b128 v8, v[{ACC+4}:{ACC+7}] offset:{OL}')
    pv_next = NV
while pv_next < NV:
    if pv_next >= NV - 3 and not fd:
        scale_factor(); fd = True
    if pv_next > done_idx:
        A(f's_waitcnt vmcnt({NV - 1 - pv_next})')
        hupto(3 * G + pv_next + 1)
        done_idx = pv_next
    pv(pv_next); pv_next += 1
    if pv_next == NV and opt['abl'] & 4096: A('s_endpgm')
    if pv_next > NV - 3 and (pv_next - 1) % 3 in PLAN and not opt['abl'] & 4096: reduce_js(PLAN[(pv_next - 1) % 3])
if opt['spec'] & 1:
    A(f's_mov_b64 exec, 1\nds_add_rtn_u32 v10, v2, v11 offset:{CNT}\ns_mov_b64 exec, -1')
    for w in range(8): A(f'ds_read_b128 v[{16+4*w}:{19+4*w}], v12 offset:{OL+768*w}')
    A('s_waitcnt lgkmcnt(8)\nv_readfirstlane_b32 s68, v10\ns_cmp_lg_u32 s68, 7\ns_cbranch_scc1 L_nopub')
else:
    A(f'''
s_mov_b64 exec, 1
ds_add_rtn_u32 v10, v2, v11 offset:{CNT}
s_waitcnt lgkmcnt(0)
v_readfirstlane_b32 s68, v10
s_mov_b64 exec, -1
s_cmp_lg_u32 s68, 7
s_cbranch_scc1 L_nopub
''')
    for w in range(8): A(f'ds_read_b128 v[{16+4*w}:{19+4*w}], v12 offset:{OL+768*w}')
def add4(d, a_, b_):
    if opt['red'] & 1:
        for e in (0, 2): A(f'v_pk_add_f32 v[{d+e}:{d+e+1}], v[{a_+e}:{a_+e+1}], v[{b_+e}:{b_+e+1}]')
    else:
        for e in range(4): A(f'v_add_f32 v{d+e}, v{a_+e}, v{b_+e}')
for w in range(0, 8, 2):
    A(f's_waitcnt lgkmcnt({6-w})')
    add4(16 + 4 * w, 16 + 4 * w, 20 + 4 * w)
    if w == 2 or w == 6: add4(8 + 4 * w, 8 + 4 * w, 16 + 4 * w)
add4(4, 16, 32)
A('''
v_cvt_pk_bf16_f32 v8, v4, v5
v_cvt_pk_bf16_f32 v9, v6, v7
v_cndmask_b32 v4, v8, v14, s[22:23]
v_cndmask_b32 v5, v9, v15, s[22:23]
v_cndmask_b32 v6, v14, v8, s[22:23]
v_cndmask_b32 v7, v15, v9, s[22:23]
''')
if opt['abl'] & 8192: A('s_endpgm')
publish([((1 << 48) - 1, 'buffer_store_dwordx4 v[4:7], v13, @, s74 offen')])
mark(3)
if opt['dbgx'] >= 0:
    A('''s_memrealtime s[82:83]
s_waitcnt lgkmcnt(0)
s_lshl_b32 s84, s4, 3
s_cmp_lg_u32 s79, 0
s_cbranch_scc1 L_dbx0
s_atomic_umax s80, s[56:57], s84
L_dbx0:
s_add_u32 s84, s84, 4''')
    if opt['dbgs']: A('s_atomic_umax s82, s[56:57], s84')
A('s_mov_b64 exec, 1')
if opt['nB'] and opt['hintB'] == 2: A('buffer_store_dwordx4 v[4:7], v12, s[32:35], s75 offen')
if opt['pubwait']: A('s_waitcnt vmcnt(0)')
if opt['pubwait'] and opt['opdiag']: mark(1)
A(f'ds_write_b32 v2, v11 offset:{INFO + 4}')
A('s_mov_b64 exec, -1')
flush([(1, 9), (2, 10), (3, 16)])
A('L_nopub:')
if STAMPS:
    A('s_cmp_lg_u32 s3, 0\ns_cbranch_scc1 L_nost0')
    flush([(0, 0)])
    A('L_nost0:')
if opt['abl'] & 16: A('s_endpgm')
A('s_cmp_eq_u32 s3, 7\ns_cbranch_scc1 L_end')
get_role(1)
A('''
s_cmp_lt_u32 s5, 12
s_cbranch_scc1 L_ffn
s_cmp_lt_u32 s5, 20
s_cbranch_scc1 L_end
s_cmp_lt_u32 s3, 5
s_cbranch_scc1 L_f1
s_endpgm
''')

A('L_q2:')
A('s_mov_b32 s69, 0xffff0000')
ws_srds()
mktag()
QX = 0
if opt['dyn'] in (4, 5):
    A(f'''
s_mul_i32 s64, s4, 768
s_add_u32 s64, s64, {TK}
s_add_u32 s65, s79, s73
s_cmp_eq_u32 s65, 0
s_cselect_b32 s64, s64, {WSN}
v_mov_b32 v92, 0
v_mov_b32 v93, 0
v_mov_b32 v94, s30
v_mov_b32 v95, s31
s_mov_b64 exec, 1
buffer_store_dwordx4 v[92:95], off, s[24:27], s64 sc1
s_mov_b64 exec, -1
''')
    QX += 1
if opt['dyn'] == 3:
    A(f'''
s_mul_i32 s64, s6, 768
s_add_u32 s64, s64, {TK}
s_add_u32 s65, s7, s73
s_cmp_eq_u32 s65, 0
s_cselect_b32 s64, s64, {WSN}
v_mov_b32 v91, 0
s_mov_b64 exec, 1
buffer_store_dword v91, off, s[24:27], s64 sc1
s_mov_b64 exec, -1
''')
    QX += 1
A(f's_waitcnt vmcnt({20+QX})')
sd(5)
for i in range(5):
    A(f'v_lshlrev_b32 v{XU+2*i}, 16, v{XS+i}')
    A(f'v_and_b32 v{XU+1+2*i}, s69, v{XS+i}')
A(f'''
v_add_f32 v4, v{XU}, v{XU+1}
v_add_f32 v5, v{XU+2}, v{XU+3}
v_add_f32 v6, v{XU+4}, v{XU+5}
v_add_f32 v7, v{XU+6}, v{XU+7}
v_add_f32 v4, v4, v5
v_add_f32 v6, v6, v7
v_add_f32 v5, v{XU+8}, v{XU+9}
v_add_f32 v4, v4, v6
v_add_f32 v4, v4, v5
''')
allreduce64('v_add_f32', [4], [5])
A(f'v_mul_f32 v4, {f32(1.0/640)}, v4')
for i in range(10): A(f'v_sub_f32 v{XU+i}, v{XU+i}, v4')
A(f'v_mul_f32 v5, v{XU}, v{XU}')
for i in range(1, 10): A(f'v_fmac_f32 v5, v{XU+i}, v{XU+i}')
allreduce64('v_add_f32', [5], [6])
A(f'v_mul_f32 v5, {f32(1.0/640)}, v5')
bf16r(4, 4); bf16r(5, 5)
A(f'v_add_f32 v5, {f32(1e-5)}, v5')
bf16r(5, 5)
A('v_sqrt_f32 v5, v5')
bf16r(5, 5)
A('v_rcp_f32 v5, v5')
A('v_mov_b32 v6, 0')
A(f's_waitcnt vmcnt({10+QX})')
for r in range(10): A(f'v_lshlrev_b32 v{XR+r}, 16, v{XR+r}')
for r in range(10): A(f'v_sub_f32 v{XR+r}, v{XR+r}, v4')
for r in range(10): A(f'v_cvt_pk_bf16_f32 v{XR+r}, v6, v{XR+r}')
for r in range(10): A(f'v_mul_f32 v{XR+r}, v{XR+r}, v5')
for r in range(10):
    A(f'v_cvt_pk_bf16_f32 v{XU+r}, v6, v{XR+r}')
    A(f'v_cvt_pk_bf16_f32 v{XR+r}, v{XR+r}, v6')
for e in range(8): A(f'v_mov_b32 v{QA+e}, 0')
A(f'''
v_and_b32 v90, 7, v0
v_lshrrev_b32 v6, 5, v0
v_lshl_add_u32 v90, v90, 1, v6
v_lshlrev_b32 v90, 4, v90
s_mul_i32 s60, s6, 3
s_add_u32 s60, s60, s73
s_lshl_b32 s60, s60, 11
s_add_u32 s60, s60, {QP}
s_lshl_b32 s64, s7, 8
s_add_u32 s64, s64, s60
''')
for r in range(10):
    A(f's_waitcnt vmcnt({9-r+QX if r < 9 else 0})')
    hstamp(r)
    for e in range(4):
        A(f'v_dot2c_f32_bf16 v{QA+2*e}, v{WQ+4*r+e}, v{XR+r}')
        A(f'v_dot2c_f32_bf16 v{QA+2*e+1}, v{WQ+4*r+e}, v{XU+r}')
mark(1)
if opt['abl'] & 1536 == 512: A('s_endpgm')
for e in range(4): A(f'{S32} v{QA+e}, v{QA+e+4}')
for e in range(4): A(f'v_add_f32 v{QA+e}, v{QA+e}, v{QA+e+4}')
swapreduce(S16, 'v_add_f32', [QA + e for e in range(4)], [QA + 4 + e for e in range(4)])
for e in range(4): A(f'v_add_f32_dpp v{QA+e}, v{QA+e}, v{QA+e} row_ror:8 {DPPM}')
for e in range(3):
    A(f's_mov_b32 s68, 0x070605{e+1:02x}\nv_perm_b32 v{QA+e}, v{QA+e}, v{QA+3}, s68')
A(f'v_mov_b32 v{QA+3}, s30')
QM = 0x000000ff000000ff
if not opt['forceslow'] and not opt['abl'] & 2:
    setexec(QM)
    A(f'buffer_store_dwordx4 v[{QA}:{QA+3}], v90, s[32:35], s64 offen')
    setexec(ALL)
A('''
v_lshlrev_b32 v2, 4, v0
v_and_b32 v3, 15, v0
v_lshl_add_u32 v3, v3, 1, v6
v_lshlrev_b32 v3, 2, v3
s_lshl_b32 s69, s73, 7
v_add_u32 v3, s69, v3
v_mov_b32 v1, 0
s_mov_b32 s65, 0
s_mov_b32 s61, 0x0c04000c
s_mov_b32 s62, 0x0402010c
''')
def q_lazy():
    skip = newlabel('qlazy')
    A(f'''
ds_read_b32 v4, v1 offset:{INFO}
s_waitcnt lgkmcnt(0)
v_readfirstlane_b32 s46, v4
s_sub_u32 s68, s46, s65
s_cmp_lg_u32 s68, 2
s_cbranch_scc1 {skip}
''')
    setexec(QM)
    A(f'buffer_store_dwordx4 v[{QA}:{QA+3}], v90, s[24:27], s64 offen sc1')
    setexec(ALL)
    A(f's_mov_b32 s65, 1\n{skip}:')
def body():
    for n in range(2):
        A(f'buffer_load_dwordx4 v[{8+4*n}:{11+4*n}], v2, s[16:19], s60 offen offset:{1024*n}{LF}')
    A('s_waitcnt vmcnt(0)')
    A('v_cmp_ne_u32 vcc, s30, v11\nv_cmp_ne_u32 s[20:21], s30, v15\ns_or_b64 vcc, vcc, s[20:21]')
sleep(opt['qdelay'])
if not opt['abl'] & 34: spin2(body, opt['qsleep'], retry=q_lazy)
mark(2)
for n in (8, 12):
    A(f'v_perm_b32 v{n+3}, v{n+1}, v{n}, s61\nv_perm_b32 v{n+3}, v{n+2}, v{n+3}, s62')
for e in range(4): A(f'v_add_f32 v{8+e}, v{8+e}, v{12+e}')
A(f'{S32} v8, v10\n{S32} v9, v11\nv_add_f32 v8, v8, v10\nv_add_f32 v9, v9, v11')
swapreduce(S16, 'v_add_f32', [8, 9], [10, 11])
A(f'''
v_cvt_pk_bf16_f32 v8, v8, v9
ds_write_b32 v3, v8 offset:{QL}
''')
get_mode()
q_lazy()
A(f'''
s_lshl_b32 s69, s73, 3
v_mov_b32 v4, s69
v_mov_b32 v6, 1
s_waitcnt vmcnt(0) lgkmcnt(0)
ds_write_b32 v4, v6 offset:{QF}
''')
if opt['abl'] & 16: A('s_endpgm')
A('s_cmp_lg_u32 s3, 8\ns_cbranch_scc1 L_role')
if opt['dyn'] == 1:
    lds_wait_ge(CNT + 8, 8, 2)
    A('''
s_lshl_b32 s68, s4, 3
s_lshl_b64 s[20:21], 1, s68
v_mov_b32 v6, s20
v_mov_b32 v7, s21
s_mov_b64 exec, 1
global_atomic_add_x2 v[4:5], v1, v[6:7], s[56:57] sc0 sc1
s_waitcnt vmcnt(0)
v_readfirstlane_b32 s20, v4
v_readfirstlane_b32 s21, v5
s_lshr_b64 s[22:23], s[20:21], s68
s_and_b32 s22, s22, 31
s_and_b32 s23, s20, 0xff
''')
    for i in range(1, 8):
        A(f's_bfe_u32 s69, s{20 + i // 4}, {(8 << 16) | (8 * (i % 4))}\ns_min_u32 s23, s23, s69')
    A('s_lshl_b32 s23, s23, 8\ns_add_u32 s22, s22, s23\ns_add_u32 s22, s22, 1\nv_mov_b32 v5, s22')
elif opt['dyn'] == 2:
    lds_wait_ge(CNT + 8, 8, 2)
    A('''
s_lshl_b32 s68, s4, 5
v_mov_b32 v6, s68
v_mov_b32 v5, 1
s_mov_b64 exec, 1
global_atomic_add v5, v6, v5, s[56:57] sc0 sc1
s_waitcnt vmcnt(0)
v_and_b32 v5, 31, v5
v_add_u32 v5, 1, v5
''')
elif opt['dyn'] == 4:
    A(f's_mul_i32 s66, s4, 768\ns_add_u32 s66, s66, {TK}')
    def body():
        A('buffer_load_dwordx4 v[4:7], off, s[24:27], s66 sc1')
        A('s_waitcnt vmcnt(0)')
        tagcheck([6])
    spin(body, 20)
    lds_wait_ge(CNT + 8, 8, 2)
    A(f'''
v_mov_b32 v5, 1
s_mov_b64 exec, 1
buffer_atomic_add v5, off, s[24:27], s66 sc0 sc1
s_waitcnt vmcnt(0)
v_and_b32 v5, 31, v5
v_add_u32 v5, 1, v5
''')
elif opt['dyn'] == 5:
    A(f'''
s_mul_i32 s66, s4, 768
s_add_u32 s66, s66, {TK}
s_mov_b32 s70, {SPIN}
s_load_dwordx4 s[20:23], s[58:59], s66
s_branch L_tkw0
L_tkchk:
s_load_dwordx4 s[20:23], s[58:59], s66 glc
L_tkw0:
s_waitcnt lgkmcnt(0)
s_cmp_eq_u64 s[22:23], s[30:31]
s_cbranch_scc1 L_tkok
s_sleep 20
s_sub_u32 s70, s70, 1
s_cbranch_scc0 L_tkchk
''')
    trap(204)
    A('L_tkok:')
    lds_wait_ge(CNT + 8, 8, 1)
    A(f'''
s_mov_b32 s20, 1
s_atomic_add s20, s[58:59], s66 glc
''')
    if opt['mA'] or opt['mB']:
        A(f'''
s_load_dword s21, s[56:57], 0
s_waitcnt lgkmcnt(0)
s_cmp_eq_u32 s20, {opt['mA'] - 1}
s_cselect_b32 s22, 1, 0
s_cmp_eq_u32 s20, {opt['mB'] - 1}
s_cselect_b32 s23, 0x100, 0
s_or_b32 s22, s22, s23
s_cbranch_scc0 L_nog
s_atomic_add s22, s[56:57], 0
L_nog:
s_lshl_b32 s21, s21, 8
''')
    else: A('s_mov_b32 s21, 0')
    A(f'''
s_mov_b64 exec, 1
s_waitcnt lgkmcnt(0)
s_and_b32 s20, s20, 31
s_add_u32 s20, s20, 1
s_add_u32 s20, s20, s21
v_mov_b32 v5, s20
''')
elif opt['dyn'] == 3:
    lds_wait_ge(CNT + 8, 8, 2)
    A(f'''
s_mul_i32 s68, s6, 768
s_add_u32 s68, s68, {TK}
v_mov_b32 v5, 1
s_mov_b64 exec, 1
buffer_atomic_add v5, off, s[24:27], s68 sc0 sc1
s_and_b32 s68, s6, 3
s_add_u32 s68, s68, 1
s_waitcnt vmcnt(0)
v_and_b32 v5, 7, v5
v_lshl_add_u32 v5, v5, 2, s68
''')
else:
    A('s_add_u32 s68, s79, 1\nv_mov_b32 v5, s68\ns_mov_b64 exec, 1')
A(f'''
ds_write_b32 v1, v5 offset:{ROLE}
s_mov_b64 exec, -1
''')
mark(4)
flush([(1, 1), (2, 2), (4, 6)])
A('s_branch L_role')

A('L_misc2:')
if opt['abl'] & 1536 == 512: A('s_endpgm')
A('s_getreg_b32 s64, hwreg(HW_REG_XCC_ID)')
ws_srds()
NP = opt['nprobe']
if opt['near']:
    A(f'''
v_and_b32 v1, 31, v0
v_lshlrev_b32 v1, 4, v1
v_lshrrev_b32 v2, 5, v0
v_lshl_add_u32 v1, v2, 13, v1
s_lshl_b32 s66, s{79 if opt['shp'] else 2}, {11 if opt['shp'] else 9}
s_and_b32 s68, s66, 0xffffe000
s_add_u32 s66, s66, s68
s_add_u32 s66, s66, {PR}
v_mov_b32 v6, 0
v_mov_b32 v7, 0
''')
    A(f"s_cmp_ge_u32 s79, {opt['npw']}\ns_cbranch_scc1 L_nopr0")
    if opt['shp']: A('s_cmp_lg_u32 s4, 0\ns_cbranch_scc1 L_nopr0')
    setexec(((1 << (8 * NP)) - 1) * 0x100000001)
    A('buffer_store_dwordx4 v[4:7], v1, s[24:27], s66 offen sc1')
    setexec(ALL)
    A('L_nopr0:')
mktag()
sleep(opt['idpre'])
A(f'''
{'s_mov_b32 s46, 1' + chr(10) + 's_branch L_idset' if opt['abl'] & 1 else ''}
s_and_b32 s64, s64, 15
v_mov_b32 v4, s30
v_mov_b32 v5, s31
v_mov_b32 v6, s64
v_mov_b32 v7, s64
s_lshl_b32 s68, s4, 9
s_add_u32 s68, s68, {ID}
s_lshl_b32 s69, s79, 4
v_mov_b32 v1, s69
s_mov_b64 exec, 1
buffer_store_dwordx4 v[4:7], v1, s[32:35], s68 offen
s_mov_b64 exec, -1
v_and_b32 v1, 31, v0
v_lshlrev_b32 v1, 4, v1
s_mov_b32 s70, {opt['idtries']}
s_mov_b32 s46, 2
L_idpoll:
s_sleep {opt['idsleep']}
buffer_load_dwordx4 v[8:11], v1, s[32:35], s68 offen{LF}
s_waitcnt vmcnt(0)
v_cmp_ne_u64 vcc, s[30:31], v[8:9]
s_nop 0
s_cbranch_vccz L_iddone
s_sub_u32 s70, s70, 1
s_cbranch_scc0 L_idpoll
s_branch L_idset
L_iddone:
v_cmp_ne_u32 vcc, s64, v10
s_nop 0
s_cbranch_vccnz L_idset
s_mov_b32 s46, {2 if opt['forceslow'] else 1}
L_idset:
v_mov_b32 v1, 0
v_mov_b32 v4, s46
ds_write_b32 v1, v4 offset:{INFO}
''')
mark(1)
if opt['near']:
    A(f's_mov_b32 s60, -1\ns_mov_b32 s61, -1\ns_lshl_b32 s67, s4, 9\ns_add_u32 s67, s67, {PV}')
    A(f"s_cmp_ge_u32 s79, {opt['npw']}\ns_cbranch_scc1 L_nopr1\ns_waitcnt lgkmcnt(0)")
    for i in range(NP):
        for c in range(2):
            A(f'''
s_add_u32 s69, s66, {128*i + 8192*c}
s_memtime s[62:63]
s_waitcnt lgkmcnt(0)
s_load_dword s65, s[58:59], s69
s_waitcnt lgkmcnt(0)
s_memtime s[20:21]
s_waitcnt lgkmcnt(0)
s_sub_u32 s62, s20, s62
s_min_u32 s{60+c}, s{60+c}, s62
''')
    if opt['share']:
        A(f'''
s_lshl_b32 s69, s79, 4
v_mov_b32 v1, s69
v_mov_b32 v4, s60
v_mov_b32 v5, s61
v_mov_b32 v6, s30
v_mov_b32 v7, s31
s_mov_b64 exec, 1
buffer_store_dwordx4 v[4:7], v1, s[32:35], s67 offen
s_mov_b64 exec, -1
''')
    A('L_nopr1:')
else:
    A('s_mov_b32 s47, 0')
mark(2)
if opt['abl'] & 1024: A('s_endpgm')
A('v_and_b32 v1, 7, v0\nv_lshlrev_b32 v1, 4, v1')
def body():
    A(f'ds_read_b128 v[4:7], v1 offset:{SL}')
    A('s_waitcnt lgkmcnt(0)')
    A('v_cmp_eq_u32 vcc, 0, v7')
spin(body, 4)
def combine_stats():
    A(f's_mov_b32 s68, {f32(LOG2E)}')
    A('v_mov_b32 v2, v4')
    allreduce8('v_max_f32', [2])
    A('v_sub_f32 v4, v4, v2\nv_mul_f32 v4, s68, v4\nv_exp_f32 v4, v4\nv_mul_f32 v3, v4, v5')
    allreduce8('v_add_f32', [3])
combine_stats()
A(f'''
s_lshl_b32 s68, s71, 4
s_add_u32 s68, s68, {ST}
v_mov_b32 v4, s30
v_mov_b32 v5, s31
''')
publish([(1, 'buffer_store_dwordx4 v[2:5], v1, @, s68 offen')])
if opt['near']:
    if opt['share']:
        A(f'''
s_cmp_lg_u32 s46, 1
s_cbranch_scc1 L_noshare
v_and_b32 v8, {7 if opt['npw'] <= 8 else 31}, v0
v_lshlrev_b32 v8, 4, v8
buffer_load_dwordx4 v[4:7], v8, s[32:35], s67 offen{LF}
s_waitcnt vmcnt(0)
v_cmp_eq_u64 vcc, s[30:31], v[6:7]
v_cndmask_b32 v4, -1, v4, vcc
v_cndmask_b32 v5, -1, v5, vcc
''')
        allreduce16('v_min_u32', [4, 5])
        swapreduce(S16, 'v_min_u32', [4, 5], [6, 7])
        A('''
v_readfirstlane_b32 s62, v4
v_readfirstlane_b32 s63, v5
s_min_u32 s60, s60, s62
s_min_u32 s61, s61, s63
L_noshare:
''')
    A('s_cmp_lt_u32 s61, s60\ns_cselect_b32 s47, 8192, 0')
    if opt['fixnear'] >= 0: A(f"s_mov_b32 s47, {8192*opt['fixnear']}")
    if STAMPS: A('s_mov_b32 s90, s60\ns_mov_b32 s91, s61')
A(f'v_mov_b32 v8, 0\nv_mov_b32 v4, s47\nds_write_b32 v8, v4 offset:{NEAR}')
A(f's_lshl_b32 s74, s6, 7\ns_add_u32 s74, s74, {ST}')
def body():
    sleep(opt['stsleep'])
    A(f'buffer_load_dwordx4 v[4:7], v1, s[16:19], s74 offen{LF}')
    A('s_waitcnt vmcnt(0)')
    tagcheck([6])
spin2(body, 0, local_only=True)
mark(3)
combine_stats()
A(f'''
v_rcp_f32 v3, v3
v_mov_b32 v4, 1
v_mov_b32 v5, 1
v_mov_b32 v1, 0
ds_write_b128 v1, v[2:5] offset:{GS}
''')
flush([(1, 3), (2, 4), (3, 5), (5, 7)])
if opt['abl'] & 16: A('s_endpgm')
if opt['nA'] or (opt['nB'] and opt['hintB'] == 1):
    lds_wait_ge(CNT + 4, 8, 1)
    A(f'''
s_lshl_b32 s68, s4, 9
s_lshl4_add_u32 s68, s79, s68
s_add_u32 s68, s68, {DN1}
v_mov_b32 v6, s30
v_mov_b32 v7, s31
s_mov_b64 exec, 1
buffer_store_dwordx4 v[4:7], v1, s[32:35], s68 offen
s_mov_b64 exec, -1
''')

A('L_role:')
get_role(opt['rsleep'])
A('s_cmp_lt_u32 s5, 20\ns_cbranch_scc0 ' + ('L_tiles' if opt['tearly'] else 'L_end'))
BW = 64
XM = 52
def tr_addr(dst, tmp):
    A(f'''
v_lshrrev_b32 v{dst}, 4, v0
v_mul_u32_u24 v{dst}, {BK}, v{dst}
v_bfe_u32 v{tmp}, v0, 2, 2
v_lshl_add_u32 v{dst}, v{tmp}, 7, v{dst}
v_and_b32 v{tmp}, 3, v0
v_lshl_add_u32 v{dst}, v{tmp}, 3, v{dst}
''')
srd(12, 44, 6144 * 640 * 2)
tr_addr(24, 25)
A(f'''
s_cmp_ge_u32 s5, 10
s_cselect_b32 s76, 1, 0
s_mul_i32 s77, s76, 10
s_sub_u32 s77, s5, s77
s_lshl1_add_u32 s78, s4, s76
s_lshl2_add_u32 s78, s78, s73
v_lshrrev_b32 v2, 3, v0
v_mul_u32_u24 v26, 1280, v2
v_and_b32 v3, 7, v0
{'v_and_b32 v4, 2, v2' if opt['swz'] else ''}
{'v_lshlrev_b32 v4, 1, v4' if opt['swz'] == 2 else ''}
{'v_xor_b32 v3, v3, v4' if opt['swz'] else ''}
v_lshl_add_u32 v26, v3, 4, v26
v_xor_b32 v56, {64 if opt['swz'] == 1 else 0}, v26
s_mul_i32 s60, s78, {96*1280}
s_lshl_b32 s69, s77, 7
s_add_u32 s60, s60, s69
s_mul_i32 s61, s73, {12 * BK}
v_add_u32 v24, s61, v24
{('v_mov_b32 v4, 0', 'v_bfe_u32 v4, v0, 3, 2', 'v_bfe_u32 v4, v0, 3, 1' + chr(10) + 'v_lshlrev_b32 v4, 1, v4')[opt['swz']]}
v_xor_b32 v5, 1, v4
v_lshl_add_u32 v25, v5, 5, v24
v_xor_b32 v5, 2, v4
v_lshl_add_u32 v30, v5, 5, v24
v_xor_b32 v5, 3, v4
v_lshl_add_u32 v31, v5, 5, v24
v_lshl_add_u32 v24, v4, 5, v24
s_add_u32 s61, s61, {WL}
v_lshlrev_b32 v60, 4, v0
s_mul_i32 s74, s78, 3072
s_add_u32 s74, s74, {OP}
v_lshlrev_b32 v62, 2, v0
s_lshl_b32 s68, s73, 8
v_add_u32 v61, s68, v62
s_mul_i32 s75, s4, 5120
s_lshl_b32 s69, s5, 8
s_add_u32 s75, s75, s69
s_and_b32 s69, s75, 0xffffe000
s_add_u32 s75, s75, s69
s_add_u32 s75, s75, {YP}
s_xor_b32 s{62 + (opt['ord'] & 1)}, s47, 8192
s_add_u32 s{62 + (opt['ord'] & 1)}, s{62 + (opt['ord'] & 1)}, s75
s_add_u32 s{63 - (opt['ord'] & 1)}, s47, s75
s_mov_b32 s66, {'0xaaaaaaaa' if opt['opl'] else '0xff00ff00'}
s_mov_b32 s67, {'0xaaaaaaaa' if opt['opl'] else '0xff00ff00'}
v_mov_b32 v50, s30
v_mov_b32 v51, s31
v_mov_b32 v28, 0
v_mov_b32 v29, 1
v_cndmask_b32 v{XM}, 0, v50, s[66:67]
v_cndmask_b32 v{XM+1}, 0, v51, s[66:67]
v_cndmask_b32 v{XM+2}, v50, 0, s[66:67]
v_cndmask_b32 v{XM+3}, v51, 0, s[66:67]
''')
AO = 8
RF = ' sc1' if opt['fnt'] else LF
def op_loads(srdn, fl=LF, AO=8):
    for t in range(3):
        A(f'buffer_load_dwordx4 v[{AO+4*t}:{AO+4*t+3}], v60, s[{srdn}:{srdn+3}], s74 offen offset:{1024*t}{fl}')
def wo_one(n):
    A('s_mov_b32 m0, s61')
    if not opt['abl'] & 64: A(f'buffer_load_dwordx4 v{(26, 56)[n & 1]}, s[12:15], s60 offen nt lds')
    if n < 11:
        A(f's_add_u32 s60, s60, {8*1280}')
        A(f's_add_u32 s61, s61, {BK}')
if opt['prer'] == 2: op_loads(32)
for n in range(opt['wpre']):
    if n >= opt['wpw']: A(f"s_waitcnt vmcnt({opt['wpw']-1})")
    wo_one(n)
lds_wait_ge(CNT + 4, 8, 1)
hint_wait(DN1, opt['nA'])
mark(3)
if opt['prer'] == 1: op_loads(32)
DW = opt['DWO'] if not opt['nb1'] else 12
def wo_issue(DW, nb1):
    for n in range(opt['wpre'], 12):
        if n >= DW: A(f's_waitcnt vmcnt({DW-1})')
        if nb1 and n == nb1: lds_wait_ge(INFO + 4, 1, 1)
        wo_one(n)
if opt['mA']:
    A(f"s_and_b32 s68, s28, 0xff\ns_cmp_ge_u32 s68, {opt['GA']}\ns_cbranch_scc1 L_wofast")
    wo_issue(opt['gA'], 0)
    A('s_branch L_wodone\nL_wofast:')
wo_issue(DW, opt['nb1'])
A('L_wodone:')
if opt['oppipe']:
    A(f's_cmp_eq_u32 s46, 1\ns_cselect_b32 s16, s32, s24\ns_cselect_b32 s17, s33, s25\ns_mov_b32 s18, {WSN}\ns_mov_b32 s19, 0x20000\ns_mov_b32 s70, {SPIN}')
    assert opt['ope'] >= 0
E = 0
for t in range(3):
    if t == 2 and opt['ope'] >= 0:
        A(f"s_waitcnt vmcnt({opt['ope']})")
        if opt['opdiag']: mark(1)
        op_loads(32, RF); E = 3
    if opt['hist']:
        for m in range(11 - 4 * t, 7 - 4 * t, -1):
            if m < DW: A(f's_waitcnt vmcnt({m + E})'); hstamp(21 - m)
    A(f's_waitcnt vmcnt({8 - 4 * t + E})')
    for u in range(4):
        r = BW + 4 * (4 * t + u)
        A(f'ds_read_b64_tr_b16 v[{r}:{r+1}], v{(24, 25, 30, 31)[u]} offset:{WL + 4*BK*t}')
        A(f'ds_read_b64_tr_b16 v[{r+2}:{r+3}], v{(24, 25, 30, 31)[u]} offset:{WL + 4*BK*t + 512}')
mark(4)
if not E:
    lds_wait_ge(CNT, 8, 1)
    if opt['opdiag']: mark(1)
    op_loads(32, RF if opt['prer'] else LF)
else: A('s_waitcnt lgkmcnt(8)' if not STAMPS else 's_waitcnt lgkmcnt(0)')
def op_use(AO, later):
    for t in range(3):
        A(f's_waitcnt vmcnt({2-t+later})' + (' lgkmcnt(0)' if t == 2 else ''))
        q = AO + 4 * t
        for e in range(4): A(f'v_xor_b32 v{q+e}, v{q+e}, v{XM+e}')
        for u in range(4):
            r = BW + 4 * (4 * t + u)
            c = '0' if t == 0 else f'v[{32+4*u}:{35+4*u}]'
            A(f'v_mfma_f32_16x16x32_bf16 v[{32+4*u}:{35+4*u}], v[{q}:{q+3}], v[{r}:{r+3}], {c}')
        if t == 0:
            A(f'v_or_b32 v2, v{q}, v{q+1}\nv_or_b32 v3, v{q+2}, v{q+3}')
        else:
            A(f'v_or3_b32 v2, v2, v{q}, v{q+1}\nv_or3_b32 v3, v3, v{q+2}, v{q+3}')
    A('v_cndmask_b32 v2, v3, v2, s[66:67]')
    A('v_cmp_ne_u32 vcc, 0, v2')
if not opt['oppipe']:
    def body():
        op_loads(16, RF)
        A('L_opw0:')
        op_use(8, 0)
    spin2(body, 0, local_only=True, enter='L_opw0')
elif not opt['opchk']:
    A('L_opp:')
    op_loads(16, RF, 124)
    op_use(8, 3)
    A('s_nop 0\ns_cbranch_vccz L_opd')
    sleep(opt['opsl'])
    op_loads(32, RF, 8)
    op_use(124, 3)
    A('s_nop 0\ns_cbranch_vccz L_opd')
    sleep(opt['opsl'])
    A('s_sub_u32 s70, s70, 1\ns_cbranch_scc0 L_opp')
    trap(201)
    A('L_opd:')
else:
    def op_check(AO):
        for t in range(3):
            A(f's_waitcnt vmcnt({5-t})')
            q = AO + 4 * t
            for e in range(4): A(f'v_xor_b32 v{q+e}, v{q+e}, v{XM+e}')
            if t == 0: A(f'v_or_b32 v2, v{q}, v{q+1}\nv_or_b32 v3, v{q+2}, v{q+3}')
            else: A(f'v_or3_b32 v2, v2, v{q}, v{q+1}\nv_or3_b32 v3, v3, v{q+2}, v{q+3}')
        A('v_cndmask_b32 v2, v3, v2, s[66:67]\nv_cmp_ne_u32 vcc, 0, v2')
    def op_mfma(AO):
        A('s_waitcnt lgkmcnt(0)')
        for t in range(3):
            for u in range(4):
                r = BW + 4 * (4 * t + u); q = AO + 4 * t
                c = '0' if t == 0 else f'v[{32+4*u}:{35+4*u}]'
                A(f'v_mfma_f32_16x16x32_bf16 v[{32+4*u}:{35+4*u}], v[{q}:{q+3}], v[{r}:{r+3}], {c}')
    A('L_opp:')
    op_loads(16, RF, 124)
    op_check(8)
    A('s_nop 0\ns_cbranch_vccz L_opd0')
    op_loads(32, RF, 8)
    op_check(124)
    A('s_nop 0\ns_cbranch_vccz L_opd1\ns_sub_u32 s70, s70, 1\ns_cbranch_scc0 L_opp\nL_opd1:')
    op_mfma(124)
    A('s_branch L_opd\nL_opd0:')
    op_mfma(8)
    A('L_opd:')
mark(5)
for u in range(4):
    A(f'v_add_f32 v{4+u}, v{32+4*u}, v{33+4*u}\nv_add_f32 v{20+u}, v{34+4*u}, v{35+4*u}')
for u in range(4): A(f'v_add_f32 v{4+u}, v{4+u}, v{20+u}')
A(f'''
{S32} v4, v6
{S32} v5, v7
v_add_f32 v4, v4, v6
v_add_f32 v5, v5, v7
{S16} v4, v5
v_add_f32 v4, v4, v5
ds_write_b32 v61, v4 offset:{RL}
''')
if opt['spec'] & 2:
    A(f'''
s_mov_b64 exec, 1
ds_add_rtn_u32 v27, v28, v29 offset:{CNT + 12}
s_mov_b64 exec, -1
ds_read2st64_b32 v[4:5], v62 offset0:{RL // 256} offset1:{RL // 256 + 1}
ds_read2st64_b32 v[6:7], v62 offset0:{RL // 256 + 2} offset1:{RL // 256 + 3}
s_waitcnt lgkmcnt(2)
v_readfirstlane_b32 s68, v27
s_cmp_lg_u32 s68, 3
s_cbranch_scc1 {'L_opdiag' if opt['opdiag'] else 'L_end'}
s_waitcnt lgkmcnt(0)
''')
else:
    A(f'''
s_cmp_lg_u32 s3, 8
s_waitcnt lgkmcnt(0)
s_barrier
s_cbranch_scc1 {'L_opdiag' if opt['opdiag'] else 'L_end'}
ds_read_b32 v5, v62 offset:{RL+256}
ds_read_b32 v6, v62 offset:{RL+512}
ds_read_b32 v7, v62 offset:{RL+768}
s_waitcnt lgkmcnt(0)
''')
A(f'''
v_add_f32 v4, v4, v5
v_add_f32 v6, v6, v7
v_add_f32 v48, v4, v6
v_mov_b32_dpp v49, v48 quad_perm:[1,0,3,2] {DPPM}
v_cvt_pk_bf16_f32 v48, v48, v49
v_mov_b32_dpp v49, v48 quad_perm:[2,3,0,1] {DPPM}
''')
setexec(0x1111111111111111)
if opt['near']: A('buffer_store_dwordx4 v[48:51], v62, s[24:27], s62 offen sc1')
A('buffer_store_dwordx4 v[48:51], v62, s[24:27], s63 offen sc1')
mark(6)
A('s_barrier')
if opt['wbl']:
    A(f"s_cmp_lg_u32 s5, {opt['wbl']}\ns_cbranch_scc1 L_nowb\nbuffer_wbl2 sc1\nL_nowb:")
if STAMPS:
    A('s_mov_b32 s94, s5\ns_mov_b32 s95, 0')
flush([(3, 11), (4, 12), (5, 13), (6, 14), (7, 15)])
if opt['opdiag']:
    A(f'''
L_opdiag:
s_lshl_b32 s98, s2, 8
s_lshl_b32 s97, s73, 5
s_add_u32 s98, s98, s97
s_add_u32 s98, s98, {HB}
s_sub_u32 s97, {SPIN}, s70
s_waitcnt lgkmcnt(0)
v_mov_b32 v4, s86
v_mov_b32 v5, s88
v_mov_b32 v6, s90
v_mov_b32 v7, s97
v_mov_b32 v8, s82
v_mov_b32 v9, s5
v_mov_b32 v1, 0
s_mov_b64 exec, 1
buffer_store_dwordx4 v[4:7], v1, s[24:27], s98 offen
buffer_store_dwordx2 v[8:9], v1, s[24:27], s98 offen offset:16
''')
A('s_endpgm')

if opt['tearly']:
    A('L_tiles:')
    srd(12, 48, 640 * 1536 * 2); srd(16, 50, 640 * 1536 * 2)
    A(f'''
s_sub_u32 s75, s5, 20
s_lshr_b32 s78, s75, 2
s_and_b32 s75, s75, 3
s_mul_i32 s72, s75, {160*3072}
s_mul_i32 s68, s73, {8*3072}
s_add_u32 s72, s72, s68
s_mul_i32 s68, s4, 3
s_add_u32 s78, s78, s68
s_lshl_b32 s68, s78, 7
s_add_u32 s72, s72, s68
s_mul_i32 s61, s73, {BK}
s_add_u32 s61, s61, {WL}
v_lshrrev_b32 v2, 3, v0
v_and_b32 v3, 7, v0
{'v_and_b32 v4, 2, v2' + chr(10) + 'v_xor_b32 v3, v3, v4' + chr(10) + 's_and_b32 s68, s73, 1' + chr(10) + 's_lshl_b32 s68, s68, 2' + chr(10) + 'v_xor_b32 v3, s68, v3' if opt['swz'] == 1 else ''}
{'v_and_b32 v4, 2, v2' + chr(10) + 'v_lshlrev_b32 v4, 1, v4' + chr(10) + 'v_xor_b32 v3, v3, v4' if opt['swz'] == 2 else ''}
v_mul_u32_u24 v62, 3072, v2
v_lshl_add_u32 v62, v3, 4, v62
''')
    hint_wait(DN1 if opt['hintB'] == 1 else DN2, opt['nB'])
    if opt['tB'] == 0: lds_wait_ge(CNT + 4, 8, 1)
    elif opt['tB'] == 9: lds_wait_ge(INFO + 4, 1, 1)
    else: lds_wait_ge(CNT, opt['tB'], 1)
    mark(3)
    def tile_issue(DW, nb1):
        n = 0
        for t in range(5):
            for m in range(2):
                if n >= DW: A(f"s_waitcnt vmcnt({DW-1})")
                if nb1 and n == nb1: lds_wait_ge(INFO + 4, 1, 1)
                A(f's_add_u32 m0, s61, {8*BK*t + 4*BK*m}')
                if not opt['abl'] & 128: A(f'buffer_load_dwordx4 v62, s[{12+4*m}:{15+4*m}], s72 offen nt lds')
                n += 1
            if t < 4: A(f's_add_u32 s72, s72, {32*3072}')
    if opt['mB']:
        A(f"s_lshr_b32 s68, s28, 8\ns_cmp_ge_u32 s68, {opt['GB']}\ns_cbranch_scc1 L_tfast")
        lds_wait_ge(INFO + 4, 1, 1)
        tile_issue(opt['gB'], 0)
        A('s_branch L_tdone\nL_tfast:')
    tile_issue(opt['DWB'], opt['nb1B'])
    A('L_tdone:')
    if opt['hist']:
        for m in reversed(range(opt['DWB'])):
            A(f's_waitcnt vmcnt({m})'); hstamp(39 - m)
    A('s_waitcnt vmcnt(0)')
    mark(4)
    A('s_barrier')
    if STAMPS:
        A('s_cmp_lg_u32 s3, 8\ns_cbranch_scc1 L_end')
        flush([(3, 18), (4, 19)])
    A('s_endpgm')

assert opt['tearly']
B1R = 64
AR = 24
HRDY = CNT + 12
def yp_loads(fl='', b=104):
    A(f'buffer_load_dwordx4 v[{b}:{b+3}], v53, s[24:27], s60 offen sc1' + fl)
    A(f'buffer_load_dwordx4 v[{b+4}:{b+7}], v59, s[24:27], s60 offen sc1' + fl)
A('L_f1:')
tr_addr(58, 5)
A(f"""
s_sub_u32 s75, s5, 20
s_lshr_b32 s78, s75, 2
s_and_b32 s75, s75, 3
s_mul_i32 s74, s75, 5
s_add_u32 s74, s74, s3
s_mul_i32 s68, s4, 3
s_add_u32 s78, s78, s68
{('v_mov_b32 v4, 0', 'v_bfe_u32 v4, v0, 3, 2', 'v_bfe_u32 v4, v0, 3, 1' + chr(10) + 'v_lshlrev_b32 v4, 1, v4')[opt['swz']]}
v_xor_b32 v4, s3, v4
v_lshl_add_u32 v58, v4, 5, v58
v_lshrrev_b32 v3, 4, v0
v_and_b32 v2, 7, v0
v_lshl_add_u32 v50, v2, 2, v3
v_lshlrev_b32 v50, 1, v50
s_lshl_b32 s68, s74, 6
v_add_u32 v61, s68, v50
s_lshl_b32 s68, s3, 6
v_add_u32 v51, s68, v50
v_lshlrev_b32 v52, 4, v3
v_lshlrev_b32 v54, 3, v0
v_lshrrev_b32 v53, 3, v0
v_mul_u32_u24 v53, 2560, v53
v_lshl_add_u32 v53, v2, 4, v53
s_lshl_b32 s68, s74, 7
v_add_u32 v53, s68, v53
v_add_u32 v59, {8*2560}, v53
s_add_u32 s60, s47, {YP}
v_lshlrev_b32 v55, 4, v0
v_mov_b32 v57, 0
s_lshl2_add_u32 s76, s78, s3
s_lshl2_add_u32 s76, s76, s75
s_lshl_b32 s76, s76, 8
s_add_u32 s76, s76, {PA}
s_lshl3_add_u32 s68, s78, s75
s_lshl_b32 s68, s68, 4
s_add_u32 s68, s68, {PS}
s_lshl2_add_u32 s69, s4, s75
s_mul_i32 s69, s69, 640
s_add_u32 s69, s69, {PH}
v_add_u32 v63, s69, v55
v_mov_b32 v4, s68
s_mov_b32 s8, 0
s_mov_b32 s9, 0x100
v_cndmask_b32 v63, v63, v4, s[8:9]
s_cmp_lt_u32 s5, 24
s_cselect_b32 s62, -1, 0
s_cselect_b32 s63, 0xff, 0
s_or_b32 s63, s63, 0x100
v_mov_b32 v14, s30
v_mov_b32 v15, s31
v_mov_b32 v44, 0x3f803f80
v_mov_b32 v45, 0x3f803f80
v_mov_b32 v46, 0x3f803f80
v_mov_b32 v47, 0x3f803f80
v_mov_b32 v8, 0
v_mov_b32 v9, 0
v_mov_b32 v10, 0
v_mov_b32 v11, 0
v_mov_b32 v112, 0x3f80
v_mov_b32 v113, 0x3f800000
v_mov_b32 v16, 0
v_mov_b32 v20, 0
""")
place(53, 4); place(59, 4)
A('global_load_ushort v56, v61, s[36:37]')
A('s_setprio 3\ns_barrier')
yp_loads()
mark(4)
A('s_cmp_eq_u32 s3, 4\ns_cbranch_scc1 L_f1nob')
for t in range(5):
    for m in range(2):
        r = B1R + 4 * (2 * t + m)
        A(f'ds_read_b64_tr_b16 v[{r}:{r+1}], v58 offset:{WL + 8*BK*t + 4*BK*m}')
        A(f'ds_read_b64_tr_b16 v[{r+2}:{r+3}], v58 offset:{WL + 8*BK*t + 4*BK*m + 512}')
A('s_waitcnt lgkmcnt(0)')
for t in range(5):
    for m in range(2):
        r = B1R + 4 * (2 * t + m); d = (116, 124)[m]
        A(f"v_mfma_f32_16x16x32_bf16 v[{d}:{d+3}], v[44:47], v[{r}:{r+3}], {'0' if t == 0 else 'v[%d:%d]' % (d, d+3)}")
A('L_f1nob:')
A('s_waitcnt vmcnt(2)\nv_lshlrev_b32 v56, 16, v56')
A(f's_mov_b32 s70, {SPIN}')
def yp_use(b):
    mark(5)
    for n in (b, b + 4):
        A(f'v_dot2c_f32_bf16 v8, v{n}, v112\nv_dot2c_f32_bf16 v10, v{n+1}, v112\nv_dot2c_f32_bf16 v9, v{n}, v113\nv_dot2c_f32_bf16 v11, v{n+1}, v113')
if not opt['yppipe']:
    A('s_branch L_ypw0')
    A('L_yppoll:')
    yp_loads()
    A('L_ypw0:')
    A('s_waitcnt vmcnt(0)')
    tagcheck([106, 110])
    A('s_nop 0\ns_cbranch_vccz L_ypok')
    sleep(opt['ysl'])
    A('s_sub_u32 s70, s70, 1\ns_cbranch_scc0 L_yppoll')
    trap(202)
    A('L_ypok:')
    yp_use(104)
else:
    NS = opt['yppipe'] + 1; SB = [104, 128, 136, 144][:NS]
    for k in range(1, NS - 1):
        sleep(opt['ysl']); yp_loads('', SB[k])
    A('L_yppoll:')
    for k in range(NS):
        sleep(opt['ysl'])
        yp_loads('', SB[(k + NS - 1) % NS])
        A(f's_waitcnt vmcnt({2 * (NS - 1)})')
        tagcheck([SB[k] + 2, SB[k] + 6])
        A(f's_nop 0\ns_cbranch_vccz L_ypd{k}')
    A('s_sub_u32 s70, s70, 1\ns_cbranch_scc0 L_yppoll')
    trap(202)
    for k in reversed(range(NS)):
        A(f'L_ypd{k}:')
        yp_use(SB[k])
        if k: A('s_branch L_ypj')
    A('L_ypj:')
A(f"""
{S32} v8, v10
{S32} v9, v11
v_add_f32 v8, v8, v10
v_add_f32 v9, v9, v11
{S16} v8, v9
v_add_f32 v8, v8, v9
v_add_f32_dpp v8, v8, v8 row_ror:8 {DPPM}
v_cvt_pk_bf16_f32 v8, v57, v8
v_add_f32 v8, v8, v56
v_cvt_pk_bf16_f32 v8, v8, v8
ds_write_b16 v51, v8 offset:{HL}
s_cmp_eq_u32 s3, 4
s_waitcnt lgkmcnt(0)
s_barrier
""")
if opt['stv']: A('s_cbranch_scc1 L_f1st')
for t in range(5): A(f'ds_read_b128 v[{AR+4*t}:{AR+4*t+3}], v52 offset:{HL + 64*t}')
if not opt['stv']: A('s_cbranch_scc1 L_f1st')
for t in range(5):
    A(f's_waitcnt lgkmcnt({4-t})')
    for m in range(2):
        r = B1R + 4 * (2 * t + m); d = 16 + 4 * m
        A(f"v_mfma_f32_16x16x32_bf16 v[{d}:{d+3}], v[{AR+4*t}:{AR+4*t+3}], v[{r}:{r+3}], {'0' if t == 0 else 'v[%d:%d]' % (d, d+3)}")
A('v_cvt_pk_bf16_f32 v12, v16, v116\nv_cvt_pk_bf16_f32 v13, v20, v124')
publish([(0xffff, 'buffer_store_dwordx4 v[12:15], v55, @, s76 offen')])
mark(6)
flush([(6, 27), (5, 11)], True)
A('s_endpgm')
A('L_f1st:')
if opt['stv']:
    A(f"""s_mov_b32 exec_hi, 0xff
ds_read_b64 v[12:13], v54 offset:{HL}
s_waitcnt lgkmcnt(0)
v_dot2c_f32_bf16 v16, v12, v44
v_dot2c_f32_bf16 v20, v12, v12
v_dot2c_f32_bf16 v16, v13, v44
v_dot2c_f32_bf16 v20, v13, v13
s_mov_b32 exec_hi, -1
{S32} v16, v20
v_add_f32 v16, v16, v20""")
    allreduce16('v_add_f32', [16])
    swapreduce(S16, 'v_add_f32', [16], [20])
    A(f'v_mov_b32 v20, v16\n{S32} v16, v20')
else:
    A(f'ds_read_b64 v[12:13], v54 offset:{HL}')
    for t in range(5):
        A(f's_waitcnt lgkmcnt({5-t})')
        a_ = f'v[{AR+4*t}:{AR+4*t+3}]'
        A(f"v_mfma_f32_16x16x32_bf16 v[16:19], {a_}, v[44:47], {'0' if t == 0 else 'v[16:19]'}")
        A(f"v_mfma_f32_16x16x32_bf16 v[20:23], {a_}, {a_}, {'0' if t == 0 else 'v[20:23]'}")
A('s_waitcnt lgkmcnt(0)\nv_cndmask_b32 v12, v12, v16, s[8:9]\nv_cndmask_b32 v13, v13, v20, s[8:9]')
publish([('s[62:63]', 'buffer_store_dwordx4 v[12:15], v63, @, 0 offen')])
mark(6)
flush([(6, 27), (5, 11)], True)
flush([(4, 17)])
A('s_endpgm')

A('L_ffn:')
A("""
v_mov_b32 v57, 0
s_mul_i32 s72, s4, 12
s_add_u32 s72, s72, s5
s_cmp_lt_u32 s3, 5
s_cbranch_scc1 L_f2
s_cmp_eq_u32 s3, 5
s_cbranch_scc1 L_hid
s_cmp_ge_u32 s5, 10
s_cbranch_scc1 L_end
""")
A(f"""
s_mul_i32 s72, s4, 10
s_add_u32 s72, s72, s5
v_lshrrev_b32 v2, 1, v0
v_mul_u32_u24 v2, 2560, v2
v_and_b32 v3, 1, v0
v_lshl_add_u32 v96, v3, 4, v2
s_lshl_b32 s68, s72, 5
v_add_u32 v96, s68, v96
v_add_u32 v100, {32*2560}, v96
v_add_u32 v101, {64*2560}, v96
s_add_u32 s10, s47, {FP}
v_lshrrev_b32 v4, 4, v0
v_lshl_add_u32 v97, v3, 2, v4
v_lshlrev_b32 v97, 1, v97
v_lshlrev_b32 v99, 4, v3
v_and_b32 v98, 16, v0
s_mul_i32 s13, s4, 2560
s_lshl_b32 s68, s72, 5
s_add_u32 s13, s13, s68
s_add_u32 s13, s13, {PH}
s_lshl_b32 s14, s72, 4
s_mov_b32 s69, 0xffff0000
""")
place(96, 4); place(100, 4); place(101, 4)
FS = 16
srd(64, 54, 1280)
A('v_cmp_lt_u32 s[62:63], 31, v0')
A('s_setprio 3\ns_barrier' + ('' if opt['spec'] & 2 else '\ns_barrier'))
if opt['hwarm']: A('buffer_load_dwordx4 v[12:15], v99, s[32:35], s13 offen nt')
A('v_mov_b32 v8, 0\nv_mov_b32 v9, 0\nv_mov_b32 v10, 0\nv_mov_b32 v11, 0\nv_mov_b32 v112, 0x3f80\nv_mov_b32 v113, 0x3f800000')
A('s_barrier')
if opt['fack']: A('s_barrier')
sleep(opt['fsleep'])
def body():
    A(f'buffer_load_dwordx4 v[4:7], v99, s[16:19], s13 offen{RF}')
    for n, a in enumerate((96, 100, 101)):
        r = FS + 4 * n
        A(f'buffer_load_dwordx4 v[{r}:{r+3}], v{a}, s[24:27], s10 offen sc1')
    A('s_waitcnt vmcnt(0)')
    tagcheck([6, FS + 2, FS + 6, FS + 10])
spin2(body, 0, local_only=True)
mark(5)
for n in range(3):
    r = FS + 4 * n
    A(f'v_dot2c_f32_bf16 v8, v{r}, v112\nv_dot2c_f32_bf16 v10, v{r+1}, v112\nv_dot2c_f32_bf16 v9, v{r}, v113\nv_dot2c_f32_bf16 v11, v{r+1}, v113')
A(f"""
v_cndmask_b32 v58, v4, v5, s[62:63]
v_lshrrev_b32 v58, v98, v58
{S32} v8, v10
{S32} v9, v11
v_add_f32 v8, v8, v10
v_add_f32 v9, v9, v11
v_lshlrev_b32 v58, 16, v58
{S16} v8, v9
v_add_f32 v8, v8, v9
v_add_f32_dpp v8, v8, v8 row_ror:8 {DPPM}
v_add_f32_dpp v8, v8, v8 row_ror:4 {DPPM}
v_add_f32_dpp v8, v8, v8 quad_perm:[2,3,0,1] {DPPM}
v_cvt_pk_bf16_f32 v8, v57, v8
v_add_f32 v8, v8, v58
v_cvt_pk_bf16_f32 v8, v8, v8
""")
setexec(0x0003000300030003)
A(f"""
buffer_store_short v8, v97, s[64:67], s14 offen
s_cmp_lg_u32 s72, 0
s_cbranch_scc1 L_fin_exit
s_mov_b64 exec, 1
v_mov_b32 v4, s30
v_mov_b32 v5, s31
s_mov_b32 s68, {EP}
buffer_store_dwordx2 v[4:5], v57, s[24:27], s68 offen
L_fin_exit:
""")
if opt['dbgx'] >= 0:
    o = 4 * opt['dbgs']
    A(f'''
s_cmp_lg_u32 s72, 0
s_cbranch_scc1 L_end
s_load_dword s84, s[56:57], {8 * opt['dbgx'] + o} glc
s_load_dword s85, s[56:57], {o} glc
s_memrealtime s[82:83]
s_waitcnt lgkmcnt(0)
s_sub_u32 s84, s84, s85
s_add_u32 s84, s84, 300
s_mul_i32 s84, s84, 4
s_min_u32 s84, s84, 5000
L_dbgspin:
s_memrealtime s[86:87]
s_waitcnt lgkmcnt(0)
s_sub_u32 s86, s86, s82
s_cmp_lt_u32 s86, s84
s_cbranch_scc1 L_dbgspin
''')
if opt['dbg']:
    A(f'''
s_cmp_lg_u32 s72, 0
s_cbranch_scc1 L_end
s_memrealtime s[82:83]
s_waitcnt lgkmcnt(0)
s_sub_u32 s84, s82, s80
s_sub_u32 s84, s84, 1500
s_mul_i32 s84, s84, {opt['dbg']}
s_min_u32 s84, s84, 20000
L_dbgspin:
s_memrealtime s[86:87]
s_waitcnt lgkmcnt(0)
s_sub_u32 s86, s86, s82
s_cmp_lt_u32 s86, s84
s_cbranch_scc1 L_dbgspin
''')
if STAMPS:
    A('s_waitcnt vmcnt(0)')
    mark(6)
    A(f's_sub_u32 s94, {SPIN}, s70\ns_mov_b32 s95, 0')
    flush([(5, 25), (6, 26), (7, 8)])
A('s_endpgm')

def pa_loads(srdn, fl, b):
    A(f'buffer_load_dwordx4 v[{b+4}:{b+7}], v61, s[{srdn}:{srdn+3}], s65 offen{fl}')
    A(f'buffer_load_dwordx4 v[{b}:{b+3}], v60, s[{srdn}:{srdn+3}], s64 offen{fl}')
def pa_use(b):
    mark(5)
    A(f"""
v_add_f32_dpp v4, v{b+4}, v{b+4} quad_perm:[1,0,3,2] {DPPM}
v_add_f32_dpp v5, v{b+5}, v{b+5} quad_perm:[1,0,3,2] {DPPM}
v_add_f32_dpp v4, v4, v4 quad_perm:[2,3,0,1] {DPPM}
v_add_f32_dpp v5, v5, v5 quad_perm:[2,3,0,1] {DPPM}
v_mul_f32 v6, {f32(-1.0/640)}, v4
v_mul_f32 v5, {f32(1.0/640)}, v5
v_cvt_pk_bf16_f32 v4, 1.0, v6
v_fma_f32 v5, -v6, v6, v5
v_dot2c_f32_bf16 v8, v{b}, v4
v_dot2c_f32_bf16 v9, v{b+1}, v4
""")
def hid_setup():
    A(f"""
v_lshlrev_b32 v60, 4, v0
v_and_b32 v61, 48, v60
s_lshr_b32 s68, s72, 2
s_lshl_b32 s65, s68, 7
s_add_u32 s65, s65, {PS}
s_lshl_b32 s64, s72, 10
s_add_u32 s64, s64, {PA}
v_mov_b32 v8, 0
v_mov_b32 v9, 0
s_cmp_eq_u32 s46, 1
s_cselect_b32 s16, s32, s24
s_cselect_b32 s17, s33, s25
s_mov_b32 s18, {WSN}
s_mov_b32 s19, 0x20000
s_mov_b32 s70, {SPIN}
""")
def hid_compute():
    A('L_pap:')
    pa_loads(16, RF, 24)
    A('s_waitcnt vmcnt(2)')
    tagcheck([18, 22])
    A('s_nop 0\ns_cbranch_vccz L_pad0')
    sleep(opt['psl'])
    pa_loads(32, RF, 16)
    A('s_waitcnt vmcnt(2)')
    tagcheck([26, 30])
    A('s_nop 0\ns_cbranch_vccz L_pad1')
    sleep(opt['psl'])
    A('s_sub_u32 s70, s70, 1\ns_cbranch_scc0 L_pap')
    trap(203)
    A('L_pad1:')
    pa_use(24)
    A('s_branch L_paj\nL_pad0:')
    pa_use(16)
    A('L_paj:')
    A(f"""
v_max_f32 v5, 0, v5
v_cvt_pk_bf16_f32 v5, v57, v5
v_add_f32 v5, {f32(1e-5)}, v5
{S32} v8, v9
v_cvt_pk_bf16_f32 v5, v57, v5
v_add_f32 v8, v8, v9
v_sqrt_f32 v5, v5
v_mov_b32 v10, v8
v_cvt_pk_bf16_f32 v5, v57, v5
v_rcp_f32 v5, v5
{S16} v8, v10
v_add_f32 v8, v8, v10
v_mul_f32 v8, v8, v5
v_cvt_pk_bf16_f32 v8, v57, v8
v_mul_f32 v12, {f32(-LOG2E)}, v8
v_mov_b32 v9, v8
v_exp_f32 v12, v12
{S32} v8, v9
v_add_f32 v12, 1.0, v12
v_rcp_f32 v12, v12
v_mul_f32 v8, v8, v12
v_cvt_pk_bf16_f32 v8, v57, v8
v_mul_f32 v8, v8, v9
""")
BAR1 = 's_setprio 3\ns_barrier' + ('' if opt['spec'] & 2 else '\ns_barrier')
A('L_hid:')
if opt['hred']: A('s_endpgm')
else:
    A('v_and_b32 v62, 15, v0\nv_lshlrev_b32 v62, 1, v62')
    hid_setup()
    A(BAR1)
    pa_loads(32, LF, 16)
    hid_compute()
    A(f"""
v_cvt_pk_bf16_f32 v8, v8, v8
s_mov_b64 exec, 0xffff
ds_write_b16 v62, v8 offset:{HID}
s_waitcnt lgkmcnt(0)
s_barrier
""")
    flush([(5, 24)])
    A('s_endpgm')

A('L_f2:')
W2R = 64
srd(8, 52, 1536 * 640 * 2)
A(f"""
s_lshl_b32 s68, s3, 8
v_lshlrev_b32 v58, 2, v0
v_add_u32 v58, s68, v58
v_lshlrev_b32 v116, 1, v58
s_mul_i32 s68, s72, 2560
v_add_u32 v116, s68, v116
s_xor_b32 s78, s47, 8192
s_add_u32 s78, s78, {FP}
s_add_u32 s77, s47, {FP}
s_mov_b32 s60, 0x05040100
s_mov_b32 s61, 0x07060302
s_mul_i32 s62, s72, 20480
v_mov_b32 v40, 0
v_mov_b32 v41, 0
v_mov_b32 v46, s30
v_mov_b32 v47, s31
""")
place(116, 4)
if opt['hred']: hid_setup()
A(BAR1)
for k in range(16):
    if not opt['abl'] & 256: A(f'buffer_load_dword v{W2R+k}, v58, s[8:11], s62 offen offset:{1280*(k%3)} nt')
    if k % 3 == 2: A('s_add_u32 s62, s62, 3840')
HX = 0
if opt['hred']: pa_loads(32, LF, 16); HX = 2
if opt['hist']:
    for m in (12, 8, 4, 0):
        A(f's_waitcnt vmcnt({m + HX})'); hstamp(51 - m // 4)
A(f's_waitcnt vmcnt({HX})')
mark(4)
for kp in range(8):
    A(f'v_perm_b32 v{80+kp}, v{W2R+2*kp+1}, v{W2R+2*kp}, s60')
    A(f'v_perm_b32 v{88+kp}, v{W2R+2*kp+1}, v{W2R+2*kp}, s61')
if opt['hred']:
    hid_compute()
    A(f'v_mov_b32_dpp v9, v8 quad_perm:[1,0,3,2] {DPPM}\nv_cvt_pk_bf16_f32 v8, v8, v9')
    for kp in range(8): A(f'v_readlane_b32 s{8+kp}, v8, {2*kp}')
    for kp in range(8):
        A(f'v_dot2c_f32_bf16 v40, s{8+kp}, v{80+kp}')
        A(f'v_dot2c_f32_bf16 v41, s{8+kp}, v{88+kp}')
else:
    A(f"""s_barrier
ds_read_b128 v[8:11], v57 offset:{HID}
ds_read_b128 v[12:15], v57 offset:{HID+16}
s_waitcnt lgkmcnt(1)""")
    for kp in range(8):
        if kp == 4: A('s_waitcnt lgkmcnt(0)')
        A(f'v_dot2c_f32_bf16 v40, v{8+kp}, v{80+kp}')
        A(f'v_dot2c_f32_bf16 v41, v{8+kp}, v{88+kp}')
A(f"""
v_cvt_pk_bf16_f32 v44, v40, v41
v_mov_b32_dpp v45, v44 quad_perm:[1,0,3,2] {DPPM}
""")
setexec(0x5555555555555555)
if opt['near']: A('buffer_store_dwordx4 v[44:47], v116, s[24:27], s78 offen sc1')
A('buffer_store_dwordx4 v[44:47], v116, s[24:27], s77 offen sc1')
mark(6)
if opt['hred'] == 2: A('s_barrier')
if STAMPS:
    flush([(6, 27)], True)
    A('s_cmp_lg_u32 s3, 0\ns_cbranch_scc1 L_end')
    flush([(4, 22)] + ([(5, 24)] if opt['hred'] else []))
A('L_end:')
A('s_endpgm')
for blk in outline: A(blk)
if opt['hist']:
    A.lines = [('s_branch L_hexit' if l.strip() == 's_endpgm' else l) for l in A.lines]
    i = A.lines.index('s_cbranch_scc1 L_end'); A.lines[i] = 's_cbranch_scc1 L_realend'
    A(f'''
L_hexit:
s_mov_b64 exec, -1
s_memrealtime s[96:97]
s_getreg_b32 s64, hwreg(HW_REG_XCC_ID)
s_waitcnt lgkmcnt(0)
{''.join('v_writelane_b32 v159, s%d, %d' % (80 + 2 * i, 54 + i) + chr(10) for i in range(6)) if opt['sdiag'] else ''}
v_writelane_b32 v159, s96, 61
v_writelane_b32 v159, s94, 62
v_writelane_b32 v159, s64, 63
s_mul_i32 s64, s2, 12
s_add_u32 s64, s64, s3
s_lshl_b32 s64, s64, 8
s_add_u32 s64, s64, {HB}
v_lshlrev_b32 v1, 2, v0
s_nop 4
buffer_store_dword v159, v1, s[24:27], s64 offen
L_realend:
s_endpgm
''')
A('L_codeend:')

A.raw('.section .rodata,"a"')
A.raw('.p2align 6')
A.raw(f'.amdhsa_kernel {NAME}_kernel')
A.raw('  .amdhsa_next_free_vgpr 168')
A.raw('  .amdhsa_next_free_sgpr 100')
A.raw('  .amdhsa_accum_offset 168')
A.raw('  .amdhsa_group_segment_fixed_size 0')
A.raw('  .amdhsa_kernarg_size 96')
A.raw('  .amdhsa_user_sgpr_count 2')
A.raw('  .amdhsa_user_sgpr_kernarg_segment_ptr 1')
A.raw('  .amdhsa_system_sgpr_workgroup_id_x 1')
A.raw('.end_amdhsa_kernel')
txt = A.finalize()
FLV = {0: ' nt', 1: '', 2: ' sc1', 3: ' sc0 sc1', 4: ' sc1 nt', 5: ' sc0 sc1 nt', 6: ' sc0', 7: ' sc0 nt'}
if opt['wdef'] or opt['kvfl'] or opt['wqfl']:
    out = []
    for l in txt.split('\n'):
        if opt['wdef'] & 1 and 'v2, s[8:11], s68 offen nt' in l: l = l.replace(' nt', '')
        if opt['wdef'] & 2 and ', s[12:15], s60 offen nt lds' in l: l = l.replace(' nt', '')
        if opt['wdef'] & 4 and ('buffer_load_dwordx4 v62,' in l or 'v58, s[8:11], s62' in l): l = l.replace(' nt', '')
        if opt['wdef'] & 8 and 'v1, s[12:15]' in l: l = l.replace(' nt', '')
        if opt['wdef'] & 16 and 'v1, s[8:11]' in l: l = l.replace(' nt', '')
        if opt['kvfl'] and ('v1, s[8:11]' in l or 'v1, s[12:15]' in l): l = l.replace(' nt', FLV[opt['kvfl']])
        if opt['wqfl'] and 'v2, s[8:11], s68 offen nt' in l: l = l.replace(' nt', FLV[opt['wqfl']])
        out.append(l)
    txt = '\n'.join(out)
open(sys.argv[1], 'w').write(txt)
```
